```python
import torch

def _softmax(x, axis=-1):
    return torch.softmax(x, dim=axis)

def _gelu(x):
    return torch.nn.functional.gelu(x, approximate='tanh')

def _silu(x):
    return torch.nn.functional.silu(x)

def _sigmoid(x):
    return torch.sigmoid(x)

def _layernorm(x, axis=-1, eps=1e-05):
    m = x.mean(dim=axis, keepdim=True)
    v = x.var(dim=axis, keepdim=True, unbiased=False)
    return (x - m) / torch.sqrt(v + eps)

def _scatter_add(tgt, idx, src, axis=0):
    return tgt.clone().index_add_(axis, idx, src)

def _segment_sum(src, seg, n):
    out = torch.zeros((n,) + src.shape[1:], dtype=src.dtype)
    return out.index_add_(0, seg, src)

def _pad(x, pw):
    flat = tuple((v for pair in reversed(pw) for v in pair))
    return torch.nn.functional.pad(x, flat)
kernel_name = 'adaLN_cond__linear_kernel_hedgehog__glu_gated_geglu__prompt'

def setup_inputs():

    _w = lambda a: (lambda t: t.to(torch.bfloat16) if t.is_floating_point() else t)(torch.as_tensor(a))

    def _A_setup():
        B, S, D, H = (1, 2048, 512, 32)
        Dh = D // H
        return {'x': _w((lambda *s: torch.randn(*s, dtype=torch.bfloat16) * 0.1)(B, S, D)), 'wqkv': _w((lambda *s: torch.randn(*s, dtype=torch.bfloat16) * 0.2)(D, 3 * D)), 'w_phi': _w((lambda *s: torch.randn(*s, dtype=torch.bfloat16) * 0.2)(H, Dh, Dh) * Dh ** (-0.5)), 'wo': _w((lambda *s: torch.randn(*s, dtype=torch.bfloat16) * 0.2)(D, D))}
    _A_in = _A_setup()

    def _B_setup():
        B, S, Dm, Df = (1, 2048, 512, 1376)
        return {'x': _w((lambda *s: torch.randn(*s, dtype=torch.bfloat16) * 0.1)(B, S, Dm)), 'w_gate': _w((lambda *s: torch.randn(*s, dtype=torch.bfloat16) * 3.2)(Dm, Df) * Dm ** (-0.5)), 'w_up': _w((lambda *s: torch.randn(*s, dtype=torch.bfloat16) * 3.2)(Dm, Df) * Dm ** (-0.5)), 'w_down': _w((lambda *s: torch.randn(*s, dtype=torch.bfloat16) * 3.2)(Df, Dm) * Df ** (-0.5))}
    _B_in = _B_setup()
    return {'A_x': _A_in['x'], 'A_wqkv': _A_in['wqkv'], 'A_w_phi': _A_in['w_phi'], 'A_wo': _A_in['wo'], 'B_x': _B_in['x'], 'B_w_gate': _B_in['w_gate'], 'B_w_up': _B_in['w_up'], 'B_w_down': _B_in['w_down'], 'c': _w((lambda *s: torch.randn(*s, dtype=torch.bfloat16) * 0.4)(1, 512) * 8.0), 'w_mod': _w((lambda *s: torch.randn(*s, dtype=torch.bfloat16) * 0.4)(512, 6 * 512) * 512 ** (-0.5) * 8.0)}

def reference(A_x, A_wqkv, A_w_phi, A_wo, B_x, B_w_gate, B_w_up, B_w_down, c, w_mod):

    def _A_ref(x, wqkv, w_phi, wo):
        B, S, D = x.shape
        H = 32
        Dh = D // H
        qkv = (lambda x, *d: x.permute(*d))((x @ wqkv).reshape(B, S, 3, H, Dh), 2, 0, 3, 1, 4)
        q, k, v = (qkv[0], qkv[1], qkv[2])
        pq = torch.einsum('bhsd,hdf->bhsf', q, w_phi)
        pk = torch.einsum('bhsd,hdf->bhsf', k, w_phi)
        phi_q = torch.concatenate([_softmax(pq, axis=-1), _softmax(-pq, axis=-1)], axis=-1)
        phi_k = torch.concatenate([_softmax(pk, axis=-1), _softmax(-pk, axis=-1)], axis=-1)
        kv = torch.einsum('bhsf,bhsd->bhfd', phi_k, v)
        z = torch.einsum('bhsf->bhf', phi_k)
        num = torch.einsum('bhqf,bhfd->bhqd', phi_q, kv)
        den = torch.einsum('bhqf,bhf->bhq', phi_q, z)[..., None] + 1e-06
        o = num / den
        return (lambda x, *d: x.permute(*d))(o, 0, 2, 1, 3).reshape(B, S, D) @ wo

    def _B_ref(x, w_gate, w_up, w_down):
        g = torch.einsum('bsd,df->bsf', x, w_gate)
        u = torch.einsum('bsd,df->bsf', x, w_up)
        h = _gelu(g) * u
        return torch.einsum('bsf,fd->bsd', h, w_down)
    x = A_x
    mod = (_silu(c) @ w_mod).reshape(c.shape[0], 6, 1, -1)
    sa, ca, ga, sb, cb, gb = (mod[:, 0].clone(), mod[:, 1].clone(), mod[:, 2].clone(), mod[:, 3].clone(), mod[:, 4].clone(), mod[:, 5].clone())
    h = _layernorm(x, axis=-1) * (1 + ca) + sa
    x = x + ga * _A_ref(h, A_wqkv, A_w_phi, A_wo)
    h = _layernorm(x, axis=-1) * (1 + cb) + sb
    x = x + gb * _B_ref(h, B_w_gate, B_w_up, B_w_down)
    return x
```

```python
import sys

NAME = "adaLN_cond__linear_kernel_hedgehog__glu_gated_geglu__prompt"

WS_MODP = 0x0
WS_MODF = 0xC000
WS_KV = 0x10000
WS_STATS = 0x30000
WS_XHAT = 0x100000
WS_PHIQ = 0x300000
WS_X1 = 0x700000
WS_HH = 0x900000

LOG2E = 0x3fb8aa3b


class A:
    def __init__(self):
        self.l = []

    def __call__(self, s):
        self.l.append("    " + s)

    def lab(self, s):
        self.l.append(s + ":")

    def raw(self, s):
        self.l.append(s)

    def nop(self, n):
        while n > 0:
            k = min(n, 16)
            self(f"s_nop {k-1}")
            n -= k

    def text(self):
        return "\n".join(self.l) + "\n"


def vr(b, n=1):
    return f"v{b}" if n == 1 else f"v[{b}:{b+n-1}]"


def sr(b, n=1):
    return f"s{b}" if n == 1 else f"s[{b}:{b+n-1}]"


def srd(a, dst, ptr, off, nbytes):
    if off:
        a(f"s_add_u32 s{dst}, s{ptr}, 0x{off:x}")
        a(f"s_addc_u32 s{dst+1}, s{ptr+1}, 0")
    else:
        a(f"s_mov_b32 s{dst}, s{ptr}")
        a(f"s_mov_b32 s{dst+1}, s{ptr+1}")
    a(f"s_and_b32 s{dst+1}, s{dst+1}, 0xffff")
    a(f"s_mov_b32 s{dst+2}, 0x{nbytes:x}")
    a(f"s_mov_b32 s{dst+3}, 0x00020000")


def kernel_head(a, name):
    a.raw(f".globl {name}")
    a.raw(".p2align 8")
    a.raw(f".type {name},@function")
    a.lab(name)


def kernel_desc(name, vgpr, sgpr=102):
    acc = (vgpr + 3) // 4 * 4
    return f""".amdhsa_kernel {name}
  .amdhsa_next_free_vgpr {vgpr}
  .amdhsa_next_free_sgpr {sgpr}
  .amdhsa_accum_offset {acc}
  .amdhsa_group_segment_fixed_size 0
  .amdhsa_kernarg_size 104
  .amdhsa_user_sgpr_count 2
  .amdhsa_user_sgpr_kernarg_segment_ptr 1
  .amdhsa_system_sgpr_workgroup_id_x 1
.end_amdhsa_kernel
"""


def xgroup_reduce(a, regs, tmps, op):
    for r, t in zip(regs, tmps):
        a(f"v_mov_b32 v{t}, v{r}")
    if len(regs) < 2:
        a.nop(2)
    else:
        a.nop(1)
    for r, t in zip(regs, tmps):
        a(f"v_permlane16_swap_b32 v{r}, v{t}")
    a.nop(1)
    for r, t in zip(regs, tmps):
        a(f"{op} v{r}, v{r}, v{t}")
    for r, t in zip(regs, tmps):
        a(f"v_mov_b32 v{t}, v{r}")
    if len(regs) < 2:
        a.nop(2)
    else:
        a.nop(1)
    for r, t in zip(regs, tmps):
        a(f"v_permlane32_swap_b32 v{r}, v{t}")
    a.nop(1)
    for r, t in zip(regs, tmps):
        a(f"{op} v{r}, v{r}, v{t}")


def gen_k0(a):
    name = "k0_kernel"
    kernel_head(a, name)
    a("s_cmp_ge_u32 s2, 256")
    a("s_cbranch_scc1 K0_END")
    a("s_load_dwordx2 s[4:5], s[0:1], 0")
    a("s_load_dwordx2 s[6:7], s[0:1], 64")
    a("s_load_dwordx2 s[32:33], s[0:1], 72")
    a("s_load_dwordx2 s[34:35], s[0:1], 96")
    a("s_waitcnt lgkmcnt(0)")
    a("s_cmp_ge_u32 s2, 192")
    a("s_cbranch_scc1 K0_LN")
    srd(a, 8, 32, 0, 512 * 6144)
    srd(a, 12, 6, 0, 1024)
    srd(a, 16, 34, WS_MODP, 4 * 3072 * 4)
    a("s_and_b32 s20, s2, 3")
    a("s_lshr_b32 s21, s2, 2")
    a("v_and_b32 v1, 7, v0")
    a("v_lshrrev_b32 v2, 3, v0")
    a("s_movk_i32 s22, 6144")
    a("v_mul_lo_u32 v3, v2, s22")
    a("v_lshl_add_u32 v3, v1, 4, v3")
    a("v_lshlrev_b32 v4, 1, v2")
    a("s_mul_i32 s23, s20, 128*6144")
    a("s_lshl_b32 s24, s21, 7")
    a("s_add_u32 s23, s23, s24")
    a("s_lshl_b32 s25, s20, 8")
    for i in range(4):
        a(f"buffer_load_ushort v{8+i}, v4, s[12:15], s25 offen offset:{i*64}")
    for i in range(4):
        a(f"s_add_u32 s26, s23, {i*32*6144}")
        a(f"buffer_load_dwordx4 v[{16+4*i}:{19+4*i}], v3, s[8:11], s26 offen")
    for j in range(8):
        a(f"v_mov_b32 v{40+j}, 0")
    a("s_waitcnt vmcnt(4)")
    for i in range(4):
        a(f"v_lshlrev_b32 v{8+i}, 16, v{8+i}")
    for i in range(4):
        a(f"v_mul_f32 v{12+i}, 0xbfb8aa3b, v{8+i}")
    for i in range(4):
        a(f"v_exp_f32 v{12+i}, v{12+i}")
    a.nop(1)
    for i in range(4):
        a(f"v_add_f32 v{12+i}, 1.0, v{12+i}")
    for i in range(4):
        a(f"v_rcp_f32 v{12+i}, v{12+i}")
    a.nop(1)
    for i in range(4):
        a(f"v_mul_f32 v{8+i}, v{8+i}, v{12+i}")
    for i in range(4):
        a(f"v_cvt_pk_bf16_f32 v{8+i}, v{8+i}, v{8+i}")
    for i in range(4):
        a(f"v_lshlrev_b32 v{8+i}, 16, v{8+i}")
    for i in range(4):
        a(f"s_waitcnt vmcnt({3-i})")
        for d in range(4):
            w = 16 + 4 * i + d
            a(f"v_lshlrev_b32 v32, 16, v{w}")
            a(f"v_and_b32 v33, 0xffff0000, v{w}")
            a(f"v_fmac_f32 v{40+2*d}, v{8+i}, v32")
            a(f"v_fmac_f32 v{41+2*d}, v{8+i}, v33")
    a("v_lshlrev_b32 v5, 8, v2")
    a("v_lshl_add_u32 v5, v1, 5, v5")
    a("ds_write_b128 v5, v[40:43]")
    a("ds_write_b128 v5, v[44:47] offset:16")
    a("s_waitcnt lgkmcnt(0)")
    a("s_barrier")
    a("v_cmp_gt_u32 vcc, 64, v0")
    a("s_and_saveexec_b64 s[28:29], vcc")
    a("s_cbranch_execz K0_END")
    a("v_lshlrev_b32 v5, 2, v0")
    for r in range(32):
        a(f"ds_read_b32 v{8+r}, v5 offset:{r*256}")
    a("s_waitcnt lgkmcnt(0)")
    for st in (16, 8, 4, 2, 1):
        for r in range(st):
            a(f"v_add_f32 v{8+r}, v{8+r}, v{8+r+st}")
    a("s_mul_i32 s26, s20, 3072*4")
    a("s_lshl_b32 s27, s21, 8")
    a("s_add_u32 s26, s26, s27")
    a("buffer_store_dword v8, v5, s[16:19], s26 offen")
    a("s_branch K0_END")
    a.lab("K0_LN")
    srd(a, 8, 4, 0, 2048 * 1024)
    srd(a, 12, 34, WS_XHAT, 2048 * 1024)
    srd(a, 16, 34, WS_KV, 32 * 544 * 4)
    a("s_sub_u32 s20, s2, 192")
    a("s_lshl_b32 s21, s20, 15")
    a("v_mov_b32 v4, 0")
    a("v_mov_b32 v5, 0")
    a("v_mov_b32 v6, 0")
    a("v_mov_b32 v7, 0")
    a("v_lshlrev_b32 v1, 4, v0")
    a("s_mul_i32 s22, s20, 1088")
    a("v_cmp_gt_u32 vcc, 68, v0")
    a("s_and_saveexec_b64 s[28:29], vcc")
    a("buffer_store_dwordx4 v[4:7], v1, s[16:19], s22 offen")
    a("s_mov_b64 exec, s[28:29]")
    a("v_and_b32 v1, 63, v0")
    a("v_lshrrev_b32 v2, 6, v0")
    a("v_lshlrev_b32 v2, 13, v2")
    a("v_lshl_add_u32 v1, v1, 4, v2")
    a("v_add_u32 v2, 4096, v1")
    for i in range(8):
        vo = 1 if i < 4 else 2
        a(f"buffer_load_dwordx4 v[{16+4*i}:{19+4*i}], v{vo}, s[8:11], s21 offen offset:{(i&3)*1024}")
    a("s_waitcnt vmcnt(0)")
    for i in range(8):
        for d in range(4):
            a(f"v_lshlrev_b32 v{64+8*i+2*d}, 16, v{16+4*i+d}")
            a(f"v_and_b32 v{65+8*i+2*d}, 0xffff0000, v{16+4*i+d}")

    def allreduce(regs, tmps):
        for sh in (1, 2, 4, 8):
            for r in regs:
                a(f"v_add_f32_dpp v{r}, v{r}, v{r} row_ror:{sh} row_mask:0xf bank_mask:0xf")
        xgroup_reduce(a, regs, tmps, "v_add_f32")

    S = list(range(8, 16))
    T = list(range(48, 56))
    for i in range(8):
        b = 64 + 8 * i
        a(f"v_add_f32 v{S[i]}, v{b}, v{b+1}")
        for e in range(2, 8):
            a(f"v_add_f32 v{S[i]}, v{S[i]}, v{b+e}")
    allreduce(S, T)
    for i in range(8):
        a(f"v_mul_f32 v{S[i]}, 0x3b000000, v{S[i]}")
    for i in range(8):
        b = 64 + 8 * i
        for e in range(8):
            a(f"v_sub_f32 v{b+e}, v{b+e}, v{S[i]}")
    for i in range(8):
        b = 64 + 8 * i
        a(f"v_mul_f32 v{S[i]}, v{b}, v{b}")
        for e in range(1, 8):
            a(f"v_fmac_f32 v{S[i]}, v{b+e}, v{b+e}")
    allreduce(S, T)
    a("s_mov_b32 s23, 0x3727c5ac")
    for i in range(8):
        a(f"v_mov_b32 v{T[i]}, s23")
    for i in range(8):
        a(f"v_fmac_f32 v{T[i]}, 0x3b000000, v{S[i]}")
    for i in range(8):
        a(f"v_rsq_f32 v{T[i]}, v{T[i]}")
    a.nop(1)
    for i in range(8):
        b = 64 + 8 * i
        for e in range(8):
            a(f"v_mul_f32 v{b+e}, v{b+e}, v{T[i]}")
        for d in range(4):
            a(f"v_cvt_pk_bf16_f32 v{16+4*i+d}, v{b+2*d}, v{b+2*d+1}")
    for i in range(8):
        vo = 1 if i < 4 else 2
        a(f"buffer_store_dwordx4 v[{16+4*i}:{19+4*i}], v{vo}, s[12:15], s21 offen offset:{(i&3)*1024}")
    a.lab("K0_END")
    a("s_endpgm")
    return kernel_desc(name, 128)


def lane_decode(a, vl, vg, vr_, vq, vm):
    a(f"v_and_b32 v{vl}, 63, v0")
    a(f"v_lshrrev_b32 v{vg}, 4, v{vl}")
    a(f"v_bfe_u32 v{vr_}, v{vl}, 2, 2")
    a(f"v_and_b32 v{vq}, 3, v{vl}")
    a(f"v_and_b32 v{vm}, 15, v{vl}")


def dma_voffset(a, dst, vg, vr_, vq, tmp, stride, gmul):
    a(f"v_mul_u32_u24 v{dst}, {gmul}, v{vg}")
    a(f"v_add_u32 v{dst}, v{dst}, v{vr_}")
    a(f"s_mov_b32 s90, {stride}")
    a(f"v_mul_lo_u32 v{dst}, v{dst}, s90")
    a(f"v_and_b32 v{tmp}, 1, v{vg}")
    a(f"v_lshlrev_b32 v{tmp}, 1, v{tmp}")
    a(f"v_xor_b32 v{tmp}, v{tmp}, v{vq}")
    a(f"v_lshl_add_u32 v{dst}, v{tmp}, 4, v{dst}")


def tr_addr(a, dst, vg, vr_, vq, tmp, tprime_vgpr=None, tprime_const=0):
    a(f"v_and_b32 v{tmp}, 1, v{vg}")
    if tprime_vgpr is not None:
        a(f"v_xor_b32 v{tmp}, v{tmp}, v{tprime_vgpr}")
    elif tprime_const:
        a(f"v_xor_b32 v{tmp}, 1, v{tmp}")
    a(f"v_lshlrev_b32 v{dst}, 8, v{vg}")
    a(f"v_lshl_add_u32 v{dst}, v{vr_}, 6, v{dst}")
    a(f"v_lshl_add_u32 v{dst}, v{tmp}, 5, v{dst}")
    a(f"v_lshl_add_u32 v{dst}, v{vq}, 3, v{dst}")


K1_MOD = 96 * 1024
K1_PK = 100 * 1024
K1_RED = 116 * 1024
K1_LDS = K1_RED + 8 * 2176


def gen_k1(a):
    name = "k1_kernel"
    kernel_head(a, name)
    a("s_cmp_ge_u32 s2, 256")
    a("s_cbranch_scc1 K1_END")
    a("s_load_dwordx2 s[4:5], s[0:1], 8")
    a("s_load_dwordx2 s[6:7], s[0:1], 16")
    a("s_load_dwordx2 s[34:35], s[0:1], 96")
    a("v_lshrrev_b32 v1, 6, v0")
    a("s_nop 0")
    a("v_readfirstlane_b32 s36, v1")
    a("s_and_b32 s40, s2, 7")
    a("s_lshr_b32 s41, s2, 3")
    a("s_lshr_b32 s42, s40, 1")
    a("s_lshl_b32 s42, s42, 2")
    a("s_lshr_b32 s43, s41, 3")
    a("s_add_u32 s42, s42, s43")
    a("s_and_b32 s43, s40, 1")
    a("s_lshl_b32 s43, s43, 3")
    a("s_and_b32 s44, s41, 7")
    a("s_add_u32 s43, s43, s44")
    a("s_and_b32 s37, s36, 3")
    a("s_lshr_b32 s38, s36, 2")
    a("s_waitcnt lgkmcnt(0)")
    srd(a, 8, 4, 0, 512 * 3072)
    srd(a, 12, 34, WS_XHAT, 2048 * 1024)
    srd(a, 16, 34, WS_MODP, 4 * 3072 * 4)
    srd(a, 20, 6, 0, 32 * 512)
    srd(a, 24, 34, WS_PHIQ, 2048 * 2048)
    srd(a, 28, 34, WS_KV, 32 * 544 * 4)
    srd(a, 48, 34, WS_MODF, 3072 * 4)
    VL, VG, VRR, VQ, VM = 1, 2, 3, 4, 5
    lane_decode(a, VL, VG, VRR, VQ, VM)
    a("v_lshlrev_b32 v6, 2, v0")
    for p in range(4):
        a(f"s_mov_b32 s45, {p*3072*4}")
        a(f"buffer_load_dword v{16+p}, v6, s[16:19], s45 offen")
        a(f"buffer_load_dword v{20+p}, v6, s[16:19], s45 offen offset:2048")
    a("s_lshl_b32 s45, s43, 1")
    a("s_add_u32 s45, s45, s38")
    a("s_mov_b32 s46, s45")
    a("s_lshl_b32 s45, s45, 9")
    a(f"v_lshlrev_b32 v7, 7, v{VG}")
    a(f"v_lshl_add_u32 v7, v{VM}, 1, v7")
    for j in range(4):
        a(f"buffer_load_ushort v{24+j}, v7, s[20:23], s45 offen offset:{j*32}")
    VDMA, VX = 8, 9
    dma_voffset(a, VDMA, VG, VRR, VQ, 10, 3072, 8)
    a(f"v_lshlrev_b32 v{VX}, 10, v{VM}")
    a(f"v_lshl_add_u32 v{VX}, v{VG}, 4, v{VX}")
    a("s_lshr_b32 s52, s36, 1")
    a("s_lshl_b32 s52, s52, 5")
    a("s_and_b32 s53, s36, 1")
    a("s_lshl_b32 s53, s53, 2")
    a("s_add_u32 s52, s52, s53")
    a("s_mul_i32 s52, s52, 3072")
    a("s_lshl_b32 s53, s43, 6")
    a("s_add_u32 s52, s52, s53")
    a("s_lshl_b32 s53, s36, 10")
    a("s_lshl_b32 s54, s42, 7")
    a("s_lshl_b32 s55, s37, 5")
    a("s_add_u32 s54, s54, s55")
    a("s_lshl_b32 s55, s54, 10")
    a("s_add_u32 s56, s55, 16384")
    XB = 64
    for p in range(4):
        for seg in range(3):
            a(f"s_add_u32 s57, s52, {p*393216 + seg*1024}")
            a(f"s_add_u32 s58, s53, {seg*32768 + p*8192}")
            a("s_mov_b32 m0, s58")
            a("s_nop 0")
            a(f"buffer_load_dwordx4 v{VDMA}, s[8:11], s57 offen lds")
        for c in range(4 * p, 4 * p + 4):
            for rt in range(2):
                b = XB + (rt * 16 + c) * 4
                a(f"buffer_load_dwordx4 v[{b}:{b+3}], v{VX}, s[12:15], s{55+rt} offen offset:{c*64}")
    a("s_waitcnt vmcnt(48)")
    a("v_add_f32 v16, v16, v17")
    a("v_add_f32 v18, v18, v19")
    a("v_add_f32 v20, v20, v21")
    a("v_add_f32 v22, v22, v23")
    a("v_add_f32 v16, v16, v18")
    a("v_add_f32 v20, v20, v22")
    a("v_cvt_pk_bf16_f32 v16, v16, v20")
    a("v_and_b32 v20, 0xffff0000, v16")
    a("v_lshlrev_b32 v16, 16, v16")
    a("v_add_f32 v20, 1.0, v20")
    a("v_cvt_pk_bf16_f32 v20, v20, v20")
    a("v_lshlrev_b32 v20, 16, v20")
    a(f"v_add_u32 v6, {K1_MOD}, v6")
    a("ds_write_b32 v6, v20")
    a("ds_write_b32 v6, v16 offset:2048")
    a("s_cmp_ge_u32 s2, 4")
    a("s_cbranch_scc1 K1_NOFIN")
    a("v_lshlrev_b32 v11, 2, v0")
    a("s_lshl_b32 s45, s2, 11")
    a("s_add_u32 s45, s45, 4096")
    for p in range(4):
        a(f"s_add_u32 s57, s45, {p*3072*4}")
        a(f"buffer_load_dword v{12+p}, v11, s[16:19], s57 offen")
    a("s_waitcnt vmcnt(0)")
    a("v_add_f32 v12, v12, v13")
    a("v_add_f32 v14, v14, v15")
    a("v_add_f32 v12, v12, v14")
    a("v_cvt_pk_bf16_f32 v12, v12, v12")
    a("v_lshlrev_b32 v12, 16, v12")
    a("buffer_store_dword v12, v11, s[48:51], s45 offen")
    a.lab("K1_NOFIN")
    a("s_waitcnt vmcnt(44)")
    a("v_lshl_or_b32 v28, v25, 16, v24")
    a("v_lshl_or_b32 v29, v27, 16, v26")
    WPH = 28
    VTR = 10
    a("v_mov_b32 v11, s38")
    tr_addr(a, VTR, VG, VRR, VQ, 12, tprime_vgpr=11)
    a(f"v_add_u32 v11, 32768, v{VTR}")
    a(f"v_add_u32 v12, 65536, v{VTR}")
    VTRS = [10, 11, 12]
    VMODA = 13
    a(f"v_lshlrev_b32 v{VMODA}, 5, v{VG}")
    a(f"v_add_u32 v{VMODA}, {K1_MOD}, v{VMODA}")
    ACC = 192
    for i in range(24):
        a(f"v_mov_b32 v{ACC+i}, 0")
    AF = [216, 228]
    MD = [32, 48]
    TMP = 16

    def issue_reads(c, buf):
        m = MD[buf]
        a(f"ds_read_b128 v[{m}:{m+3}], v{VMODA} offset:{c*128}")
        a(f"ds_read_b128 v[{m+4}:{m+7}], v{VMODA} offset:{c*128+16}")
        a(f"ds_read_b128 v[{m+8}:{m+11}], v{VMODA} offset:{2048+c*128}")
        a(f"ds_read_b128 v[{m+12}:{m+15}], v{VMODA} offset:{2048+c*128+16}")
        f = AF[buf]
        for seg in range(3):
            for half in range(2):
                r = f + seg * 4 + half * 2
                a(f"ds_read_b64_tr_b16 v[{r}:{r+1}], v{VTRS[seg]} offset:{c*2048+half*1024}")

    def modulate(c, buf):
        m = MD[buf]
        for rt in range(2):
            b = XB + (rt * 16 + c) * 4
            for d in range(4):
                a(f"v_lshlrev_b32 v{TMP+2*d}, 16, v{b+d}")
                a(f"v_and_b32 v{TMP+2*d+1}, 0xffff0000, v{b+d}")
            for e in range(8):
                a(f"v_fma_f32 v{TMP+e}, v{TMP+e}, v{m+e}, v{m+8+e}")
            for d in range(4):
                a(f"v_cvt_pk_bf16_f32 v{b+d}, v{TMP+2*d}, v{TMP+2*d+1}")

    def mfmas(c, buf):
        f = AF[buf]
        for rt in range(2):
            b = XB + (rt * 16 + c) * 4
            for seg in range(3):
                d = ACC + (seg * 2 + rt) * 4
                fa = f + seg * 4
                if seg < 2:
                    a(f"v_mfma_f32_16x16x32_bf16 v[{d}:{d+3}], v[{fa}:{fa+3}], v[{b}:{b+3}], v[{d}:{d+3}]")
                else:
                    a(f"v_mfma_f32_16x16x32_bf16 v[{d}:{d+3}], v[{b}:{b+3}], v[{fa}:{fa+3}], v[{d}:{d+3}]")

    for p in range(4):
        a(f"s_waitcnt vmcnt({(3-p)*11}) lgkmcnt(0)")
        a("s_barrier")
        issue_reads(4 * p, 0)
        for ci in range(4):
            c = 4 * p + ci
            buf = ci & 1
            if ci < 3:
                issue_reads(c + 1, buf ^ 1)
                a("s_waitcnt lgkmcnt(10)")
            else:
                a("s_waitcnt lgkmcnt(0)")
            modulate(c, buf)
            a.nop(1)
            mfmas(c, buf)
    a.nop(8)
    QB = 32
    for t in range(4):
        d = ACC + t * 4
        a(f"v_cvt_pk_bf16_f32 v{QB+2*t}, v{d}, v{d+1}")
        a(f"v_cvt_pk_bf16_f32 v{QB+2*t+1}, v{d+2}, v{d+3}")
    VB = 40
    for rt in range(2):
        d = ACC + (4 + rt) * 4
        a(f"v_cvt_pk_bf16_f32 v{VB+2*rt}, v{d}, v{d+1}")
        a(f"v_cvt_pk_bf16_f32 v{VB+2*rt+1}, v{d+2}, v{d+3}")
    a.nop(2)
    P = 64
    for t in range(4):
        a(f"v_mfma_f32_16x16x16_bf16 v[{P+4*t}:{P+4*t+3}], v[{WPH}:{WPH+1}], v[{QB+2*t}:{QB+2*t+1}], 0")
    a.nop(8)
    for t in range(4):
        p = P + 4 * t
        a(f"v_cvt_pk_bf16_f32 v{p}, v{p}, v{p+1}")
        a(f"v_cvt_pk_bf16_f32 v{p+2}, v{p+2}, v{p+3}")
    for t in range(4):
        p = P + 4 * t
        a(f"v_and_b32 v{p+1}, 0xffff0000, v{p}")
        a(f"v_lshlrev_b32 v{p}, 16, v{p}")
        a(f"v_and_b32 v{p+3}, 0xffff0000, v{p+2}")
        a(f"v_lshlrev_b32 v{p+2}, 16, v{p+2}")
    MX = [80 + t for t in range(4)]
    MN = [84 + t for t in range(4)]
    TT = [88 + t for t in range(4)]
    for t in range(4):
        p = P + 4 * t
        a(f"v_max3_f32 v{MX[t]}, v{p}, v{p+1}, v{p+2}")
        a(f"v_min3_f32 v{MN[t]}, v{p}, v{p+1}, v{p+2}")
    for t in range(4):
        p = P + 4 * t
        a(f"v_max_f32 v{MX[t]}, v{MX[t]}, v{p+3}")
        a(f"v_min_f32 v{MN[t]}, v{MN[t]}, v{p+3}")
    xgroup_reduce(a, MX, TT, "v_max_f32")
    xgroup_reduce(a, MN, TT, "v_min_f32")
    a(f"s_mov_b32 s60, 0x{LOG2E:x}")
    for t in range(4):
        a(f"v_mul_f32 v{MX[t]}, s60, v{MX[t]}")
        a(f"v_mul_f32 v{MN[t]}, s60, v{MN[t]}")
    E = 96
    for t in range(4):
        p = P + 4 * t
        e = E + 8 * t
        for r in range(4):
            a(f"v_fma_f32 v{e+r}, v{p+r}, s60, -v{MX[t]}")
            a(f"v_fma_f32 v{e+4+r}, -v{p+r}, s60, v{MN[t]}")
    for t in range(4):
        e = E + 8 * t
        for r in range(8):
            a(f"v_exp_f32 v{e+r}, v{e+r}")
    a.nop(1)
    SP = [80 + t for t in range(4)]
    SN = [84 + t for t in range(4)]
    for t in range(4):
        e = E + 8 * t
        a(f"v_add_f32 v{SP[t]}, v{e}, v{e+1}")
        a(f"v_add_f32 v{SN[t]}, v{e+4}, v{e+5}")
    for t in range(4):
        e = E + 8 * t
        a(f"v_add_f32 v{SP[t]}, v{SP[t]}, v{e+2}")
        a(f"v_add_f32 v{SN[t]}, v{SN[t]}, v{e+6}")
    for t in range(4):
        e = E + 8 * t
        a(f"v_add_f32 v{SP[t]}, v{SP[t]}, v{e+3}")
        a(f"v_add_f32 v{SN[t]}, v{SN[t]}, v{e+7}")
    xgroup_reduce(a, SP + SN, TT + [92, 93, 94, 95], "v_add_f32")
    for t in range(4):
        a(f"v_rcp_f32 v{SP[t]}, v{SP[t]}")
        a(f"v_rcp_f32 v{SN[t]}, v{SN[t]}")
    a.nop(1)
    for t in range(4):
        e = E + 8 * t
        for r in range(4):
            a(f"v_mul_f32 v{e+r}, v{e+r}, v{SP[t]}")
            a(f"v_mul_f32 v{e+4+r}, v{e+4+r}, v{SN[t]}")
    PH = 128
    for t in range(4):
        e = E + 8 * t
        for d in range(4):
            a(f"v_cvt_pk_bf16_f32 v{PH+4*t+d}, v{e+2*d}, v{e+2*d+1}")
    a(f"v_lshlrev_b32 v14, 11, v{VM}")
    a(f"v_lshl_add_u32 v14, v{VG}, 4, v14")
    a("s_lshl_b32 s57, s54, 11")
    a("s_lshl_b32 s58, s46, 6")
    a("s_add_u32 s57, s57, s58")
    a("s_add_u32 s58, s57, 32768")
    a(f"buffer_store_dwordx4 v[{PH}:{PH+3}], v14, s[24:27], s57 offen")
    a(f"buffer_store_dwordx4 v[{PH+4}:{PH+7}], v14, s[24:27], s58 offen")
    a("s_lshl_b32 s57, s36, 11")
    a(f"s_add_u32 s57, s57, {K1_PK}")
    a(f"v_lshlrev_b32 v15, 6, v{VM}")
    a(f"v_lshl_add_u32 v15, v{VG}, 4, v15")
    a("v_add_u32 v15, s57, v15")
    a(f"ds_write_b128 v15, v[{PH+8}:{PH+11}]")
    a(f"ds_write_b128 v15, v[{PH+12}:{PH+15}] offset:1024")
    a(f"v_lshlrev_b32 v15, 8, v{VG}")
    a(f"v_lshl_add_u32 v15, v{VRR}, 6, v15")
    a(f"v_lshl_add_u32 v15, v{VQ}, 3, v15")
    a("v_add_u32 v15, s57, v15")
    a("s_waitcnt lgkmcnt(0)")
    KA = 144
    for ft in range(2):
        for rt in range(2):
            r = KA + ft * 4 + rt * 2
            a(f"ds_read_b64_tr_b16 v[{r}:{r+1}], v15 offset:{rt*1024+ft*32}")
    ONES = 152
    for i in range(4):
        a(f"v_mov_b32 v{ONES+i}, 0x3f803f80")
    a("s_waitcnt lgkmcnt(0)")
    a.nop(1)
    DK = 160
    for ft in range(2):
        a(f"v_mfma_f32_16x16x32_bf16 v[{DK+4*ft}:{DK+4*ft+3}], v[{KA+4*ft}:{KA+4*ft+3}], v[{VB}:{VB+3}], 0")
    for ft in range(2):
        a(f"v_mfma_f32_16x16x32_bf16 v[{DK+8+4*ft}:{DK+8+4*ft+3}], v[{KA+4*ft}:{KA+4*ft+3}], v[{ONES}:{ONES+3}], 0")
    a("s_mul_i32 s57, s36, 2176")
    a(f"s_add_u32 s57, s57, {K1_RED}")
    a(f"v_lshlrev_b32 v15, 7, v{VM}")
    a(f"v_lshl_add_u32 v15, v{VG}, 4, v15")
    a("v_add_u32 v15, s57, v15")
    a(f"v_lshlrev_b32 v14, 4, v{VG}")
    a("v_add_u32 v14, s57, v14")
    a.nop(6)
    a(f"ds_write_b128 v15, v[{DK}:{DK+3}]")
    a(f"ds_write_b128 v15, v[{DK+4}:{DK+7}] offset:64")
    a(f"ds_write_b128 v14, v[{DK+8}:{DK+11}] offset:2048")
    a(f"ds_write_b128 v14, v[{DK+12}:{DK+15}] offset:2112")
    a("s_waitcnt lgkmcnt(0)")
    a("s_barrier")
    a("v_and_b32 v14, 255, v0")
    a("v_lshlrev_b32 v14, 2, v14")
    a("s_mul_i32 s57, s38, 4*2176")
    a(f"s_add_u32 s57, s57, {K1_RED}")
    a("v_add_u32 v15, s57, v14")
    for e in range(3):
        for m in range(4):
            a(f"ds_read_b32 v{32+e*4+m}, v15 offset:{m*2176+e*1024}")
    a("s_waitcnt lgkmcnt(0)")
    for e in range(3):
        a(f"v_add_f32 v{32+e*4}, v{32+e*4}, v{33+e*4}")
        a(f"v_add_f32 v{34+e*4}, v{34+e*4}, v{35+e*4}")
    for e in range(3):
        a(f"v_add_f32 v{32+e*4}, v{32+e*4}, v{34+e*4}")
    a("s_mul_i32 s57, s46, 2176")
    a("buffer_atomic_add_f32 v32, v14, s[28:31], s57 offen")
    a("buffer_atomic_add_f32 v36, v14, s[28:31], s57 offen offset:1024")
    a("v_cmp_gt_u32 vcc, 128, v14")
    a("s_and_saveexec_b64 s[60:61], vcc")
    a("s_cbranch_execz K1_END")
    a("buffer_atomic_add_f32 v40, v14, s[28:31], s57 offen offset:2048")
    a.lab("K1_END")
    a("s_endpgm")
    return kernel_desc(name, 240)


K2_KVB = 64 * 1024
K2_ZB = 96 * 1024
K2_LDS = 98 * 1024


def gen_k2(a):
    name = "k2_kernel"
    kernel_head(a, name)
    a("s_cmp_ge_u32 s2, 256")
    a("s_cbranch_scc1 K2_END")
    a("s_load_dwordx2 s[4:5], s[0:1], 24")
    a("s_load_dwordx2 s[6:7], s[0:1], 0")
    a("s_load_dwordx2 s[34:35], s[0:1], 96")
    a("v_lshrrev_b32 v1, 6, v0")
    a("s_nop 0")
    a("v_readfirstlane_b32 s36, v1")
    a("s_and_b32 s40, s2, 7")
    a("s_lshr_b32 s41, s2, 3")
    a("s_lshl_b32 s42, s40, 2")
    a("s_lshr_b32 s43, s41, 3")
    a("s_add_u32 s42, s42, s43")
    a("s_and_b32 s43, s41, 7")
    a("s_waitcnt lgkmcnt(0)")
    srd(a, 8, 4, 0, 512 * 1024)
    srd(a, 12, 6, 0, 2048 * 1024)
    srd(a, 16, 34, WS_KV, 32 * 544 * 4)
    srd(a, 20, 34, WS_PHIQ, 2048 * 2048)
    srd(a, 24, 34, WS_X1, 2048 * 1024)
    srd(a, 28, 34, WS_STATS, 2048 * 64)
    srd(a, 48, 34, WS_MODF, 3072 * 4)
    VL, VG, VRR, VQ, VM = 1, 2, 3, 4, 5
    lane_decode(a, VL, VG, VRR, VQ, VM)
    a("v_and_b32 v6, 127, v0")
    a("v_lshrrev_b32 v7, 7, v0")
    a("s_movk_i32 s45, 2176")
    a("v_mul_lo_u32 v8, v7, s45")
    a("v_lshl_add_u32 v8, v6, 4, v8")
    KT = 192
    for i in range(16):
        a(f"s_mov_b32 s46, {i*2*2176}")
        a(f"buffer_load_dwordx4 v[{KT+4*i}:{KT+4*i+3}], v8, s[16:19], s46 offen")
    a("v_lshrrev_b32 v9, 3, v0")
    a("v_mul_lo_u32 v9, v9, s45")
    a("v_and_b32 v10, 7, v0")
    a("v_lshl_add_u32 v9, v10, 4, v9")
    a("buffer_load_dwordx4 v[12:15], v9, s[16:19], 0 offen offset:2048")
    VDMA, VP = 16, 17
    dma_voffset(a, VDMA, VG, VRR, VQ, 18, 1024, 4)
    a(f"v_lshlrev_b32 v{VP}, 11, v{VM}")
    a(f"v_lshl_add_u32 v{VP}, v{VG}, 4, v{VP}")
    a("s_and_b32 s52, s36, 1")
    a("s_lshl_b32 s52, s52, 14")
    a("s_lshr_b32 s53, s36, 1")
    a("s_lshl_b32 s54, s53, 6")
    a("s_add_u32 s52, s52, s54")
    a("s_lshl_b32 s54, s43, 7")
    a("s_add_u32 s52, s52, s54")
    a("s_lshl_b32 s53, s53, 15")
    a("s_and_b32 s54, s36, 1")
    a("s_lshl_b32 s54, s54, 10")
    a("s_add_u32 s53, s53, s54")
    a("s_lshl_b32 s54, s42, 6")
    a("s_lshl_b32 s55, s36, 4")
    a("s_add_u32 s54, s54, s55")
    a("s_lshl_b32 s55, s54, 11")
    PQ = 64
    for p in range(4):
        for c in range(4 * p, 4 * p + 4):
            a(f"s_add_u32 s57, s52, {c*32*1024}")
            a(f"s_add_u32 s58, s53, {c*2048}")
            a("s_mov_b32 m0, s58")
            a("s_nop 0")
            a(f"buffer_load_dwordx4 v{VDMA}, s[8:11], s57 offen lds")
        for h in range(8 * p, 8 * p + 8):
            b = PQ + 4 * h
            a(f"buffer_load_dwordx4 v[{b}:{b+3}], v{VP}, s[20:23], s55 offen offset:{h*64}")
    a("s_waitcnt vmcnt(48)")
    a("v_lshlrev_b32 v7, 10, v7")
    a("v_lshl_add_u32 v7, v6, 3, v7")
    a(f"v_add_u32 v7, {K2_KVB}, v7")
    for i in range(16):
        k = KT + 4 * i
        a(f"v_cvt_pk_bf16_f32 v{k}, v{k}, v{k+1}")
        a(f"v_cvt_pk_bf16_f32 v{k+1}, v{k+2}, v{k+3}")
        a(f"ds_write_b64 v7, v[{k}:{k+1}] offset:{i*2048}")
    a("v_cvt_pk_bf16_f32 v12, v12, v13")
    a("v_cvt_pk_bf16_f32 v13, v14, v15")
    a("v_lshlrev_b32 v9, 3, v0")
    a(f"v_add_u32 v9, {K2_ZB}, v9")
    a("ds_write_b64 v9, v[12:13]")
    a(f"v_lshlrev_b32 v18, 10, v{VM}")
    a(f"v_lshl_add_u32 v18, v{VG}, 3, v18")
    a("s_lshl_b32 s56, s54, 10")
    a("s_lshl_b32 s57, s43, 7")
    a("s_add_u32 s56, s56, s57")
    XR = 224
    GA = 232
    a(f"v_lshlrev_b32 v19, 4, v{VG}")
    a("s_lshl_b32 s57, s43, 8")
    a("s_add_u32 s57, s57, 4096")
    a("s_waitcnt lgkmcnt(0)")
    for t in range(4):
        a(f"buffer_load_dwordx2 v[{XR+2*t}:{XR+2*t+1}], v18, s[12:15], s56 offen offset:{t*32}")
    for t in range(4):
        a(f"buffer_load_dwordx4 v[{GA+4*t}:{GA+4*t+3}], v19, s[48:51], s57 offen offset:{t*64}")
    VT0, VT1 = 20, 21
    tr_addr(a, VT0, VG, VRR, VQ, 22, tprime_const=0)
    tr_addr(a, VT1, VG, VRR, VQ, 22, tprime_const=1)
    VKV, VZ = 22, 23
    a(f"v_lshlrev_b32 v{VKV}, 6, v{VM}")
    a(f"v_lshl_add_u32 v{VKV}, v{VG}, 4, v{VKV}")
    a(f"v_add_u32 v{VKV}, {K2_KVB}, v{VKV}")
    a(f"v_lshlrev_b32 v{VZ}, 4, v{VG}")
    a(f"v_add_u32 v{VZ}, {K2_ZB}, v{VZ}")
    ACC = 24
    for i in range(16):
        a(f"v_mov_b32 v{ACC+i}, 0")
    KF = 40
    ND = 192
    OB = [56, 60]
    WF = 208
    a("s_mov_b32 s60, 0x358637bd")

    def kv_reads(j):
        for hh in range(2):
            h = 2 * j + hh
            a(f"ds_read_b128 v[{KF+8*hh}:{KF+8*hh+3}], v{VKV} offset:{h*1024}")
            a(f"ds_read_b128 v[{KF+8*hh+4}:{KF+8*hh+7}], v{VZ} offset:{h*64}")

    def o_mfma(j):
        for hh in range(2):
            h = 2 * j + hh
            b = PQ + 4 * h
            a(f"v_mfma_f32_16x16x32_bf16 v[{ND+8*hh}:{ND+8*hh+3}], v[{KF+8*hh}:{KF+8*hh+3}], v[{b}:{b+3}], 0")
            a(f"v_mfma_f32_16x16x32_bf16 v[{ND+8*hh+4}:{ND+8*hh+7}], v[{KF+8*hh+4}:{KF+8*hh+7}], v[{b}:{b+3}], 0")

    def o_valu(j):
        ob = OB[j & 1]
        for hh in range(2):
            n = ND + 8 * hh
            a(f"v_add_f32 v{n+4}, s60, v{n+4}")
        for hh in range(2):
            n = ND + 8 * hh
            a(f"v_rcp_f32 v{n+4}, v{n+4}")
        a.nop(1)
        for hh in range(2):
            n = ND + 8 * hh
            for r in range(4):
                a(f"v_mul_f32 v{n+r}, v{n+r}, v{n+4}")
        for hh in range(2):
            n = ND + 8 * hh
            a(f"v_cvt_pk_bf16_f32 v{ob+2*hh}, v{n}, v{n+1}")
            a(f"v_cvt_pk_bf16_f32 v{ob+2*hh+1}, v{n+2}, v{n+3}")

    def wo_reads(j):
        for t in range(4):
            seg, tp = t >> 1, t & 1
            va = VT1 if tp else VT0
            for half in range(2):
                r = WF + 4 * t + 2 * half
                a(f"ds_read_b64_tr_b16 v[{r}:{r+1}], v{va} offset:{seg*32768+j*2048+half*1024}")

    def main_mfma(j):
        ob = OB[j & 1]
        for t in range(4):
            d = ACC + 4 * t
            a(f"v_mfma_f32_16x16x32_bf16 v[{d}:{d+3}], v[{WF+4*t}:{WF+4*t+3}], v[{ob}:{ob+3}], v[{d}:{d+3}]")

    for j in range(16):
        if j % 4 == 0:
            p = j // 4
            a(f"s_waitcnt vmcnt({(3-p)*12+8}) lgkmcnt(0)")
            a("s_barrier")
        kv_reads(j)
        wo_reads(j)
        a("s_waitcnt lgkmcnt(8)")
        o_mfma(j)
        a.nop(8)
        o_valu(j)
        a("s_waitcnt lgkmcnt(0)")
        a.nop(1)
        main_mfma(j)
    a("s_waitcnt vmcnt(0)")
    a.nop(8)
    X = 64
    for t in range(4):
        for d in range(2):
            a(f"v_lshlrev_b32 v{X+4*t+2*d}, 16, v{XR+2*t+d}")
            a(f"v_and_b32 v{X+4*t+2*d+1}, 0xffff0000, v{XR+2*t+d}")
    for t in range(4):
        d = ACC + 4 * t
        a(f"v_cvt_pk_bf16_f32 v{d}, v{d}, v{d+1}")
        a(f"v_cvt_pk_bf16_f32 v{d+2}, v{d+2}, v{d+3}")
    for t in range(4):
        d = ACC + 4 * t
        a(f"v_and_b32 v{d+1}, 0xffff0000, v{d}")
        a(f"v_lshlrev_b32 v{d}, 16, v{d}")
        a(f"v_and_b32 v{d+3}, 0xffff0000, v{d+2}")
        a(f"v_lshlrev_b32 v{d+2}, 16, v{d+2}")
    for i in range(16):
        a(f"v_mul_f32 v{ACC+i}, v{ACC+i}, v{GA+i}")
    for t in range(4):
        d = ACC + 4 * t
        a(f"v_cvt_pk_bf16_f32 v{d}, v{d}, v{d+1}")
        a(f"v_cvt_pk_bf16_f32 v{d+2}, v{d+2}, v{d+3}")
    for t in range(4):
        d = ACC + 4 * t
        a(f"v_and_b32 v{d+1}, 0xffff0000, v{d}")
        a(f"v_lshlrev_b32 v{d}, 16, v{d}")
        a(f"v_and_b32 v{d+3}, 0xffff0000, v{d+2}")
        a(f"v_lshlrev_b32 v{d+2}, 16, v{d+2}")
    for i in range(16):
        a(f"v_add_f32 v{X+i}, v{X+i}, v{ACC+i}")
    PK = 80
    for t in range(4):
        a(f"v_cvt_pk_bf16_f32 v{PK+2*t}, v{X+4*t}, v{X+4*t+1}")
        a(f"v_cvt_pk_bf16_f32 v{PK+2*t+1}, v{X+4*t+2}, v{X+4*t+3}")
    for t in range(4):
        for d in range(2):
            a(f"v_lshlrev_b32 v{X+4*t+2*d}, 16, v{PK+2*t+d}")
            a(f"v_and_b32 v{X+4*t+2*d+1}, 0xffff0000, v{PK+2*t+d}")
    a(f"v_add_f32 v90, v{X}, v{X+1}")
    for i in range(2, 16):
        a(f"v_add_f32 v90, v90, v{X+i}")
    xgroup_reduce(a, [90], [91], "v_add_f32")
    a("v_mul_f32 v90, 0x3c800000, v90")
    for i in range(16):
        a(f"v_sub_f32 v{X+i}, v{X+i}, v90")
    a(f"v_mul_f32 v91, v{X}, v{X}")
    for i in range(1, 16):
        a(f"v_fmac_f32 v91, v{X+i}, v{X+i}")
    xgroup_reduce(a, [91], [92], "v_add_f32")
    a(f"v_permlane16_swap_b32 v{PK}, v{PK+2}")
    a(f"v_permlane16_swap_b32 v{PK+1}, v{PK+3}")
    a(f"v_permlane16_swap_b32 v{PK+4}, v{PK+6}")
    a(f"v_permlane16_swap_b32 v{PK+5}, v{PK+7}")
    a(f"v_and_b32 v92, 1, v{VG}")
    a(f"v_lshrrev_b32 v93, 1, v{VG}")
    a(f"v_lshlrev_b32 v94, 10, v{VM}")
    a("v_lshl_add_u32 v94, v92, 5, v94")
    a("v_lshl_add_u32 v94, v93, 4, v94")
    a(f"buffer_store_dwordx4 v[{PK}:{PK+3}], v94, s[24:27], s56 offen")
    a(f"buffer_store_dwordx4 v[{PK+4}:{PK+7}], v94, s[24:27], s56 offen offset:64")
    a(f"v_lshlrev_b32 v95, 6, v{VM}")
    a("s_lshl_b32 s57, s54, 6")
    a("s_lshl_b32 s58, s43, 3")
    a("s_add_u32 s57, s57, s58")
    a(f"v_cmp_gt_u32 vcc, 16, v{VL}")
    a("s_and_saveexec_b64 s[60:61], vcc")
    a("buffer_store_dwordx2 v[90:91], v95, s[28:31], s57 offen")
    a.lab("K2_END")
    a("s_endpgm")
    return kernel_desc(name, 256)


K3_MOD = 144 * 1024
K3_LDS = 148 * 1024


def gen_k3(a):
    name = "k3_kernel"
    kernel_head(a, name)
    a("s_cmp_ge_u32 s2, 240")
    a("s_cbranch_scc1 K3_END")
    a("s_load_dwordx2 s[4:5], s[0:1], 40")
    a("s_load_dwordx2 s[6:7], s[0:1], 48")
    a("s_load_dwordx2 s[34:35], s[0:1], 96")
    a("v_lshrrev_b32 v1, 6, v0")
    a("s_nop 0")
    a("v_readfirstlane_b32 s36, v1")
    a("s_and_b32 s40, s2, 7")
    a("s_lshr_b32 s41, s2, 3")
    a("s_lshl_b32 s42, s40, 1")
    a("s_cmp_ge_u32 s41, 15")
    a("s_cselect_b32 s44, 1, 0")
    a("s_add_u32 s42, s42, s44")
    a("s_mul_i32 s44, s44, 15")
    a("s_sub_u32 s43, s41, s44")
    a("s_and_b32 s37, s36, 3")
    a("s_lshr_b32 s38, s36, 2")
    a("s_waitcnt lgkmcnt(0)")
    srd(a, 8, 4, 0, 512 * 2752)
    srd(a, 12, 6, 0, 512 * 2752)
    srd(a, 16, 34, WS_X1, 2048 * 1024)
    srd(a, 20, 34, WS_STATS, 2048 * 64)
    srd(a, 24, 34, WS_HH, 2048 * 2752)
    srd(a, 48, 34, WS_MODF, 3072 * 4)
    VL, VG, VRR, VQ, VM = 1, 2, 3, 4, 5
    lane_decode(a, VL, VG, VRR, VQ, VM)
    a("v_lshlrev_b32 v6, 2, v0")
    a("s_movk_i32 s45, 6144")
    a("buffer_load_dword v16, v6, s[48:51], s45 offen")
    a("buffer_load_dword v17, v6, s[48:51], s45 offen offset:2048")
    a("s_lshl_b32 s54, s42, 7")
    a("s_lshl_b32 s55, s37, 5")
    a("s_add_u32 s54, s54, s55")
    a(f"v_lshlrev_b32 v7, 6, v{VM}")
    a("s_lshl_b32 s45, s54, 6")
    ST = 192
    for rt in range(2):
        for q in range(4):
            a(f"buffer_load_dwordx4 v[{ST+16*rt+4*q}:{ST+16*rt+4*q+3}], v7, s[20:23], s45 offen offset:{rt*1024+q*16}")
    VDMA, VX = 8, 9
    dma_voffset(a, VDMA, VG, VRR, VQ, 10, 2752, 8)
    a(f"v_lshlrev_b32 v{VX}, 10, v{VM}")
    a(f"v_lshl_add_u32 v{VX}, v{VG}, 4, v{VX}")
    a("s_lshr_b32 s52, s36, 1")
    a("s_lshl_b32 s52, s52, 5")
    a("s_and_b32 s53, s36, 1")
    a("s_lshl_b32 s53, s53, 2")
    a("s_add_u32 s52, s52, s53")
    a("s_mul_i32 s52, s52, 2752")
    a("s_mul_i32 s53, s43, 192")
    a("s_add_u32 s52, s52, s53")
    a("s_lshl_b32 s53, s36, 10")
    a("s_lshl_b32 s55, s54, 10")
    a("s_add_u32 s56, s55, 16384")
    XB = 64

    def issue_quarter(qt):
        slot = qt % 3
        for seg in range(6):
            S = 8 if seg < 3 else 12
            a(f"s_add_u32 s57, s52, {qt*128*2752 + (seg%3)*64}")
            a(f"s_add_u32 s58, s53, {slot*49152 + seg*8192}")
            a("s_mov_b32 m0, s58")
            a("s_nop 0")
            a(f"buffer_load_dwordx4 v{VDMA}, s[{S}:{S+3}], s57 offen lds")
        for cl in range(4):
            for rt in range(2):
                b = XB + ((slot * 2 + rt) * 4 + cl) * 4
                a(f"buffer_load_dwordx4 v[{b}:{b+3}], v{VX}, s[16:19], s{55+rt} offen offset:{(qt*4+cl)*64}")

    for qt in range(3):
        issue_quarter(qt)
    a("s_waitcnt vmcnt(50)")
    a("v_add_f32 v17, 1.0, v17")
    a("v_cvt_pk_bf16_f32 v17, v17, v17")
    a("v_lshlrev_b32 v17, 16, v17")
    a(f"v_add_u32 v6, {K3_MOD}, v6")
    a("ds_write_b32 v6, v17")
    a("ds_write_b32 v6, v16 offset:2048")
    a("s_waitcnt vmcnt(42)")
    RS = [10, 11]
    NM = [12, 13]
    for rt in range(2):
        s = ST + 16 * rt
        a(f"v_add_f32 v14, v{s}, v{s+2}")
        for i in range(2, 8):
            a(f"v_add_f32 v14, v14, v{s+2*i}")
        a("v_mul_f32 v14, 0x3e000000, v14")
        a(f"v_add_f32 v15, v{s+1}, v{s+3}")
        for i in range(2, 8):
            a(f"v_add_f32 v15, v15, v{s+2*i+1}")
        for i in range(8):
            a(f"v_sub_f32 v{s+2*i}, v{s+2*i}, v14")
        a(f"v_mul_f32 v{s+1}, v{s}, v{s}")
        for i in range(1, 8):
            a(f"v_fmac_f32 v{s+1}, v{s+2*i}, v{s+2*i}")
        a(f"v_fmac_f32 v15, 0x42800000, v{s+1}")
        a("s_mov_b32 s45, 0x3727c5ac")
        a(f"v_mov_b32 v{RS[rt]}, s45")
        a(f"v_fmac_f32 v{RS[rt]}, 0x3b000000, v15")
        a(f"v_rsq_f32 v{RS[rt]}, v{RS[rt]}")
        a.nop(1)
        a(f"v_mul_f32 v{NM[rt]}, v14, v{RS[rt]}")
        a(f"v_sub_f32 v{NM[rt]}, 0, v{NM[rt]}")
    VT = [14, 15, 16]
    tr_addr(a, 17, VG, VRR, VQ, 18, tprime_const=0)
    tr_addr(a, 19, VG, VRR, VQ, 18, tprime_const=1)
    a("s_cmp_eq_u32 s38, 0")
    a("s_cselect_b64 s[60:61], -1, 0")
    a("v_add_u32 v20, 8192, v19")
    a("v_cndmask_b32 v14, v20, v17, s[60:61]")
    a("v_add_u32 v20, 16384, v17")
    a("v_cndmask_b32 v15, v20, v19, s[60:61]")
    a("v_add_u32 v20, 16384, v19")
    a("v_add_u32 v21, 8192, v17")
    a("v_cndmask_b32 v16, v20, v21, s[60:61]")
    VMODA = 17
    a(f"v_lshlrev_b32 v{VMODA}, 5, v{VG}")
    a(f"v_add_u32 v{VMODA}, {K3_MOD}, v{VMODA}")
    ACC = 160
    for i in range(48):
        a(f"v_mov_b32 v{ACC+i}, 0")
    AF = [208, 232]
    MD = 32
    TMP = 48

    def a_reads(c, buf):
        slot = (c // 4) % 3
        cl = c % 4
        f = AF[buf]
        for gu in range(2):
            for tt in range(3):
                for half in range(2):
                    r = f + (gu * 3 + tt) * 4 + half * 2
                    off = slot * 49152 + gu * 24576 + cl * 2048 + half * 1024
                    if off < 65536:
                        a(f"ds_read_b64_tr_b16 v[{r}:{r+1}], v{VT[tt]} offset:{off}")
                    else:
                        a(f"ds_read_b64_tr_b16 v[{r}:{r+1}], v{VTH[tt]} offset:{off-65536}")

    VTH = [18, 19, 20]
    for tt in range(3):
        a(f"v_add_u32 v{VTH[tt]}, 0x10000, v{VT[tt]}")
    VTH2 = None

    def mod_reads(c):
        m = MD
        a(f"ds_read_b128 v[{m}:{m+3}], v{VMODA} offset:{c*128}")
        a(f"ds_read_b128 v[{m+4}:{m+7}], v{VMODA} offset:{c*128+16}")
        a(f"ds_read_b128 v[{m+8}:{m+11}], v{VMODA} offset:{2048+c*128}")
        a(f"ds_read_b128 v[{m+12}:{m+15}], v{VMODA} offset:{2048+c*128+16}")

    def modulate(c):
        slot = (c // 4) % 3
        cl = c % 4
        m = MD
        for rt in range(2):
            b = XB + ((slot * 2 + rt) * 4 + cl) * 4
            for d in range(4):
                a(f"v_lshlrev_b32 v{TMP+2*d}, 16, v{b+d}")
                a(f"v_and_b32 v{TMP+2*d+1}, 0xffff0000, v{b+d}")
            for e in range(8):
                a(f"v_fma_f32 v{TMP+e}, v{TMP+e}, v{RS[rt]}, v{NM[rt]}")
            for e in range(8):
                a(f"v_fma_f32 v{TMP+e}, v{TMP+e}, v{m+e}, v{m+8+e}")
            for d in range(4):
                a(f"v_cvt_pk_bf16_f32 v{b+d}, v{TMP+2*d}, v{TMP+2*d+1}")

    def mfmas(c, buf):
        slot = (c // 4) % 3
        cl = c % 4
        f = AF[buf]
        for rt in range(2):
            b = XB + ((slot * 2 + rt) * 4 + cl) * 4
            for gu in range(2):
                for tt in range(3):
                    d = ACC + ((gu * 3 + tt) * 2 + rt) * 4
                    fa = f + (gu * 3 + tt) * 4
                    a(f"v_mfma_f32_16x16x32_bf16 v[{d}:{d+3}], v[{fa}:{fa+3}], v[{b}:{b+3}], v[{d}:{d+3}]")

    for qt in range(4):
        if qt == 0:
            a("s_waitcnt vmcnt(28) lgkmcnt(0)")
        elif qt == 1:
            a("s_waitcnt vmcnt(14) lgkmcnt(0)")
        elif qt == 2:
            a("s_waitcnt vmcnt(14) lgkmcnt(0)")
        else:
            a("s_waitcnt vmcnt(0) lgkmcnt(0)")
        a("s_barrier")
        if qt == 1:
            issue_quarter(3)
        mod_reads(4 * qt)
        a_reads(4 * qt, 0)
        for ci in range(4):
            c = 4 * qt + ci
            buf = ci & 1
            a("s_waitcnt lgkmcnt(12)" )
            modulate(c)
            if ci < 3:
                mod_reads(c + 1) if False else None
                a_reads(c + 1, buf ^ 1)
                a("s_waitcnt lgkmcnt(12)")
            else:
                a("s_waitcnt lgkmcnt(0)")
            mfmas(c, buf)
            if ci < 3:
                mod_reads(c + 1)
                a("s_waitcnt lgkmcnt(0)")
                a("s_nop 0")
    a.nop(8)
    a("s_mov_b32 s60, 0x3d372713")
    a("s_mov_b32 s61, 0xc0135761")
    G = ACC
    U = ACC + 24
    for i in range(0, 48, 2):
        a(f"v_cvt_pk_bf16_f32 v{ACC+i}, v{ACC+i}, v{ACC+i+1}")
    for i in range(0, 48, 2):
        a(f"v_and_b32 v{ACC+i+1}, 0xffff0000, v{ACC+i}")
        a(f"v_lshlrev_b32 v{ACC+i}, 16, v{ACC+i}")
    T = 64
    for i in range(24):
        a(f"v_mul_f32 v{T+i}, v{G+i}, v{G+i}")
    for i in range(24):
        a(f"v_fma_f32 v{T+i}, v{T+i}, s60, 1.0")
    for i in range(24):
        a(f"v_mul_f32 v{T+i}, v{T+i}, v{G+i}")
    for i in range(24):
        a(f"v_mul_f32 v{T+i}, s61, v{T+i}")
    for i in range(24):
        a(f"v_exp_f32 v{T+i}, v{T+i}")
    for i in range(24):
        a(f"v_add_f32 v{T+i}, 1.0, v{T+i}")
    for i in range(24):
        a(f"v_rcp_f32 v{T+i}, v{T+i}")
    for i in range(24):
        a(f"v_mul_f32 v{T+i}, v{T+i}, v{G+i}")
    for i in range(0, 24, 2):
        a(f"v_cvt_pk_bf16_f32 v{T+i}, v{T+i}, v{T+i+1}")
    for i in range(0, 24, 2):
        a(f"v_and_b32 v{T+i+1}, 0xffff0000, v{T+i}")
        a(f"v_lshlrev_b32 v{T+i}, 16, v{T+i}")
    for i in range(24):
        a(f"v_mul_f32 v{T+i}, v{T+i}, v{U+i}")
    PK = 96
    for rt in range(2):
        for tt in range(3):
            s = T + (tt * 2 + rt) * 4
            a(f"v_cvt_pk_bf16_f32 v{PK+rt*6+tt*2}, v{s}, v{s+1}")
            a(f"v_cvt_pk_bf16_f32 v{PK+rt*6+tt*2+1}, v{s+2}, v{s+3}")
    a("s_mov_b32 s45, 2752")
    a(f"v_mul_lo_u32 v110, v{VM}, s45")
    a(f"v_lshl_add_u32 v110, v{VG}, 3, v110")
    a("s_mul_i32 s57, s54, 2752")
    a("s_mul_i32 s58, s43, 192")
    a("s_add_u32 s57, s57, s58")
    a("s_mul_i32 s58, s38, 96")
    a("s_add_u32 s57, s57, s58")
    a("s_add_u32 s58, s57, 16*2752")
    a("s_mul_i32 s59, s43, 96")
    a("s_mul_i32 s62, s38, 48")
    a("s_add_u32 s59, s59, s62")
    for tt in range(3):
        a(f"s_add_u32 s62, s59, {16*tt}")
        a("s_cmp_ge_u32 s62, 1376")
        a("s_cbranch_scc1 K3_END")
        for rt in range(2):
            r = PK + rt * 6 + tt * 2
            a(f"buffer_store_dwordx2 v[{r}:{r+1}], v110, s[24:27], s{57+rt} offen offset:{tt*32}")
    a.lab("K3_END")
    a("s_endpgm")
    return kernel_desc(name, 256)


K4_SLOTS = 38
K4_LDS = K4_SLOTS * 4096


def gen_k4(a):
    name = "k4_kernel"
    kernel_head(a, name)
    a("s_cmp_ge_u32 s2, 256")
    a("s_cbranch_scc1 K4_END")
    a("s_load_dwordx2 s[4:5], s[0:1], 56")
    a("s_load_dwordx2 s[6:7], s[0:1], 80")
    a("s_load_dwordx2 s[34:35], s[0:1], 96")
    a("v_lshrrev_b32 v1, 6, v0")
    a("s_nop 0")
    a("v_readfirstlane_b32 s36, v1")
    a("s_and_b32 s40, s2, 7")
    a("s_lshr_b32 s41, s2, 3")
    a("s_lshl_b32 s42, s40, 2")
    a("s_lshr_b32 s43, s41, 3")
    a("s_add_u32 s42, s42, s43")
    a("s_and_b32 s43, s41, 7")
    a("s_waitcnt lgkmcnt(0)")
    srd(a, 8, 4, 0, 1376 * 1024)
    srd(a, 12, 6, 0, 2048 * 1024)
    srd(a, 16, 34, WS_HH, 2048 * 2752)
    srd(a, 24, 34, WS_X1, 2048 * 1024)
    srd(a, 48, 34, WS_MODF, 3072 * 4)
    VL, VG, VRR, VQ, VM = 1, 2, 3, 4, 5
    lane_decode(a, VL, VG, VRR, VQ, VM)
    VDMA, VH = 8, 9
    dma_voffset(a, VDMA, VG, VRR, VQ, 10, 1024, 8)
    a("s_mov_b32 s45, 2752")
    a(f"v_mul_lo_u32 v{VH}, v{VM}, s45")
    a(f"v_lshl_add_u32 v{VH}, v{VG}, 4, v{VH}")
    a("s_and_b32 s52, s36, 1")
    a("s_lshl_b32 s52, s52, 12")
    a("s_lshr_b32 s53, s36, 1")
    a("s_lshl_b32 s54, s53, 6")
    a("s_add_u32 s52, s52, s54")
    a("s_lshl_b32 s54, s43, 7")
    a("s_add_u32 s52, s52, s54")
    a("s_lshl_b32 s53, s36, 10")
    a("s_lshl_b32 s54, s42, 6")
    a("s_lshl_b32 s55, s36, 4")
    a("s_add_u32 s54, s54, s55")
    a("s_mul_i32 s55, s54, 2752")
    HB = 64

    def issue(c):
        slot = c % K4_SLOTS
        a(f"s_add_u32 s57, s52, {c*32*1024}")
        a(f"s_add_u32 s58, s53, {slot*4096}")
        a("s_mov_b32 m0, s58")
        a("s_nop 0")
        a(f"buffer_load_dwordx4 v{VDMA}, s[8:11], s57 offen lds")
        b = HB + 4 * c
        a(f"buffer_load_dwordx4 v[{b}:{b+3}], v{VH}, s[16:19], s55 offen offset:{c*64}")

    NPRE = 28
    for c in range(NPRE):
        issue(c)
    VT = [10, 11]
    tr_addr(a, 10, VG, VRR, VQ, 12, tprime_const=0)
    tr_addr(a, 11, VG, VRR, VQ, 12, tprime_const=1)
    VTB = [[10, 11], [12, 13], [14, 15]]
    a("v_add_u32 v12, 0x10000, v10")
    a("v_add_u32 v13, 0x10000, v11")
    a("v_add_u32 v14, 0x20000, v10")
    a("v_add_u32 v15, 0x20000, v11")
    ACC = 16
    for i in range(16):
        a(f"v_mov_b32 v{ACC+i}, 0")
    AF = [32, 48]

    def a_reads(c, buf):
        slot = c % K4_SLOTS
        f = AF[buf]
        for t in range(4):
            seg, tp = t >> 1, t & 1
            for half in range(2):
                off = slot * 4096 + seg * 2048 + half * 1024
                base = VTB[off >> 16][tp]
                r = f + 4 * t + 2 * half
                a(f"ds_read_b64_tr_b16 v[{r}:{r+1}], v{base} offset:{off & 0xffff}")

    def mfmas(c, buf):
        f = AF[buf]
        b = HB + 4 * c
        for t in range(4):
            d = ACC + 4 * t
            a(f"v_mfma_f32_16x16x32_bf16 v[{d}:{d+3}], v[{f+4*t}:{f+4*t+3}], v[{b}:{b+3}], v[{d}:{d+3}]")

    issued = NPRE
    phases = [list(range(i, min(i + 4, 43))) for i in range(0, 43, 4)]
    for pi, ph in enumerate(phases):
        need = ph[-1] + 1
        a(f"s_waitcnt vmcnt({2*(issued-need)}) lgkmcnt(0)")
        a("s_barrier")
        nmore = 0
        while issued < 43 and nmore < 4 and (issued - K4_SLOTS) < ph[0]:
            issue(issued)
            issued += 1
            nmore += 1
        a_reads(ph[0], 0)
        for ci, c in enumerate(ph):
            buf = ci & 1
            if ci + 1 < len(ph):
                a_reads(ph[ci + 1], buf ^ 1)
                a("s_waitcnt lgkmcnt(8)")
            else:
                a("s_waitcnt lgkmcnt(0)")
            mfmas(c, buf)
    assert issued == 43
    a(f"v_lshlrev_b32 v36, 10, v{VM}")
    a(f"v_lshl_add_u32 v36, v{VG}, 3, v36")
    a("s_lshl_b32 s56, s54, 10")
    a("s_lshl_b32 s57, s43, 7")
    a("s_add_u32 s56, s56, s57")
    XR, GB = 40, 48
    a(f"v_lshlrev_b32 v37, 4, v{VG}")
    a("s_lshl_b32 s57, s43, 8")
    a("s_add_u32 s57, s57, 2560*4")
    a.nop(4)
    for t in range(4):
        a(f"buffer_load_dwordx2 v[{XR+2*t}:{XR+2*t+1}], v36, s[24:27], s56 offen offset:{t*32}")
    for t in range(4):
        a(f"buffer_load_dwordx4 v[{GB+4*t}:{GB+4*t+3}], v37, s[48:51], s57 offen offset:{t*64}")
    a.nop(4)
    for t in range(4):
        d = ACC + 4 * t
        a(f"v_cvt_pk_bf16_f32 v{d}, v{d}, v{d+1}")
        a(f"v_cvt_pk_bf16_f32 v{d+2}, v{d+2}, v{d+3}")
    for t in range(4):
        d = ACC + 4 * t
        a(f"v_and_b32 v{d+1}, 0xffff0000, v{d}")
        a(f"v_lshlrev_b32 v{d}, 16, v{d}")
        a(f"v_and_b32 v{d+3}, 0xffff0000, v{d+2}")
        a(f"v_lshlrev_b32 v{d+2}, 16, v{d+2}")
    a("s_waitcnt vmcnt(0)")
    for i in range(16):
        a(f"v_mul_f32 v{ACC+i}, v{ACC+i}, v{GB+i}")
    for t in range(4):
        d = ACC + 4 * t
        a(f"v_cvt_pk_bf16_f32 v{d}, v{d}, v{d+1}")
        a(f"v_cvt_pk_bf16_f32 v{d+2}, v{d+2}, v{d+3}")
    for t in range(4):
        d = ACC + 4 * t
        a(f"v_and_b32 v{d+1}, 0xffff0000, v{d}")
        a(f"v_lshlrev_b32 v{d}, 16, v{d}")
        a(f"v_and_b32 v{d+3}, 0xffff0000, v{d+2}")
        a(f"v_lshlrev_b32 v{d+2}, 16, v{d+2}")
    X = 64
    for t in range(4):
        for d in range(2):
            a(f"v_lshlrev_b32 v{X+4*t+2*d}, 16, v{XR+2*t+d}")
            a(f"v_and_b32 v{X+4*t+2*d+1}, 0xffff0000, v{XR+2*t+d}")
    for i in range(16):
        a(f"v_add_f32 v{X+i}, v{X+i}, v{ACC+i}")
    PK = 80
    for t in range(4):
        a(f"v_cvt_pk_bf16_f32 v{PK+2*t}, v{X+4*t}, v{X+4*t+1}")
        a(f"v_cvt_pk_bf16_f32 v{PK+2*t+1}, v{X+4*t+2}, v{X+4*t+3}")
    a(f"v_and_b32 v92, 1, v{VG}")
    a(f"v_lshrrev_b32 v93, 1, v{VG}")
    a(f"v_lshlrev_b32 v94, 10, v{VM}")
    a("v_lshl_add_u32 v94, v92, 5, v94")
    a("v_lshl_add_u32 v94, v93, 4, v94")
    a(f"v_permlane16_swap_b32 v{PK}, v{PK+2}")
    a(f"v_permlane16_swap_b32 v{PK+1}, v{PK+3}")
    a(f"v_permlane16_swap_b32 v{PK+4}, v{PK+6}")
    a(f"v_permlane16_swap_b32 v{PK+5}, v{PK+7}")
    a.nop(1)
    a(f"buffer_store_dwordx4 v[{PK}:{PK+3}], v94, s[12:15], s56 offen")
    a(f"buffer_store_dwordx4 v[{PK+4}:{PK+7}], v94, s[12:15], s56 offen offset:64")
    a.lab("K4_END")
    a("s_endpgm")
    return kernel_desc(name, 240)


def main():
    a = A()
    a.raw(f"; @launch kernel=k0_kernel grid=(256,1,1) block=(256,1,1) lds=8192")
    a.raw(f"; @launch kernel=k1_kernel grid=(256,1,1) block=(512,1,1) lds={K1_LDS}")
    a.raw(f"; @launch kernel=k2_kernel grid=(256,1,1) block=(256,1,1) lds={K2_LDS}")
    a.raw(f"; @launch kernel=k3_kernel grid=(240,1,1) block=(512,1,1) lds={K3_LDS}")
    a.raw(f"; @launch kernel=k4_kernel grid=(256,1,1) block=(256,1,1) lds={K4_LDS}")
    a.raw('.amdgcn_target "amdgcn-amd-amdhsa--gfx950"')
    a.raw(".text")
    descs = []
    for g in (gen_k0, gen_k1, gen_k2, gen_k3, gen_k4):
        descs.append(g(a))
    a.raw('.section .rodata,"a"')
    for d in descs:
        a.raw(".p2align 6")
        a.raw(d)
    out = sys.argv[1] if len(sys.argv) > 1 else f"cdna_kernels/{NAME}.s"
    open(out, "w").write(a.text())


if __name__ == "__main__":
    main()
```

```python
import sys

NAME = "adaLN_cond__linear_kernel_hedgehog__glu_gated_geglu__prompt"

WS_MODP = 0x0
WS_MODF = 0xC000
WS_KV = 0x10000
WS_STATS = 0x30000
WS_XHAT = 0x100000
WS_PHIQ = 0x300000
WS_X1 = 0x700000
WS_HH = 0x900000

LOG2E = 0x3fb8aa3b
import os
STAMP = int(os.environ.get("STAMP", "0"))
STAMP_WG = int(os.environ.get("STAMP_WG", "100"))
STAMP_WAVE = int(os.environ.get("STAMP_WAVE", "0"))


class A:
    def __init__(self):
        self.l = []

    def __call__(self, s):
        self.l.append("    " + s)

    def lab(self, s):
        self.l.append(s + ":")

    def raw(self, s):
        self.l.append(s)

    def nop(self, n):
        while n > 0:
            k = min(n, 16)
            self(f"s_nop {k-1}")
            n -= k

    def stamp(self, i):
        if STAMP:
            self(f"s_memtime s[{64+2*i}:{65+2*i}]")

    def stamp_out(self, n, wave_sgpr):
        if not STAMP:
            return
        lab = f"STAMP_SKIP_{len(self.l)}"
        self("s_mov_b64 exec, -1")
        self(f"s_cmp_lg_u32 s2, {STAMP_WG}")
        self(f"s_cbranch_scc1 {lab}")
        self(f"s_cmp_lg_u32 s{wave_sgpr}, {STAMP_WAVE}")
        self(f"s_cbranch_scc1 {lab}")
        self("s_load_dwordx2 s[92:93], s[0:1], 88")
        self("s_waitcnt lgkmcnt(0)")
        self("s_mov_b32 s96, s92")
        self("s_and_b32 s97, s93, 0xffff")
        self("s_mov_b32 s98, 256")
        self("s_mov_b32 s99, 0x00020000")
        self("v_mov_b32 v1, 0")
        for i in range(n):
            self(f"v_mov_b32 v2, s{64+2*i}")
            self(f"buffer_store_dword v2, v1, s[96:99], 0 offen offset:{4*i}")
        self.lab(lab)

    def text(self):
        return "\n".join(self.l) + "\n"


def vr(b, n=1):
    return f"v{b}" if n == 1 else f"v[{b}:{b+n-1}]"


def sr(b, n=1):
    return f"s{b}" if n == 1 else f"s[{b}:{b+n-1}]"


def srd(a, dst, ptr, off, nbytes):
    if off:
        a(f"s_add_u32 s{dst}, s{ptr}, 0x{off:x}")
        a(f"s_addc_u32 s{dst+1}, s{ptr+1}, 0")
    else:
        a(f"s_mov_b32 s{dst}, s{ptr}")
        a(f"s_mov_b32 s{dst+1}, s{ptr+1}")
    a(f"s_and_b32 s{dst+1}, s{dst+1}, 0xffff")
    a(f"s_mov_b32 s{dst+2}, 0x{nbytes:x}")
    a(f"s_mov_b32 s{dst+3}, 0x00020000")


def kernel_head(a, name):
    a.raw(f".globl {name}")
    a.raw(".p2align 8")
    a.raw(f".type {name},@function")
    a.lab(name)


def kernel_desc(name, vgpr, sgpr=102):
    acc = (vgpr + 3) // 4 * 4
    return f""".amdhsa_kernel {name}
  .amdhsa_next_free_vgpr {vgpr}
  .amdhsa_next_free_sgpr {sgpr}
  .amdhsa_accum_offset {acc}
  .amdhsa_group_segment_fixed_size 0
  .amdhsa_kernarg_size 104
  .amdhsa_user_sgpr_count 2
  .amdhsa_user_sgpr_kernarg_segment_ptr 1
  .amdhsa_system_sgpr_workgroup_id_x 1
.end_amdhsa_kernel
"""


def xgroup_reduce(a, regs, tmps, op):
    for r, t in zip(regs, tmps):
        a(f"v_mov_b32 v{t}, v{r}")
    if len(regs) < 2:
        a.nop(2)
    else:
        a.nop(1)
    for r, t in zip(regs, tmps):
        a(f"v_permlane16_swap_b32 v{r}, v{t}")
    a.nop(1)
    for r, t in zip(regs, tmps):
        a(f"{op} v{r}, v{r}, v{t}")
    for r, t in zip(regs, tmps):
        a(f"v_mov_b32 v{t}, v{r}")
    if len(regs) < 2:
        a.nop(2)
    else:
        a.nop(1)
    for r, t in zip(regs, tmps):
        a(f"v_permlane32_swap_b32 v{r}, v{t}")
    a.nop(1)
    for r, t in zip(regs, tmps):
        a(f"{op} v{r}, v{r}, v{t}")


PREF = int(os.environ.get("PREF", "0"))


def k0_prefetch(a):
    if not PREF:
        return 0
    a("s_load_dwordx2 s[40:41], s[0:1], 8")
    a("s_load_dwordx2 s[42:43], s[0:1], 24")
    a("s_load_dwordx2 s[44:45], s[0:1], 40")
    a("s_load_dwordx2 s[46:47], s[0:1], 48")
    a("s_load_dwordx2 s[48:49], s[0:1], 56")
    a("v_lshlrev_b32 v130, 4, v0")
    a("s_waitcnt lgkmcnt(0)")
    n = 0
    for ptr, tot in ((40, 512*3072), (42, 512*1024), (44, 512*2752), (46, 512*2752), (48, 1376*1024)):
        per = tot // 256
        srd(a, 52, ptr, 0, tot)
        a(f"s_mul_i32 s56, s2, {per}")
        for r in range((per + 4095) // 4096):
            a(f"buffer_load_dwordx4 v[{132+4*(n%4)}:{135+4*(n%4)}], v130, s[52:55], s56 offen offset:{0}" if r == 0 else f"s_add_u32 s56, s56, 4096")
            if r:
                a(f"buffer_load_dwordx4 v[{132+4*(n%4)}:{135+4*(n%4)}], v130, s[52:55], s56 offen")
            n += 1
    return n

def gen_k0(a):
    name = "k0_kernel"
    kernel_head(a, name)
    a("s_cmp_ge_u32 s2, 256")
    a("s_cbranch_scc1 K0_END")
    a("s_load_dwordx2 s[4:5], s[0:1], 0")
    a("s_load_dwordx2 s[6:7], s[0:1], 64")
    a("s_load_dwordx2 s[32:33], s[0:1], 72")
    a("s_load_dwordx2 s[34:35], s[0:1], 96")
    a("s_waitcnt lgkmcnt(0)")
    a("s_cmp_ge_u32 s2, 192")
    a("s_cbranch_scc1 K0_LN")
    srd(a, 8, 32, 0, 512 * 6144)
    srd(a, 12, 6, 0, 1024)
    srd(a, 16, 34, WS_MODP, 4 * 3072 * 4)
    a("s_and_b32 s20, s2, 3")
    a("s_lshr_b32 s21, s2, 2")
    a("v_and_b32 v1, 7, v0")
    a("v_lshrrev_b32 v2, 3, v0")
    a("s_movk_i32 s22, 6144")
    a("v_mul_lo_u32 v3, v2, s22")
    a("v_lshl_add_u32 v3, v1, 4, v3")
    a("v_lshlrev_b32 v4, 1, v2")
    a("s_mul_i32 s23, s20, 128*6144")
    a("s_lshl_b32 s24, s21, 7")
    a("s_add_u32 s23, s23, s24")
    a("s_lshl_b32 s25, s20, 8")
    for i in range(4):
        a(f"buffer_load_ushort v{8+i}, v4, s[12:15], s25 offen offset:{i*64}")
    for i in range(4):
        a(f"s_add_u32 s26, s23, {i*32*6144}")
        a(f"buffer_load_dwordx4 v[{16+4*i}:{19+4*i}], v3, s[8:11], s26 offen")
    NP = k0_prefetch(a)
    for j in range(8):
        a(f"v_mov_b32 v{40+j}, 0")
    a(f"s_waitcnt vmcnt({4+NP})")
    for i in range(4):
        a(f"v_lshlrev_b32 v{8+i}, 16, v{8+i}")
    for i in range(4):
        a(f"v_mul_f32 v{12+i}, 0xbfb8aa3b, v{8+i}")
    for i in range(4):
        a(f"v_exp_f32 v{12+i}, v{12+i}")
    a.nop(1)
    for i in range(4):
        a(f"v_add_f32 v{12+i}, 1.0, v{12+i}")
    for i in range(4):
        a(f"v_rcp_f32 v{12+i}, v{12+i}")
    a.nop(1)
    for i in range(4):
        a(f"v_mul_f32 v{8+i}, v{8+i}, v{12+i}")
    for i in range(4):
        a(f"v_cvt_pk_bf16_f32 v{8+i}, v{8+i}, v{8+i}")
    for i in range(4):
        a(f"v_lshlrev_b32 v{8+i}, 16, v{8+i}")
    for i in range(4):
        a(f"s_waitcnt vmcnt({3-i+NP})")
        for d in range(4):
            w = 16 + 4 * i + d
            a(f"v_lshlrev_b32 v32, 16, v{w}")
            a(f"v_and_b32 v33, 0xffff0000, v{w}")
            a(f"v_fmac_f32 v{40+2*d}, v{8+i}, v32")
            a(f"v_fmac_f32 v{41+2*d}, v{8+i}, v33")
    a("v_lshlrev_b32 v5, 8, v2")
    a("v_lshl_add_u32 v5, v1, 5, v5")
    a("ds_write_b128 v5, v[40:43]")
    a("ds_write_b128 v5, v[44:47] offset:16")
    a("s_waitcnt lgkmcnt(0)")
    a("s_barrier")
    a("v_cmp_gt_u32 vcc, 64, v0")
    a("s_and_saveexec_b64 s[28:29], vcc")
    a("s_cbranch_execz K0_END")
    a("v_lshlrev_b32 v5, 2, v0")
    for r in range(32):
        a(f"ds_read_b32 v{8+r}, v5 offset:{r*256}")
    a("s_waitcnt lgkmcnt(0)")
    for st in (16, 8, 4, 2, 1):
        for r in range(st):
            a(f"v_add_f32 v{8+r}, v{8+r}, v{8+r+st}")
    a("s_mul_i32 s26, s20, 3072*4")
    a("s_lshl_b32 s27, s21, 8")
    a("s_add_u32 s26, s26, s27")
    a("buffer_store_dword v8, v5, s[16:19], s26 offen")
    a("s_branch K0_END")
    a.lab("K0_LN")
    srd(a, 8, 4, 0, 2048 * 1024)
    srd(a, 12, 34, WS_XHAT, 2048 * 1024)
    srd(a, 16, 34, WS_KV, 32 * 544 * 4)
    a("s_sub_u32 s20, s2, 192")
    a("s_lshl_b32 s21, s20, 15")
    a("v_mov_b32 v4, 0")
    a("v_mov_b32 v5, 0")
    a("v_mov_b32 v6, 0")
    a("v_mov_b32 v7, 0")
    a("v_lshlrev_b32 v1, 4, v0")
    a("s_mul_i32 s22, s20, 1088")
    a("v_cmp_gt_u32 vcc, 68, v0")
    a("s_and_saveexec_b64 s[28:29], vcc")
    a("buffer_store_dwordx4 v[4:7], v1, s[16:19], s22 offen")
    a("s_mov_b64 exec, s[28:29]")
    a("v_and_b32 v1, 63, v0")
    a("v_lshrrev_b32 v2, 6, v0")
    a("v_lshlrev_b32 v2, 13, v2")
    a("v_lshl_add_u32 v1, v1, 4, v2")
    a("v_add_u32 v2, 4096, v1")
    for i in range(8):
        vo = 1 if i < 4 else 2
        a(f"buffer_load_dwordx4 v[{16+4*i}:{19+4*i}], v{vo}, s[8:11], s21 offen offset:{(i&3)*1024}")
    NP = k0_prefetch(a)
    a(f"s_waitcnt vmcnt({NP})")
    for i in range(8):
        for d in range(4):
            a(f"v_lshlrev_b32 v{64+8*i+2*d}, 16, v{16+4*i+d}")
            a(f"v_and_b32 v{65+8*i+2*d}, 0xffff0000, v{16+4*i+d}")

    def allreduce(regs, tmps):
        for sh in (1, 2, 4, 8):
            for r in regs:
                a(f"v_add_f32_dpp v{r}, v{r}, v{r} row_ror:{sh} row_mask:0xf bank_mask:0xf")
        xgroup_reduce(a, regs, tmps, "v_add_f32")

    S = list(range(8, 16))
    T = list(range(48, 56))
    for i in range(8):
        b = 64 + 8 * i
        a(f"v_add_f32 v{S[i]}, v{b}, v{b+1}")
        for e in range(2, 8):
            a(f"v_add_f32 v{S[i]}, v{S[i]}, v{b+e}")
    allreduce(S, T)
    for i in range(8):
        a(f"v_mul_f32 v{S[i]}, 0x3b000000, v{S[i]}")
    for i in range(8):
        b = 64 + 8 * i
        for e in range(8):
            a(f"v_sub_f32 v{b+e}, v{b+e}, v{S[i]}")
    for i in range(8):
        b = 64 + 8 * i
        a(f"v_mul_f32 v{S[i]}, v{b}, v{b}")
        for e in range(1, 8):
            a(f"v_fmac_f32 v{S[i]}, v{b+e}, v{b+e}")
    allreduce(S, T)
    a("s_mov_b32 s23, 0x3727c5ac")
    for i in range(8):
        a(f"v_mov_b32 v{T[i]}, s23")
    for i in range(8):
        a(f"v_fmac_f32 v{T[i]}, 0x3b000000, v{S[i]}")
    for i in range(8):
        a(f"v_rsq_f32 v{T[i]}, v{T[i]}")
    a.nop(1)
    for i in range(8):
        b = 64 + 8 * i
        for e in range(8):
            a(f"v_mul_f32 v{b+e}, v{b+e}, v{T[i]}")
        for d in range(4):
            a(f"v_cvt_pk_bf16_f32 v{16+4*i+d}, v{b+2*d}, v{b+2*d+1}")
    for i in range(8):
        vo = 1 if i < 4 else 2
        a(f"buffer_store_dwordx4 v[{16+4*i}:{19+4*i}], v{vo}, s[12:15], s21 offen offset:{(i&3)*1024}")
    a.lab("K0_END")
    a("s_endpgm")
    return kernel_desc(name, 160)


def lane_decode(a, vl, vg, vr_, vq, vm):
    a(f"v_and_b32 v{vl}, 63, v0")
    a(f"v_lshrrev_b32 v{vg}, 4, v{vl}")
    a(f"v_bfe_u32 v{vr_}, v{vl}, 2, 2")
    a(f"v_and_b32 v{vq}, 3, v{vl}")
    a(f"v_and_b32 v{vm}, 15, v{vl}")


def dma_voffset(a, dst, vg, vr_, vq, tmp, stride, gmul):
    a(f"v_mul_u32_u24 v{dst}, {gmul}, v{vg}")
    a(f"v_add_u32 v{dst}, v{dst}, v{vr_}")
    a(f"s_mov_b32 s90, {stride}")
    a(f"v_mul_lo_u32 v{dst}, v{dst}, s90")
    a(f"v_and_b32 v{tmp}, 1, v{vg}")
    a(f"v_lshlrev_b32 v{tmp}, 1, v{tmp}")
    a(f"v_xor_b32 v{tmp}, v{tmp}, v{vq}")
    a(f"v_lshl_add_u32 v{dst}, v{tmp}, 4, v{dst}")


def tr_addr(a, dst, vg, vr_, vq, tmp, tprime_vgpr=None, tprime_const=0):
    a(f"v_and_b32 v{tmp}, 1, v{vg}")
    if tprime_vgpr is not None:
        a(f"v_xor_b32 v{tmp}, v{tmp}, v{tprime_vgpr}")
    elif tprime_const:
        a(f"v_xor_b32 v{tmp}, 1, v{tmp}")
    a(f"v_lshlrev_b32 v{dst}, 8, v{vg}")
    a(f"v_lshl_add_u32 v{dst}, v{vr_}, 6, v{dst}")
    a(f"v_lshl_add_u32 v{dst}, v{tmp}, 5, v{dst}")
    a(f"v_lshl_add_u32 v{dst}, v{vq}, 3, v{dst}")


K1_MOD = 96 * 1024
K1_PK = 100 * 1024
K1_RED = 116 * 1024
K1_LDS = K1_RED + 8 * 2176


def gen_k1(a):
    name = "k1_kernel"
    kernel_head(a, name)
    a("s_cmp_ge_u32 s2, 256")
    a("s_cbranch_scc1 K1_END")
    a.stamp(0)
    a("s_load_dwordx2 s[4:5], s[0:1], 8")
    a("s_load_dwordx2 s[6:7], s[0:1], 16")
    a("s_load_dwordx2 s[34:35], s[0:1], 96")
    a("v_lshrrev_b32 v1, 6, v0")
    a("s_nop 0")
    a("v_readfirstlane_b32 s36, v1")
    a("s_and_b32 s40, s2, 7")
    a("s_lshr_b32 s41, s2, 3")
    a("s_lshr_b32 s42, s40, 1")
    a("s_lshl_b32 s42, s42, 2")
    a("s_lshr_b32 s43, s41, 3")
    a("s_add_u32 s42, s42, s43")
    a("s_and_b32 s43, s40, 1")
    a("s_lshl_b32 s43, s43, 3")
    a("s_and_b32 s44, s41, 7")
    a("s_add_u32 s43, s43, s44")
    a("s_and_b32 s37, s36, 3")
    a("s_lshr_b32 s38, s36, 2")
    a("s_waitcnt lgkmcnt(0)")
    srd(a, 8, 4, 0, 512 * 3072)
    srd(a, 12, 34, WS_XHAT, 2048 * 1024)
    srd(a, 16, 34, WS_MODP, 4 * 3072 * 4)
    srd(a, 20, 6, 0, 32 * 512)
    srd(a, 24, 34, WS_PHIQ, 2048 * 2048)
    srd(a, 28, 34, WS_KV, 32 * 544 * 4)
    srd(a, 48, 34, WS_MODF, 3072 * 4)
    VL, VG, VRR, VQ, VM = 1, 2, 3, 4, 5
    lane_decode(a, VL, VG, VRR, VQ, VM)
    a("v_lshlrev_b32 v6, 2, v0")
    for p in range(4):
        a(f"s_mov_b32 s45, {p*3072*4}")
        a(f"buffer_load_dword v{16+p}, v6, s[16:19], s45 offen")
        a(f"buffer_load_dword v{20+p}, v6, s[16:19], s45 offen offset:2048")
    a("s_lshl_b32 s45, s43, 1")
    a("s_add_u32 s45, s45, s38")
    a("s_mov_b32 s46, s45")
    a("s_lshl_b32 s45, s45, 9")
    a(f"v_lshlrev_b32 v7, 7, v{VG}")
    a(f"v_lshl_add_u32 v7, v{VM}, 1, v7")
    for j in range(4):
        a(f"buffer_load_ushort v{24+j}, v7, s[20:23], s45 offen offset:{j*32}")
    VDMA, VX = 8, 9
    dma_voffset(a, VDMA, VG, VRR, VQ, 10, 3072, 8)
    a(f"v_lshlrev_b32 v{VX}, 10, v{VM}")
    a(f"v_lshl_add_u32 v{VX}, v{VG}, 4, v{VX}")
    a("s_lshr_b32 s52, s36, 1")
    a("s_lshl_b32 s52, s52, 5")
    a("s_and_b32 s53, s36, 1")
    a("s_lshl_b32 s53, s53, 2")
    a("s_add_u32 s52, s52, s53")
    a("s_mul_i32 s52, s52, 3072")
    a("s_lshl_b32 s53, s43, 6")
    a("s_add_u32 s52, s52, s53")
    a("s_lshl_b32 s53, s36, 10")
    a("s_lshl_b32 s54, s42, 7")
    a("s_lshl_b32 s55, s37, 5")
    a("s_add_u32 s54, s54, s55")
    a("s_lshl_b32 s55, s54, 10")
    a("s_add_u32 s56, s55, 16384")
    XB = 64
    for p in range(4):
        for seg in range(3):
            a(f"s_add_u32 s57, s52, {p*393216 + seg*1024}")
            a(f"s_add_u32 s58, s53, {seg*32768 + p*8192}")
            a("s_mov_b32 m0, s58")
            a("s_nop 0")
            if os.environ.get("K1_NODMA"):
                a("s_nop 0")
            else:
                a(f"buffer_load_dwordx4 v{VDMA}, s[8:11], s57 offen lds")
        for c in range(4 * p, 4 * p + 4):
            for rt in range(2):
                b = XB + (rt * 16 + c) * 4
                if os.environ.get("K1_NOX"):
                    a("s_nop 0")
                else:
                    a(f"buffer_load_dwordx4 v[{b}:{b+3}], v{VX}, s[12:15], s{55+rt} offen offset:{c*64}")
    a.stamp(1)
    a("s_waitcnt vmcnt(48)")
    a("v_add_f32 v16, v16, v17")
    a("v_add_f32 v18, v18, v19")
    a("v_add_f32 v20, v20, v21")
    a("v_add_f32 v22, v22, v23")
    a("v_add_f32 v16, v16, v18")
    a("v_add_f32 v20, v20, v22")
    a("v_cvt_pk_bf16_f32 v16, v16, v20")
    a("v_and_b32 v20, 0xffff0000, v16")
    a("v_lshlrev_b32 v16, 16, v16")
    a("v_add_f32 v20, 1.0, v20")
    a("v_cvt_pk_bf16_f32 v20, v20, v20")
    a("v_lshlrev_b32 v20, 16, v20")
    a(f"v_add_u32 v6, {K1_MOD}, v6")
    a("ds_write_b32 v6, v20")
    a("ds_write_b32 v6, v16 offset:2048")
    a("s_cmp_ge_u32 s2, 4")
    a("s_cbranch_scc1 K1_NOFIN")
    a("v_lshlrev_b32 v11, 2, v0")
    a("s_lshl_b32 s45, s2, 11")
    a("s_add_u32 s45, s45, 4096")
    for p in range(4):
        a(f"s_add_u32 s57, s45, {p*3072*4}")
        a(f"buffer_load_dword v{12+p}, v11, s[16:19], s57 offen")
    a("s_waitcnt vmcnt(0)")
    a("v_add_f32 v12, v12, v13")
    a("v_add_f32 v14, v14, v15")
    a("v_add_f32 v12, v12, v14")
    a("v_cvt_pk_bf16_f32 v12, v12, v12")
    a("v_lshlrev_b32 v12, 16, v12")
    a("buffer_store_dword v12, v11, s[48:51], s45 offen")
    a.lab("K1_NOFIN")
    a("s_waitcnt vmcnt(44)")
    a("v_lshl_or_b32 v28, v25, 16, v24")
    a("v_lshl_or_b32 v29, v27, 16, v26")
    WPH = 28
    VTR = 10
    a("v_mov_b32 v11, s38")
    tr_addr(a, VTR, VG, VRR, VQ, 12, tprime_vgpr=11)
    a(f"v_add_u32 v11, 32768, v{VTR}")
    a(f"v_add_u32 v12, 65536, v{VTR}")
    VTRS = [10, 11, 12]
    VMODA = 13
    a(f"v_lshlrev_b32 v{VMODA}, 5, v{VG}")
    a(f"v_add_u32 v{VMODA}, {K1_MOD}, v{VMODA}")
    ACC = 192
    for i in range(24):
        a(f"v_mov_b32 v{ACC+i}, 0")
    AF = [216, 228]
    MD = [32, 48]
    TMP = 16

    def issue_reads(c, buf):
        m = MD[buf]
        a(f"ds_read_b128 v[{m}:{m+3}], v{VMODA} offset:{c*128}")
        a(f"ds_read_b128 v[{m+4}:{m+7}], v{VMODA} offset:{c*128+16}")
        a(f"ds_read_b128 v[{m+8}:{m+11}], v{VMODA} offset:{2048+c*128}")
        a(f"ds_read_b128 v[{m+12}:{m+15}], v{VMODA} offset:{2048+c*128+16}")
        f = AF[buf]
        for seg in range(3):
            for half in range(2):
                r = f + seg * 4 + half * 2
                a(f"ds_read_b64_tr_b16 v[{r}:{r+1}], v{VTRS[seg]} offset:{c*2048+half*1024}")

    def modulate(c, buf):
        m = MD[buf]
        for rt in range(2):
            b = XB + (rt * 16 + c) * 4
            for d in range(4):
                a(f"v_lshlrev_b32 v{TMP+2*d}, 16, v{b+d}")
                a(f"v_and_b32 v{TMP+2*d+1}, 0xffff0000, v{b+d}")
            for e in range(8):
                a(f"v_fma_f32 v{TMP+e}, v{TMP+e}, v{m+e}, v{m+8+e}")
            for d in range(4):
                a(f"v_cvt_pk_bf16_f32 v{b+d}, v{TMP+2*d}, v{TMP+2*d+1}")

    def mfmas(c, buf):
        f = AF[buf]
        for rt in range(2):
            b = XB + (rt * 16 + c) * 4
            for seg in range(3):
                d = ACC + (seg * 2 + rt) * 4
                fa = f + seg * 4
                if seg < 2:
                    a(f"v_mfma_f32_16x16x32_bf16 v[{d}:{d+3}], v[{fa}:{fa+3}], v[{b}:{b+3}], v[{d}:{d+3}]")
                else:
                    a(f"v_mfma_f32_16x16x32_bf16 v[{d}:{d+3}], v[{b}:{b+3}], v[{fa}:{fa+3}], v[{d}:{d+3}]")

    for p in range(4):
        a(f"s_waitcnt vmcnt({(3-p)*11}) lgkmcnt(0)")
        a("s_barrier")
        a.stamp(2+p)
        issue_reads(4 * p, 0)
        for ci in range(4):
            c = 4 * p + ci
            buf = ci & 1
            if ci < 3:
                issue_reads(c + 1, buf ^ 1)
                a("s_waitcnt lgkmcnt(10)")
            else:
                a("s_waitcnt lgkmcnt(0)")
            modulate(c, buf)
            a.nop(1)
            mfmas(c, buf)
    a.stamp(6)
    a.nop(8)
    QB = 32
    for t in range(4):
        d = ACC + t * 4
        a(f"v_cvt_pk_bf16_f32 v{QB+2*t}, v{d}, v{d+1}")
        a(f"v_cvt_pk_bf16_f32 v{QB+2*t+1}, v{d+2}, v{d+3}")
    VB = 40
    for rt in range(2):
        d = ACC + (4 + rt) * 4
        a(f"v_cvt_pk_bf16_f32 v{VB+2*rt}, v{d}, v{d+1}")
        a(f"v_cvt_pk_bf16_f32 v{VB+2*rt+1}, v{d+2}, v{d+3}")
    a.nop(2)
    P = 64
    for t in range(4):
        a(f"v_mfma_f32_16x16x16_bf16 v[{P+4*t}:{P+4*t+3}], v[{WPH}:{WPH+1}], v[{QB+2*t}:{QB+2*t+1}], 0")
    a.nop(8)
    for t in range(4):
        p = P + 4 * t
        a(f"v_cvt_pk_bf16_f32 v{p}, v{p}, v{p+1}")
        a(f"v_cvt_pk_bf16_f32 v{p+2}, v{p+2}, v{p+3}")
    for t in range(4):
        p = P + 4 * t
        a(f"v_and_b32 v{p+1}, 0xffff0000, v{p}")
        a(f"v_lshlrev_b32 v{p}, 16, v{p}")
        a(f"v_and_b32 v{p+3}, 0xffff0000, v{p+2}")
        a(f"v_lshlrev_b32 v{p+2}, 16, v{p+2}")
    MX = [80 + t for t in range(4)]
    MN = [84 + t for t in range(4)]
    TT = [88 + t for t in range(4)]
    for t in range(4):
        p = P + 4 * t
        a(f"v_max3_f32 v{MX[t]}, v{p}, v{p+1}, v{p+2}")
        a(f"v_min3_f32 v{MN[t]}, v{p}, v{p+1}, v{p+2}")
    for t in range(4):
        p = P + 4 * t
        a(f"v_max_f32 v{MX[t]}, v{MX[t]}, v{p+3}")
        a(f"v_min_f32 v{MN[t]}, v{MN[t]}, v{p+3}")
    xgroup_reduce(a, MX, TT, "v_max_f32")
    xgroup_reduce(a, MN, TT, "v_min_f32")
    a(f"s_mov_b32 s60, 0x{LOG2E:x}")
    for t in range(4):
        a(f"v_mul_f32 v{MX[t]}, s60, v{MX[t]}")
        a(f"v_mul_f32 v{MN[t]}, s60, v{MN[t]}")
    E = 96
    for t in range(4):
        p = P + 4 * t
        e = E + 8 * t
        for r in range(4):
            a(f"v_fma_f32 v{e+r}, v{p+r}, s60, -v{MX[t]}")
            a(f"v_fma_f32 v{e+4+r}, -v{p+r}, s60, v{MN[t]}")
    for t in range(4):
        e = E + 8 * t
        for r in range(8):
            a(f"v_exp_f32 v{e+r}, v{e+r}")
    a.nop(1)
    SP = [80 + t for t in range(4)]
    SN = [84 + t for t in range(4)]
    for t in range(4):
        e = E + 8 * t
        a(f"v_add_f32 v{SP[t]}, v{e}, v{e+1}")
        a(f"v_add_f32 v{SN[t]}, v{e+4}, v{e+5}")
    for t in range(4):
        e = E + 8 * t
        a(f"v_add_f32 v{SP[t]}, v{SP[t]}, v{e+2}")
        a(f"v_add_f32 v{SN[t]}, v{SN[t]}, v{e+6}")
    for t in range(4):
        e = E + 8 * t
        a(f"v_add_f32 v{SP[t]}, v{SP[t]}, v{e+3}")
        a(f"v_add_f32 v{SN[t]}, v{SN[t]}, v{e+7}")
    xgroup_reduce(a, SP + SN, TT + [92, 93, 94, 95], "v_add_f32")
    for t in range(4):
        a(f"v_rcp_f32 v{SP[t]}, v{SP[t]}")
        a(f"v_rcp_f32 v{SN[t]}, v{SN[t]}")
    a.nop(1)
    for t in range(4):
        e = E + 8 * t
        for r in range(4):
            a(f"v_mul_f32 v{e+r}, v{e+r}, v{SP[t]}")
            a(f"v_mul_f32 v{e+4+r}, v{e+4+r}, v{SN[t]}")
    PH = 128
    for t in range(4):
        e = E + 8 * t
        for d in range(4):
            a(f"v_cvt_pk_bf16_f32 v{PH+4*t+d}, v{e+2*d}, v{e+2*d+1}")
    a(f"v_lshlrev_b32 v14, 11, v{VM}")
    a(f"v_lshl_add_u32 v14, v{VG}, 4, v14")
    a("s_lshl_b32 s57, s54, 11")
    a("s_lshl_b32 s58, s46, 6")
    a("s_add_u32 s57, s57, s58")
    a("s_add_u32 s58, s57, 32768")
    a(f"buffer_store_dwordx4 v[{PH}:{PH+3}], v14, s[24:27], s57 offen")
    a(f"buffer_store_dwordx4 v[{PH+4}:{PH+7}], v14, s[24:27], s58 offen")
    a("s_lshl_b32 s57, s36, 11")
    a(f"s_add_u32 s57, s57, {K1_PK}")
    a(f"v_lshlrev_b32 v15, 6, v{VM}")
    a(f"v_lshl_add_u32 v15, v{VG}, 4, v15")
    a("v_add_u32 v15, s57, v15")
    a(f"ds_write_b128 v15, v[{PH+8}:{PH+11}]")
    a(f"ds_write_b128 v15, v[{PH+12}:{PH+15}] offset:1024")
    a(f"v_lshlrev_b32 v15, 8, v{VG}")
    a(f"v_lshl_add_u32 v15, v{VRR}, 6, v15")
    a(f"v_lshl_add_u32 v15, v{VQ}, 3, v15")
    a("v_add_u32 v15, s57, v15")
    a("s_waitcnt lgkmcnt(0)")
    KA = 144
    for ft in range(2):
        for rt in range(2):
            r = KA + ft * 4 + rt * 2
            a(f"ds_read_b64_tr_b16 v[{r}:{r+1}], v15 offset:{rt*1024+ft*32}")
    ONES = 152
    for i in range(4):
        a(f"v_mov_b32 v{ONES+i}, 0x3f803f80")
    a("s_waitcnt lgkmcnt(0)")
    a.nop(1)
    DK = 160
    for ft in range(2):
        a(f"v_mfma_f32_16x16x32_bf16 v[{DK+4*ft}:{DK+4*ft+3}], v[{KA+4*ft}:{KA+4*ft+3}], v[{VB}:{VB+3}], 0")
    for ft in range(2):
        a(f"v_mfma_f32_16x16x32_bf16 v[{DK+8+4*ft}:{DK+8+4*ft+3}], v[{KA+4*ft}:{KA+4*ft+3}], v[{ONES}:{ONES+3}], 0")
    a("s_mul_i32 s57, s36, 2176")
    a(f"s_add_u32 s57, s57, {K1_RED}")
    a(f"v_lshlrev_b32 v15, 7, v{VM}")
    a(f"v_lshl_add_u32 v15, v{VG}, 4, v15")
    a("v_add_u32 v15, s57, v15")
    a(f"v_lshlrev_b32 v14, 4, v{VG}")
    a("v_add_u32 v14, s57, v14")
    a.nop(6)
    a(f"ds_write_b128 v15, v[{DK}:{DK+3}]")
    a(f"ds_write_b128 v15, v[{DK+4}:{DK+7}] offset:64")
    a(f"ds_write_b128 v14, v[{DK+8}:{DK+11}] offset:2048")
    a(f"ds_write_b128 v14, v[{DK+12}:{DK+15}] offset:2112")
    a("s_waitcnt lgkmcnt(0)")
    a("s_barrier")
    a("v_and_b32 v14, 255, v0")
    a("v_lshlrev_b32 v14, 2, v14")
    a("s_mul_i32 s57, s38, 4*2176")
    a(f"s_add_u32 s57, s57, {K1_RED}")
    a("v_add_u32 v15, s57, v14")
    for e in range(3):
        for m in range(4):
            a(f"ds_read_b32 v{32+e*4+m}, v15 offset:{m*2176+e*1024}")
    a("s_waitcnt lgkmcnt(0)")
    for e in range(3):
        a(f"v_add_f32 v{32+e*4}, v{32+e*4}, v{33+e*4}")
        a(f"v_add_f32 v{34+e*4}, v{34+e*4}, v{35+e*4}")
    for e in range(3):
        a(f"v_add_f32 v{32+e*4}, v{32+e*4}, v{34+e*4}")
    a("s_mul_i32 s57, s46, 2176")
    a("buffer_atomic_add_f32 v32, v14, s[28:31], s57 offen")
    a("buffer_atomic_add_f32 v36, v14, s[28:31], s57 offen offset:1024")
    a("v_cmp_gt_u32 vcc, 128, v14")
    a("s_and_saveexec_b64 s[60:61], vcc")
    a("s_cbranch_execz K1_END")
    a("buffer_atomic_add_f32 v40, v14, s[28:31], s57 offen offset:2048")
    a.lab("K1_END")
    a.stamp(7)
    a.stamp_out(8, 36)
    a("s_endpgm")
    return kernel_desc(name, 240)


K2_KVB = 64 * 1024
K2_ZB = 96 * 1024
K2_LDS = 98 * 1024


def gen_k2(a):
    name = "k2_kernel"
    kernel_head(a, name)
    a("s_cmp_ge_u32 s2, 256")
    a("s_cbranch_scc1 K2_END")
    a.stamp(0)
    a("s_load_dwordx2 s[4:5], s[0:1], 24")
    a("s_load_dwordx2 s[6:7], s[0:1], 0")
    a("s_load_dwordx2 s[34:35], s[0:1], 96")
    a("v_lshrrev_b32 v1, 6, v0")
    a("s_nop 0")
    a("v_readfirstlane_b32 s36, v1")
    a("s_and_b32 s40, s2, 7")
    a("s_lshr_b32 s41, s2, 3")
    a("s_lshl_b32 s42, s40, 2")
    a("s_lshr_b32 s43, s41, 3")
    a("s_add_u32 s42, s42, s43")
    a("s_and_b32 s43, s41, 7")
    a("s_waitcnt lgkmcnt(0)")
    srd(a, 8, 4, 0, 512 * 1024)
    srd(a, 12, 6, 0, 2048 * 1024)
    srd(a, 16, 34, WS_KV, 32 * 544 * 4)
    srd(a, 20, 34, WS_PHIQ, 2048 * 2048)
    srd(a, 24, 34, WS_X1, 2048 * 1024)
    srd(a, 28, 34, WS_STATS, 2048 * 64)
    srd(a, 48, 34, WS_MODF, 3072 * 4)
    VL, VG, VRR, VQ, VM = 1, 2, 3, 4, 5
    lane_decode(a, VL, VG, VRR, VQ, VM)
    a("v_and_b32 v6, 127, v0")
    a("v_lshrrev_b32 v7, 7, v0")
    a("s_movk_i32 s45, 2176")
    a("v_mul_lo_u32 v8, v7, s45")
    a("v_lshl_add_u32 v8, v6, 4, v8")
    KT = 192
    for i in range(16):
        a(f"s_mov_b32 s46, {i*2*2176}")
        a(f"buffer_load_dwordx4 v[{KT+4*i}:{KT+4*i+3}], v8, s[16:19], s46 offen")
    a("v_lshrrev_b32 v9, 3, v0")
    a("v_mul_lo_u32 v9, v9, s45")
    a("v_and_b32 v10, 7, v0")
    a("v_lshl_add_u32 v9, v10, 4, v9")
    a("buffer_load_dwordx4 v[12:15], v9, s[16:19], 0 offen offset:2048")
    VDMA, VP = 16, 17
    dma_voffset(a, VDMA, VG, VRR, VQ, 18, 1024, 4)
    a(f"v_lshlrev_b32 v{VP}, 11, v{VM}")
    a(f"v_lshl_add_u32 v{VP}, v{VG}, 4, v{VP}")
    a("s_and_b32 s52, s36, 1")
    a("s_lshl_b32 s52, s52, 14")
    a("s_lshr_b32 s53, s36, 1")
    a("s_lshl_b32 s54, s53, 6")
    a("s_add_u32 s52, s52, s54")
    a("s_lshl_b32 s54, s43, 7")
    a("s_add_u32 s52, s52, s54")
    a("s_lshl_b32 s53, s53, 15")
    a("s_and_b32 s54, s36, 1")
    a("s_lshl_b32 s54, s54, 10")
    a("s_add_u32 s53, s53, s54")
    a("s_lshl_b32 s54, s42, 6")
    a("s_lshl_b32 s55, s36, 4")
    a("s_add_u32 s54, s54, s55")
    a("s_lshl_b32 s55, s54, 11")
    PQ = 64
    for p in range(4):
        for c in range(4 * p, 4 * p + 4):
            a(f"s_add_u32 s57, s52, {c*32*1024}")
            a(f"s_add_u32 s58, s53, {c*2048}")
            a("s_mov_b32 m0, s58")
            a("s_nop 0")
            a(f"buffer_load_dwordx4 v{VDMA}, s[8:11], s57 offen lds")
        for h in range(8 * p, 8 * p + 8):
            b = PQ + 4 * h
            a(f"buffer_load_dwordx4 v[{b}:{b+3}], v{VP}, s[20:23], s55 offen offset:{h*64}")
    a.stamp(1)
    a("s_waitcnt vmcnt(48)")
    a("v_lshlrev_b32 v7, 10, v7")
    a("v_lshl_add_u32 v7, v6, 3, v7")
    a(f"v_add_u32 v7, {K2_KVB}, v7")
    for i in range(16):
        k = KT + 4 * i
        a(f"v_cvt_pk_bf16_f32 v{k}, v{k}, v{k+1}")
        a(f"v_cvt_pk_bf16_f32 v{k+1}, v{k+2}, v{k+3}")
        a(f"ds_write_b64 v7, v[{k}:{k+1}] offset:{i*2048}")
    a("v_cvt_pk_bf16_f32 v12, v12, v13")
    a("v_cvt_pk_bf16_f32 v13, v14, v15")
    a("v_lshlrev_b32 v9, 3, v0")
    a(f"v_add_u32 v9, {K2_ZB}, v9")
    a("ds_write_b64 v9, v[12:13]")
    a(f"v_lshlrev_b32 v18, 10, v{VM}")
    a(f"v_lshl_add_u32 v18, v{VG}, 3, v18")
    a("s_lshl_b32 s56, s54, 10")
    a("s_lshl_b32 s57, s43, 7")
    a("s_add_u32 s56, s56, s57")
    XR = 224
    GA = 232
    a(f"v_lshlrev_b32 v19, 4, v{VG}")
    a("s_lshl_b32 s57, s43, 8")
    a("s_add_u32 s57, s57, 4096")
    a("s_waitcnt lgkmcnt(0)")
    for t in range(4):
        a(f"buffer_load_dwordx2 v[{XR+2*t}:{XR+2*t+1}], v18, s[12:15], s56 offen offset:{t*32}")
    for t in range(4):
        a(f"buffer_load_dwordx4 v[{GA+4*t}:{GA+4*t+3}], v19, s[48:51], s57 offen offset:{t*64}")
    VT0, VT1 = 20, 21
    tr_addr(a, VT0, VG, VRR, VQ, 22, tprime_const=0)
    tr_addr(a, VT1, VG, VRR, VQ, 22, tprime_const=1)
    VKV, VZ = 22, 23
    a(f"v_lshlrev_b32 v{VKV}, 6, v{VM}")
    a(f"v_lshl_add_u32 v{VKV}, v{VG}, 4, v{VKV}")
    a(f"v_add_u32 v{VKV}, {K2_KVB}, v{VKV}")
    a(f"v_lshlrev_b32 v{VZ}, 4, v{VG}")
    a(f"v_add_u32 v{VZ}, {K2_ZB}, v{VZ}")
    ACC = 24
    for i in range(16):
        a(f"v_mov_b32 v{ACC+i}, 0")
    KF = 40
    ND = 192
    OB = [56, 60]
    WF = 208
    a("s_mov_b32 s60, 0x358637bd")

    def kv_reads(j):
        for hh in range(2):
            h = 2 * j + hh
            a(f"ds_read_b128 v[{KF+8*hh}:{KF+8*hh+3}], v{VKV} offset:{h*1024}")
            a(f"ds_read_b128 v[{KF+8*hh+4}:{KF+8*hh+7}], v{VZ} offset:{h*64}")

    def o_mfma(j):
        for hh in range(2):
            h = 2 * j + hh
            b = PQ + 4 * h
            a(f"v_mfma_f32_16x16x32_bf16 v[{ND+8*hh}:{ND+8*hh+3}], v[{KF+8*hh}:{KF+8*hh+3}], v[{b}:{b+3}], 0")
            a(f"v_mfma_f32_16x16x32_bf16 v[{ND+8*hh+4}:{ND+8*hh+7}], v[{KF+8*hh+4}:{KF+8*hh+7}], v[{b}:{b+3}], 0")

    def o_valu(j):
        ob = OB[j & 1]
        for hh in range(2):
            n = ND + 8 * hh
            a(f"v_add_f32 v{n+4}, s60, v{n+4}")
        for hh in range(2):
            n = ND + 8 * hh
            a(f"v_rcp_f32 v{n+4}, v{n+4}")
        a.nop(1)
        for hh in range(2):
            n = ND + 8 * hh
            for r in range(4):
                a(f"v_mul_f32 v{n+r}, v{n+r}, v{n+4}")
        for hh in range(2):
            n = ND + 8 * hh
            a(f"v_cvt_pk_bf16_f32 v{ob+2*hh}, v{n}, v{n+1}")
            a(f"v_cvt_pk_bf16_f32 v{ob+2*hh+1}, v{n+2}, v{n+3}")

    def wo_reads(j):
        for t in range(4):
            seg, tp = t >> 1, t & 1
            va = VT1 if tp else VT0
            for half in range(2):
                r = WF + 4 * t + 2 * half
                a(f"ds_read_b64_tr_b16 v[{r}:{r+1}], v{va} offset:{seg*32768+j*2048+half*1024}")

    def main_mfma(j):
        ob = OB[j & 1]
        for t in range(4):
            d = ACC + 4 * t
            a(f"v_mfma_f32_16x16x32_bf16 v[{d}:{d+3}], v[{WF+4*t}:{WF+4*t+3}], v[{ob}:{ob+3}], v[{d}:{d+3}]")

    for j in range(16):
        if j % 4 == 0:
            p = j // 4
            a(f"s_waitcnt vmcnt({(3-p)*12+8}) lgkmcnt(0)")
            a("s_barrier")
            a.stamp(2+p)
        kv_reads(j)
        wo_reads(j)
        a("s_waitcnt lgkmcnt(8)")
        o_mfma(j)
        a.nop(8)
        o_valu(j)
        a("s_waitcnt lgkmcnt(0)")
        a.nop(1)
        main_mfma(j)
    a.stamp(6)
    a("s_waitcnt vmcnt(0)")
    a.nop(8)
    X = 64
    for t in range(4):
        for d in range(2):
            a(f"v_lshlrev_b32 v{X+4*t+2*d}, 16, v{XR+2*t+d}")
            a(f"v_and_b32 v{X+4*t+2*d+1}, 0xffff0000, v{XR+2*t+d}")
    for t in range(4):
        d = ACC + 4 * t
        a(f"v_cvt_pk_bf16_f32 v{d}, v{d}, v{d+1}")
        a(f"v_cvt_pk_bf16_f32 v{d+2}, v{d+2}, v{d+3}")
    for t in range(4):
        d = ACC + 4 * t
        a(f"v_and_b32 v{d+1}, 0xffff0000, v{d}")
        a(f"v_lshlrev_b32 v{d}, 16, v{d}")
        a(f"v_and_b32 v{d+3}, 0xffff0000, v{d+2}")
        a(f"v_lshlrev_b32 v{d+2}, 16, v{d+2}")
    for i in range(16):
        a(f"v_mul_f32 v{ACC+i}, v{ACC+i}, v{GA+i}")
    for t in range(4):
        d = ACC + 4 * t
        a(f"v_cvt_pk_bf16_f32 v{d}, v{d}, v{d+1}")
        a(f"v_cvt_pk_bf16_f32 v{d+2}, v{d+2}, v{d+3}")
    for t in range(4):
        d = ACC + 4 * t
        a(f"v_and_b32 v{d+1}, 0xffff0000, v{d}")
        a(f"v_lshlrev_b32 v{d}, 16, v{d}")
        a(f"v_and_b32 v{d+3}, 0xffff0000, v{d+2}")
        a(f"v_lshlrev_b32 v{d+2}, 16, v{d+2}")
    for i in range(16):
        a(f"v_add_f32 v{X+i}, v{X+i}, v{ACC+i}")
    PK = 80
    for t in range(4):
        a(f"v_cvt_pk_bf16_f32 v{PK+2*t}, v{X+4*t}, v{X+4*t+1}")
        a(f"v_cvt_pk_bf16_f32 v{PK+2*t+1}, v{X+4*t+2}, v{X+4*t+3}")
    for t in range(4):
        for d in range(2):
            a(f"v_lshlrev_b32 v{X+4*t+2*d}, 16, v{PK+2*t+d}")
            a(f"v_and_b32 v{X+4*t+2*d+1}, 0xffff0000, v{PK+2*t+d}")
    a(f"v_add_f32 v90, v{X}, v{X+1}")
    for i in range(2, 16):
        a(f"v_add_f32 v90, v90, v{X+i}")
    xgroup_reduce(a, [90], [91], "v_add_f32")
    a("v_mul_f32 v90, 0x3c800000, v90")
    for i in range(16):
        a(f"v_sub_f32 v{X+i}, v{X+i}, v90")
    a(f"v_mul_f32 v91, v{X}, v{X}")
    for i in range(1, 16):
        a(f"v_fmac_f32 v91, v{X+i}, v{X+i}")
    xgroup_reduce(a, [91], [92], "v_add_f32")
    a(f"v_permlane16_swap_b32 v{PK}, v{PK+2}")
    a(f"v_permlane16_swap_b32 v{PK+1}, v{PK+3}")
    a(f"v_permlane16_swap_b32 v{PK+4}, v{PK+6}")
    a(f"v_permlane16_swap_b32 v{PK+5}, v{PK+7}")
    a(f"v_and_b32 v92, 1, v{VG}")
    a(f"v_lshrrev_b32 v93, 1, v{VG}")
    a(f"v_lshlrev_b32 v94, 10, v{VM}")
    a("v_lshl_add_u32 v94, v92, 5, v94")
    a("v_lshl_add_u32 v94, v93, 4, v94")
    a(f"buffer_store_dwordx4 v[{PK}:{PK+3}], v94, s[24:27], s56 offen")
    a(f"buffer_store_dwordx4 v[{PK+4}:{PK+7}], v94, s[24:27], s56 offen offset:64")
    a(f"v_lshlrev_b32 v95, 6, v{VM}")
    a("s_lshl_b32 s57, s54, 6")
    a("s_lshl_b32 s58, s43, 3")
    a("s_add_u32 s57, s57, s58")
    a(f"v_cmp_gt_u32 vcc, 16, v{VL}")
    a("s_and_saveexec_b64 s[60:61], vcc")
    a("buffer_store_dwordx2 v[90:91], v95, s[28:31], s57 offen")
    a.lab("K2_END")
    a.stamp(7)
    a.stamp_out(8, 36)
    a("s_endpgm")
    return kernel_desc(name, 256)


K3_MOD = 144 * 1024
K3_LDS = 148 * 1024


def gen_k3(a):
    name = "k3_kernel"
    kernel_head(a, name)
    a("s_cmp_ge_u32 s2, 240")
    a("s_cbranch_scc1 K3_END")
    a.stamp(0)
    a("s_load_dwordx2 s[4:5], s[0:1], 40")
    a("s_load_dwordx2 s[6:7], s[0:1], 48")
    a("s_load_dwordx2 s[34:35], s[0:1], 96")
    a("v_lshrrev_b32 v1, 6, v0")
    a("s_nop 0")
    a("v_readfirstlane_b32 s36, v1")
    a("s_and_b32 s40, s2, 7")
    a("s_lshr_b32 s41, s2, 3")
    a("s_lshl_b32 s42, s40, 1")
    a("s_cmp_ge_u32 s41, 15")
    a("s_cselect_b32 s44, 1, 0")
    a("s_add_u32 s42, s42, s44")
    a("s_mul_i32 s44, s44, 15")
    a("s_sub_u32 s43, s41, s44")
    a("s_and_b32 s37, s36, 3")
    a("s_lshr_b32 s38, s36, 2")
    a("s_waitcnt lgkmcnt(0)")
    srd(a, 8, 4, 0, 512 * 2752)
    srd(a, 12, 6, 0, 512 * 2752)
    srd(a, 16, 34, WS_X1, 2048 * 1024)
    srd(a, 20, 34, WS_STATS, 2048 * 64)
    srd(a, 24, 34, WS_HH, 2048 * 2752)
    srd(a, 48, 34, WS_MODF, 3072 * 4)
    VL, VG, VRR, VQ, VM = 1, 2, 3, 4, 5
    lane_decode(a, VL, VG, VRR, VQ, VM)
    a("v_lshlrev_b32 v6, 2, v0")
    a("s_movk_i32 s45, 6144")
    a("buffer_load_dword v16, v6, s[48:51], s45 offen")
    a("buffer_load_dword v17, v6, s[48:51], s45 offen offset:2048")
    a("s_lshl_b32 s54, s42, 7")
    a("s_lshl_b32 s55, s37, 5")
    a("s_add_u32 s54, s54, s55")
    a(f"v_lshlrev_b32 v7, 6, v{VM}")
    a("s_lshl_b32 s45, s54, 6")
    ST = 192
    for rt in range(2):
        for q in range(4):
            a(f"buffer_load_dwordx4 v[{ST+16*rt+4*q}:{ST+16*rt+4*q+3}], v7, s[20:23], s45 offen offset:{rt*1024+q*16}")
    VDMA, VX = 8, 9
    dma_voffset(a, VDMA, VG, VRR, VQ, 10, 2752, 8)
    a(f"v_lshlrev_b32 v{VX}, 10, v{VM}")
    a(f"v_lshl_add_u32 v{VX}, v{VG}, 4, v{VX}")
    a("s_lshr_b32 s52, s36, 1")
    a("s_lshl_b32 s52, s52, 5")
    a("s_and_b32 s53, s36, 1")
    a("s_lshl_b32 s53, s53, 2")
    a("s_add_u32 s52, s52, s53")
    a("s_mul_i32 s52, s52, 2752")
    a("s_mul_i32 s53, s43, 192")
    a("s_add_u32 s52, s52, s53")
    a("s_lshl_b32 s53, s36, 10")
    a("s_lshl_b32 s55, s54, 10")
    a("s_add_u32 s56, s55, 16384")
    XB = 64

    def issue_quarter(qt):
        slot = qt % 3
        for seg in range(6):
            S = 8 if seg < 3 else 12
            a(f"s_add_u32 s57, s52, {qt*128*2752 + (seg%3)*64}")
            a(f"s_add_u32 s58, s53, {slot*49152 + seg*8192}")
            a("s_mov_b32 m0, s58")
            a("s_nop 0")
            a(f"buffer_load_dwordx4 v{VDMA}, s[{S}:{S+3}], s57 offen lds")
        for cl in range(4):
            for rt in range(2):
                b = XB + ((slot * 2 + rt) * 4 + cl) * 4
                a(f"buffer_load_dwordx4 v[{b}:{b+3}], v{VX}, s[16:19], s{55+rt} offen offset:{(qt*4+cl)*64}")

    for qt in range(3):
        issue_quarter(qt)
    a.stamp(1)
    a("s_waitcnt vmcnt(50)")
    a("v_add_f32 v17, 1.0, v17")
    a("v_cvt_pk_bf16_f32 v17, v17, v17")
    a("v_lshlrev_b32 v17, 16, v17")
    a(f"v_add_u32 v6, {K3_MOD}, v6")
    a("ds_write_b32 v6, v17")
    a("ds_write_b32 v6, v16 offset:2048")
    a("s_waitcnt vmcnt(42)")
    RS = [10, 11]
    NM = [12, 13]
    for rt in range(2):
        s = ST + 16 * rt
        a(f"v_add_f32 v14, v{s}, v{s+2}")
        for i in range(2, 8):
            a(f"v_add_f32 v14, v14, v{s+2*i}")
        a("v_mul_f32 v14, 0x3e000000, v14")
        a(f"v_add_f32 v15, v{s+1}, v{s+3}")
        for i in range(2, 8):
            a(f"v_add_f32 v15, v15, v{s+2*i+1}")
        for i in range(8):
            a(f"v_sub_f32 v{s+2*i}, v{s+2*i}, v14")
        a(f"v_mul_f32 v{s+1}, v{s}, v{s}")
        for i in range(1, 8):
            a(f"v_fmac_f32 v{s+1}, v{s+2*i}, v{s+2*i}")
        a(f"v_fmac_f32 v15, 0x42800000, v{s+1}")
        a("s_mov_b32 s45, 0x3727c5ac")
        a(f"v_mov_b32 v{RS[rt]}, s45")
        a(f"v_fmac_f32 v{RS[rt]}, 0x3b000000, v15")
        a(f"v_rsq_f32 v{RS[rt]}, v{RS[rt]}")
        a.nop(1)
        a(f"v_mul_f32 v{NM[rt]}, v14, v{RS[rt]}")
        a(f"v_sub_f32 v{NM[rt]}, 0, v{NM[rt]}")
    VT = [14, 15, 16]
    tr_addr(a, 17, VG, VRR, VQ, 18, tprime_const=0)
    tr_addr(a, 19, VG, VRR, VQ, 18, tprime_const=1)
    a("s_cmp_eq_u32 s38, 0")
    a("s_cselect_b64 s[60:61], -1, 0")
    a("v_add_u32 v20, 8192, v19")
    a("v_cndmask_b32 v14, v20, v17, s[60:61]")
    a("v_add_u32 v20, 16384, v17")
    a("v_cndmask_b32 v15, v20, v19, s[60:61]")
    a("v_add_u32 v20, 16384, v19")
    a("v_add_u32 v21, 8192, v17")
    a("v_cndmask_b32 v16, v20, v21, s[60:61]")
    VMODA = 17
    a(f"v_lshlrev_b32 v{VMODA}, 5, v{VG}")
    a(f"v_add_u32 v{VMODA}, {K3_MOD}, v{VMODA}")
    ACC = 160
    for i in range(48):
        a(f"v_mov_b32 v{ACC+i}, 0")
    AF = [208, 232]
    MD = 32
    TMP = 48

    def a_reads(c, buf):
        slot = (c // 4) % 3
        cl = c % 4
        f = AF[buf]
        for gu in range(2):
            for tt in range(3):
                for half in range(2):
                    r = f + (gu * 3 + tt) * 4 + half * 2
                    off = slot * 49152 + gu * 24576 + cl * 2048 + half * 1024
                    if off < 65536:
                        a(f"ds_read_b64_tr_b16 v[{r}:{r+1}], v{VT[tt]} offset:{off}")
                    else:
                        a(f"ds_read_b64_tr_b16 v[{r}:{r+1}], v{VTH[tt]} offset:{off-65536}")

    VTH = [18, 19, 20]
    for tt in range(3):
        a(f"v_add_u32 v{VTH[tt]}, 0x10000, v{VT[tt]}")
    VTH2 = None

    def mod_reads(c):
        m = MD
        a(f"ds_read_b128 v[{m}:{m+3}], v{VMODA} offset:{c*128}")
        a(f"ds_read_b128 v[{m+4}:{m+7}], v{VMODA} offset:{c*128+16}")
        a(f"ds_read_b128 v[{m+8}:{m+11}], v{VMODA} offset:{2048+c*128}")
        a(f"ds_read_b128 v[{m+12}:{m+15}], v{VMODA} offset:{2048+c*128+16}")

    def modulate(c):
        slot = (c // 4) % 3
        cl = c % 4
        m = MD
        for rt in range(2):
            b = XB + ((slot * 2 + rt) * 4 + cl) * 4
            for d in range(4):
                a(f"v_lshlrev_b32 v{TMP+2*d}, 16, v{b+d}")
                a(f"v_and_b32 v{TMP+2*d+1}, 0xffff0000, v{b+d}")
            for e in range(8):
                a(f"v_fma_f32 v{TMP+e}, v{TMP+e}, v{RS[rt]}, v{NM[rt]}")
            for e in range(8):
                a(f"v_fma_f32 v{TMP+e}, v{TMP+e}, v{m+e}, v{m+8+e}")
            for d in range(4):
                a(f"v_cvt_pk_bf16_f32 v{b+d}, v{TMP+2*d}, v{TMP+2*d+1}")

    def mfmas(c, buf):
        slot = (c // 4) % 3
        cl = c % 4
        f = AF[buf]
        for rt in range(2):
            b = XB + ((slot * 2 + rt) * 4 + cl) * 4
            for gu in range(2):
                for tt in range(3):
                    d = ACC + ((gu * 3 + tt) * 2 + rt) * 4
                    fa = f + (gu * 3 + tt) * 4
                    a(f"v_mfma_f32_16x16x32_bf16 v[{d}:{d+3}], v[{fa}:{fa+3}], v[{b}:{b+3}], v[{d}:{d+3}]")

    for qt in range(4):
        if qt == 0:
            a("s_waitcnt vmcnt(28) lgkmcnt(0)")
        elif qt == 1:
            a("s_waitcnt vmcnt(14) lgkmcnt(0)")
        elif qt == 2:
            a("s_waitcnt vmcnt(14) lgkmcnt(0)")
        else:
            a("s_waitcnt vmcnt(0) lgkmcnt(0)")
        a("s_barrier")
        a.stamp(2+qt)
        if qt == 1:
            issue_quarter(3)
        mod_reads(4 * qt)
        a_reads(4 * qt, 0)
        for ci in range(4):
            c = 4 * qt + ci
            buf = ci & 1
            a("s_waitcnt lgkmcnt(12)" )
            modulate(c)
            if ci < 3:
                mod_reads(c + 1) if False else None
                a_reads(c + 1, buf ^ 1)
                a("s_waitcnt lgkmcnt(12)")
            else:
                a("s_waitcnt lgkmcnt(0)")
            mfmas(c, buf)
            if ci < 3:
                mod_reads(c + 1)
                a("s_waitcnt lgkmcnt(0)")
                a("s_nop 0")
    a.stamp(6)
    a.nop(8)
    a("s_mov_b32 s60, 0x3d372713")
    a("s_mov_b32 s61, 0xc0135761")
    G = ACC
    U = ACC + 24
    for i in range(0, 48, 2):
        a(f"v_cvt_pk_bf16_f32 v{ACC+i}, v{ACC+i}, v{ACC+i+1}")
    for i in range(0, 48, 2):
        a(f"v_and_b32 v{ACC+i+1}, 0xffff0000, v{ACC+i}")
        a(f"v_lshlrev_b32 v{ACC+i}, 16, v{ACC+i}")
    T = 64
    for i in range(24):
        a(f"v_mul_f32 v{T+i}, v{G+i}, v{G+i}")
    for i in range(24):
        a(f"v_fma_f32 v{T+i}, v{T+i}, s60, 1.0")
    for i in range(24):
        a(f"v_mul_f32 v{T+i}, v{T+i}, v{G+i}")
    for i in range(24):
        a(f"v_mul_f32 v{T+i}, s61, v{T+i}")
    for i in range(24):
        a(f"v_exp_f32 v{T+i}, v{T+i}")
    for i in range(24):
        a(f"v_add_f32 v{T+i}, 1.0, v{T+i}")
    for i in range(24):
        a(f"v_rcp_f32 v{T+i}, v{T+i}")
    for i in range(24):
        a(f"v_mul_f32 v{T+i}, v{T+i}, v{G+i}")
    for i in range(0, 24, 2):
        a(f"v_cvt_pk_bf16_f32 v{T+i}, v{T+i}, v{T+i+1}")
    for i in range(0, 24, 2):
        a(f"v_and_b32 v{T+i+1}, 0xffff0000, v{T+i}")
        a(f"v_lshlrev_b32 v{T+i}, 16, v{T+i}")
    for i in range(24):
        a(f"v_mul_f32 v{T+i}, v{T+i}, v{U+i}")
    PK = 96
    for rt in range(2):
        for tt in range(3):
            s = T + (tt * 2 + rt) * 4
            a(f"v_cvt_pk_bf16_f32 v{PK+rt*6+tt*2}, v{s}, v{s+1}")
            a(f"v_cvt_pk_bf16_f32 v{PK+rt*6+tt*2+1}, v{s+2}, v{s+3}")
    a("s_mov_b32 s45, 2752")
    a(f"v_mul_lo_u32 v110, v{VM}, s45")
    a(f"v_lshl_add_u32 v110, v{VG}, 3, v110")
    a("s_mul_i32 s57, s54, 2752")
    a("s_mul_i32 s58, s43, 192")
    a("s_add_u32 s57, s57, s58")
    a("s_mul_i32 s58, s38, 96")
    a("s_add_u32 s57, s57, s58")
    a("s_add_u32 s58, s57, 16*2752")
    a("s_mul_i32 s59, s43, 96")
    a("s_mul_i32 s62, s38, 48")
    a("s_add_u32 s59, s59, s62")
    for tt in range(3):
        a(f"s_add_u32 s62, s59, {16*tt}")
        a("s_cmp_ge_u32 s62, 1376")
        a("s_cbranch_scc1 K3_END")
        for rt in range(2):
            r = PK + rt * 6 + tt * 2
            a(f"buffer_store_dwordx2 v[{r}:{r+1}], v110, s[24:27], s{57+rt} offen offset:{tt*32}")
    a.lab("K3_END")
    a.stamp(7)
    a.stamp_out(8, 36)
    a("s_endpgm")
    return kernel_desc(name, 256)


K4_SLOTS = 38
K4_LDS = K4_SLOTS * 4096


def gen_k4(a):
    name = "k4_kernel"
    kernel_head(a, name)
    a("s_cmp_ge_u32 s2, 256")
    a("s_cbranch_scc1 K4_END")
    a.stamp(0)
    a("s_load_dwordx2 s[4:5], s[0:1], 56")
    a("s_load_dwordx2 s[6:7], s[0:1], 80")
    a("s_load_dwordx2 s[34:35], s[0:1], 96")
    a("v_lshrrev_b32 v1, 6, v0")
    a("s_nop 0")
    a("v_readfirstlane_b32 s36, v1")
    a("s_and_b32 s40, s2, 7")
    a("s_lshr_b32 s41, s2, 3")
    a("s_lshl_b32 s42, s40, 2")
    a("s_lshr_b32 s43, s41, 3")
    a("s_add_u32 s42, s42, s43")
    a("s_and_b32 s43, s41, 7")
    a("s_waitcnt lgkmcnt(0)")
    srd(a, 8, 4, 0, 1376 * 1024)
    srd(a, 12, 6, 0, 2048 * 1024)
    srd(a, 16, 34, WS_HH, 2048 * 2752)
    srd(a, 24, 34, WS_X1, 2048 * 1024)
    srd(a, 48, 34, WS_MODF, 3072 * 4)
    VL, VG, VRR, VQ, VM = 1, 2, 3, 4, 5
    lane_decode(a, VL, VG, VRR, VQ, VM)
    VDMA, VH = 8, 9
    dma_voffset(a, VDMA, VG, VRR, VQ, 10, 1024, 8)
    a("s_mov_b32 s45, 2752")
    a(f"v_mul_lo_u32 v{VH}, v{VM}, s45")
    a(f"v_lshl_add_u32 v{VH}, v{VG}, 4, v{VH}")
    a("s_and_b32 s52, s36, 1")
    a("s_lshl_b32 s52, s52, 12")
    a("s_lshr_b32 s53, s36, 1")
    a("s_lshl_b32 s54, s53, 6")
    a("s_add_u32 s52, s52, s54")
    a("s_lshl_b32 s54, s43, 7")
    a("s_add_u32 s52, s52, s54")
    a("s_lshl_b32 s53, s36, 10")
    a("s_lshl_b32 s54, s42, 6")
    a("s_lshl_b32 s55, s36, 4")
    a("s_add_u32 s54, s54, s55")
    a("s_mul_i32 s55, s54, 2752")
    HB = 64

    def issue(c):
        slot = c % K4_SLOTS
        a(f"s_add_u32 s57, s52, {c*32*1024}")
        a(f"s_add_u32 s58, s53, {slot*4096}")
        a("s_mov_b32 m0, s58")
        a("s_nop 0")
        a(f"buffer_load_dwordx4 v{VDMA}, s[8:11], s57 offen lds")
        b = HB + 4 * c
        a(f"buffer_load_dwordx4 v[{b}:{b+3}], v{VH}, s[16:19], s55 offen offset:{c*64}")

    NPRE = 28
    for c in range(NPRE):
        issue(c)
    a.stamp(1)
    VT = [10, 11]
    tr_addr(a, 10, VG, VRR, VQ, 12, tprime_const=0)
    tr_addr(a, 11, VG, VRR, VQ, 12, tprime_const=1)
    VTB = [[10, 11], [12, 13], [14, 15]]
    a("v_add_u32 v12, 0x10000, v10")
    a("v_add_u32 v13, 0x10000, v11")
    a("v_add_u32 v14, 0x20000, v10")
    a("v_add_u32 v15, 0x20000, v11")
    ACC = 16
    for i in range(16):
        a(f"v_mov_b32 v{ACC+i}, 0")
    AF = [32, 48]

    def a_reads(c, buf):
        slot = c % K4_SLOTS
        f = AF[buf]
        for t in range(4):
            seg, tp = t >> 1, t & 1
            for half in range(2):
                off = slot * 4096 + seg * 2048 + half * 1024
                base = VTB[off >> 16][tp]
                r = f + 4 * t + 2 * half
                a(f"ds_read_b64_tr_b16 v[{r}:{r+1}], v{base} offset:{off & 0xffff}")

    def mfmas(c, buf):
        f = AF[buf]
        b = HB + 4 * c
        for t in range(4):
            d = ACC + 4 * t
            a(f"v_mfma_f32_16x16x32_bf16 v[{d}:{d+3}], v[{f+4*t}:{f+4*t+3}], v[{b}:{b+3}], v[{d}:{d+3}]")

    issued = NPRE
    phases = [list(range(i, min(i + 4, 43))) for i in range(0, 43, 4)]
    for pi, ph in enumerate(phases):
        need = ph[-1] + 1
        a(f"s_waitcnt vmcnt({2*(issued-need)}) lgkmcnt(0)")
        a("s_barrier")
        if pi in (0, 3, 6, 9):
            a.stamp(2 + pi // 3)
        nmore = 0
        while issued < 43 and nmore < 4 and (issued - K4_SLOTS) < ph[0]:
            issue(issued)
            issued += 1
            nmore += 1
        a_reads(ph[0], 0)
        for ci, c in enumerate(ph):
            buf = ci & 1
            if ci + 1 < len(ph):
                a_reads(ph[ci + 1], buf ^ 1)
                a("s_waitcnt lgkmcnt(8)")
            else:
                a("s_waitcnt lgkmcnt(0)")
            mfmas(c, buf)
    assert issued == 43
    a.stamp(6)
    a(f"v_lshlrev_b32 v36, 10, v{VM}")
    a(f"v_lshl_add_u32 v36, v{VG}, 3, v36")
    a("s_lshl_b32 s56, s54, 10")
    a("s_lshl_b32 s57, s43, 7")
    a("s_add_u32 s56, s56, s57")
    XR, GB = 40, 48
    a(f"v_lshlrev_b32 v37, 4, v{VG}")
    a("s_lshl_b32 s57, s43, 8")
    a("s_add_u32 s57, s57, 2560*4")
    a.nop(4)
    for t in range(4):
        a(f"buffer_load_dwordx2 v[{XR+2*t}:{XR+2*t+1}], v36, s[24:27], s56 offen offset:{t*32}")
    for t in range(4):
        a(f"buffer_load_dwordx4 v[{GB+4*t}:{GB+4*t+3}], v37, s[48:51], s57 offen offset:{t*64}")
    a.nop(4)
    for t in range(4):
        d = ACC + 4 * t
        a(f"v_cvt_pk_bf16_f32 v{d}, v{d}, v{d+1}")
        a(f"v_cvt_pk_bf16_f32 v{d+2}, v{d+2}, v{d+3}")
    for t in range(4):
        d = ACC + 4 * t
        a(f"v_and_b32 v{d+1}, 0xffff0000, v{d}")
        a(f"v_lshlrev_b32 v{d}, 16, v{d}")
        a(f"v_and_b32 v{d+3}, 0xffff0000, v{d+2}")
        a(f"v_lshlrev_b32 v{d+2}, 16, v{d+2}")
    a("s_waitcnt vmcnt(0)")
    for i in range(16):
        a(f"v_mul_f32 v{ACC+i}, v{ACC+i}, v{GB+i}")
    for t in range(4):
        d = ACC + 4 * t
        a(f"v_cvt_pk_bf16_f32 v{d}, v{d}, v{d+1}")
        a(f"v_cvt_pk_bf16_f32 v{d+2}, v{d+2}, v{d+3}")
    for t in range(4):
        d = ACC + 4 * t
        a(f"v_and_b32 v{d+1}, 0xffff0000, v{d}")
        a(f"v_lshlrev_b32 v{d}, 16, v{d}")
        a(f"v_and_b32 v{d+3}, 0xffff0000, v{d+2}")
        a(f"v_lshlrev_b32 v{d+2}, 16, v{d+2}")
    X = 64
    for t in range(4):
        for d in range(2):
            a(f"v_lshlrev_b32 v{X+4*t+2*d}, 16, v{XR+2*t+d}")
            a(f"v_and_b32 v{X+4*t+2*d+1}, 0xffff0000, v{XR+2*t+d}")
    for i in range(16):
        a(f"v_add_f32 v{X+i}, v{X+i}, v{ACC+i}")
    PK = 80
    for t in range(4):
        a(f"v_cvt_pk_bf16_f32 v{PK+2*t}, v{X+4*t}, v{X+4*t+1}")
        a(f"v_cvt_pk_bf16_f32 v{PK+2*t+1}, v{X+4*t+2}, v{X+4*t+3}")
    a(f"v_and_b32 v92, 1, v{VG}")
    a(f"v_lshrrev_b32 v93, 1, v{VG}")
    a(f"v_lshlrev_b32 v94, 10, v{VM}")
    a("v_lshl_add_u32 v94, v92, 5, v94")
    a("v_lshl_add_u32 v94, v93, 4, v94")
    a(f"v_permlane16_swap_b32 v{PK}, v{PK+2}")
    a(f"v_permlane16_swap_b32 v{PK+1}, v{PK+3}")
    a(f"v_permlane16_swap_b32 v{PK+4}, v{PK+6}")
    a(f"v_permlane16_swap_b32 v{PK+5}, v{PK+7}")
    a.nop(1)
    a(f"buffer_store_dwordx4 v[{PK}:{PK+3}], v94, s[12:15], s56 offen")
    a(f"buffer_store_dwordx4 v[{PK+4}:{PK+7}], v94, s[12:15], s56 offen offset:64")
    a.lab("K4_END")
    a.stamp(7)
    a.stamp_out(8, 36)
    a("s_endpgm")
    return kernel_desc(name, 240)


def main():
    a = A()
    a.raw(f"; @launch kernel=k0_kernel grid=(256,1,1) block=(256,1,1) lds=8192")
    a.raw(f"; @launch kernel=k1_kernel grid=(256,1,1) block=(512,1,1) lds={K1_LDS}")
    a.raw(f"; @launch kernel=k2_kernel grid=(256,1,1) block=(256,1,1) lds={K2_LDS}")
    a.raw(f"; @launch kernel=k3_kernel grid=(240,1,1) block=(512,1,1) lds={K3_LDS}")
    a.raw(f"; @launch kernel=k4_kernel grid=(256,1,1) block=(256,1,1) lds={K4_LDS}")
    a.raw('.amdgcn_target "amdgcn-amd-amdhsa--gfx950"')
    a.raw(".text")
    descs = []
    for g in (gen_k0, gen_k1, gen_k2, gen_k3, gen_k4):
        descs.append(g(a))
    a.raw('.section .rodata,"a"')
    for d in descs:
        a.raw(".p2align 6")
        a.raw(d)
    out = sys.argv[1] if len(sys.argv) > 1 else f"cdna_kernels/{NAME}.s"
    open(out, "w").write(a.text())


if __name__ == "__main__":
    main()
```

```python
from gen_common import *
import gen_common

K0_WGS = 256 + 390


def k0_relayout(a):
    a.lab("K0_RL")
    a("s_load_dwordx2 s[34:35], s[0:1], 96")
    a("v_lshrrev_b32 v1, 6, v0")
    a("s_nop 0")
    a("v_readfirstlane_b32 s36, v1")
    a("s_sub_u32 s37, s2, 256")
    a("s_lshl_b32 s37, s37, 2")
    a("s_add_u32 s37, s37, s36")
    a("s_mov_b32 s28, 4")
    a("s_mov_b32 s29, 8")
    a("s_movk_i32 s30, 512")
    a("s_cmp_lt_u32 s37, 384")
    a("s_cbranch_scc1 K0_RA")
    a("s_cmp_lt_u32 s37, 512")
    a("s_cbranch_scc1 K0_RB")
    a("s_cmp_lt_u32 s37, 1216")
    a("s_cbranch_scc1 K0_RC")
    a("s_load_dwordx2 s[4:5], s[0:1], 56")
    a("s_sub_u32 s37, s37, 1216")
    a("s_and_b32 s38, s37, 7")
    a("s_lshr_b32 s39, s37, 3")
    a("s_movk_i32 s21, 1024")
    a("s_mov_b32 s22, 1376*1024")
    a("s_mul_i32 s24, s38, 43")
    a("s_add_u32 s24, s24, s39")
    a("s_lshl_b32 s24, s24, 12")
    a(f"s_add_u32 s24, s24, {WF_D}")
    a("s_add_u32 s25, s24, 1024")
    a("s_add_u32 s26, s24, 2048")
    a("s_add_u32 s27, s24, 3072")
    a("s_branch K0_RGO")
    a.lab("K0_RA")
    a("s_load_dwordx2 s[4:5], s[0:1], 8")
    a("s_lshr_b32 s38, s37, 4")
    a("s_and_b32 s39, s37, 15")
    a("s_movk_i32 s21, 3072")
    a("s_mov_b32 s22, 512*3072")
    a("s_lshr_b32 s40, s38, 3")
    a("s_and_b32 s41, s38, 7")
    a("s_lshl_b32 s41, s41, 5")
    a("s_add_u32 s41, s41, s39")
    a("s_mul_i32 s41, s41, 6")
    a("s_lshl_b32 s40, s40, 1")
    a("s_add_u32 s41, s41, s40")
    a("s_lshl_b32 s24, s41, 10")
    a("s_add_u32 s25, s24, 1024")
    a("s_add_u32 s26, s24, 16*6*1024")
    a("s_add_u32 s27, s26, 1024")
    a("s_branch K0_RGO")
    a.lab("K0_RB")
    a("s_load_dwordx2 s[4:5], s[0:1], 24")
    a("s_sub_u32 s37, s37, 384")
    a("s_lshr_b32 s38, s37, 4")
    a("s_and_b32 s39, s37, 15")
    a("s_movk_i32 s21, 1024")
    a("s_mov_b32 s22, 512*1024")
    a("s_lshl_b32 s24, s37, 12")
    a(f"s_add_u32 s24, s24, {WF_O}")
    a("s_add_u32 s25, s24, 1024")
    a("s_add_u32 s26, s24, 2048")
    a("s_add_u32 s27, s24, 3072")
    a("s_mov_b32 s29, 4")
    a("s_movk_i32 s30, 2048")
    a("s_branch K0_RGO")
    a.lab("K0_RC")
    a("s_load_dwordx2 s[4:5], s[0:1], 40")
    a("s_load_dwordx2 s[6:7], s[0:1], 48")
    a("s_sub_u32 s37, s37, 512")
    a("s_cmp_ge_u32 s37, 352")
    a("s_cselect_b32 s40, 1, 0")
    a("s_mul_i32 s41, s40, 352")
    a("s_sub_u32 s37, s37, s41")
    a("s_lshr_b32 s38, s37, 4")
    a("s_and_b32 s39, s37, 15")
    a("s_movk_i32 s21, 2752")
    a("s_mov_b32 s22, 512*2752")
    a("s_cmp_eq_u32 s38, 21")
    a("s_cselect_b32 s28, 2, 4")
    for i in range(4):
        a(f"s_lshl_b32 s41, s38, 2")
        a(f"s_add_u32 s41, s41, {i}")
        a("s_mul_i32 s42, s41, 43")
        a("s_lshr_b32 s42, s42, 8")
        a("s_mul_i32 s43, s42, 6")
        a("s_sub_u32 s43, s41, s43")
        a("s_lshl_b32 s42, s42, 4")
        a("s_add_u32 s42, s42, s39")
        a("s_lshl_b32 s42, s42, 1")
        a("s_add_u32 s42, s42, s40")
        a("s_mul_i32 s42, s42, 6")
        a("s_add_u32 s42, s42, s43")
        a("s_lshl_b32 s42, s42, 10")
        a(f"s_add_u32 s{24+i}, s42, {WF_GU}")
    a("s_waitcnt lgkmcnt(0)")
    a("s_cmp_eq_u32 s40, 1")
    a("s_cselect_b32 s4, s6, s4")
    a("s_cselect_b32 s5, s7, s5")
    a.lab("K0_RGO")
    a("s_waitcnt lgkmcnt(0)")
    a("s_mov_b32 s8, s4")
    a("s_and_b32 s9, s5, 0xffff")
    a("s_mov_b32 s10, s22")
    a("s_mov_b32 s11, 0x00020000")
    srd(a, 12, 34, WS_WF, 8 << 20)
    a("s_mul_i32 s20, s39, s21")
    a("s_lshl_b32 s20, s20, 5")
    a("s_lshl_b32 s41, s38, 7")
    a("s_add_u32 s20, s20, s41")
    a("s_lshl_b32 s23, s21, 3")
    a("s_lshl_b32 s31, s36, 12")
    a("v_and_b32 v1, 63, v0")
    a("v_lshrrev_b32 v2, 3, v1")
    a("v_and_b32 v3, 7, v1")
    a("v_mul_lo_u32 v2, v2, s21")
    a("v_lshl_add_u32 v2, v3, 4, v2")
    for i in range(4):
        a(f"s_add_u32 m0, s31, {i*1024}")
        a("s_nop 0")
        a("buffer_load_dwordx4 v2, s[8:11], s20 offen lds")
        a("s_add_u32 s20, s20, s23")
    a("v_lshrrev_b32 v3, 4, v1")
    a("v_bfe_u32 v4, v1, 2, 2")
    a("v_and_b32 v5, 3, v1")
    a("v_mul_lo_u32 v3, v3, s29")
    a("v_add_u32 v3, v3, v4")
    a("v_lshlrev_b32 v3, 7, v3")
    a("v_lshl_add_u32 v3, v5, 3, v3")
    a("v_add_u32 v3, s31, v3")
    a("v_add_u32 v4, s30, v3")
    a("v_lshlrev_b32 v5, 4, v1")
    a("s_waitcnt vmcnt(0)")
    for i in range(4):
        a(f"ds_read_b64_tr_b16 v[{8+4*i}:{9+4*i}], v3 offset:{i*32}")
        a(f"ds_read_b64_tr_b16 v[{10+4*i}:{11+4*i}], v4 offset:{i*32}")
    a("s_waitcnt lgkmcnt(0)")
    for i in range(4):
        if i == 2:
            a("s_cmp_lt_u32 s28, 4")
            a("s_cbranch_scc1 K0_END")
        a(f"buffer_store_dwordx4 v[{8+4*i}:{11+4*i}], v5, s[12:15], s{24+i} offen")

def gen_k0(a):
    name = "k0_kernel"
    kernel_head(a, name)
    a(f"s_cmp_ge_u32 s2, {K0_WGS}")
    a("s_cbranch_scc1 K0_END")
    a("s_cmp_ge_u32 s2, 256")
    a("s_cbranch_scc1 K0_RL")
    a("s_load_dwordx2 s[4:5], s[0:1], 0")
    a("s_load_dwordx2 s[6:7], s[0:1], 64")
    a("s_load_dwordx2 s[32:33], s[0:1], 72")
    a("s_load_dwordx2 s[34:35], s[0:1], 96")
    a("s_waitcnt lgkmcnt(0)")
    a("s_cmp_ge_u32 s2, 192")
    a("s_cbranch_scc1 K0_LN")
    srd(a, 8, 32, 0, 512 * 6144)
    srd(a, 12, 6, 0, 1024)
    srd(a, 16, 34, WS_MODP, 4 * 3072 * 4)
    a("s_and_b32 s20, s2, 3")
    a("s_lshr_b32 s21, s2, 2")
    a("v_and_b32 v1, 7, v0")
    a("v_lshrrev_b32 v2, 3, v0")
    a("s_movk_i32 s22, 6144")
    a("v_mul_lo_u32 v3, v2, s22")
    a("v_lshl_add_u32 v3, v1, 4, v3")
    a("v_lshlrev_b32 v4, 1, v2")
    a("s_mul_i32 s23, s20, 128*6144")
    a("s_lshl_b32 s24, s21, 7")
    a("s_add_u32 s23, s23, s24")
    a("s_lshl_b32 s25, s20, 8")
    for i in range(4):
        a(f"buffer_load_ushort v{8+i}, v4, s[12:15], s25 offen offset:{i*64}")
    for i in range(4):
        a(f"s_add_u32 s26, s23, {i*32*6144}")
        a(f"buffer_load_dwordx4 v[{16+4*i}:{19+4*i}], v3, s[8:11], s26 offen")
    NP = k0_prefetch(a)
    for j in range(8):
        a(f"v_mov_b32 v{40+j}, 0")
    a(f"s_waitcnt vmcnt({4+NP})")
    for i in range(4):
        a(f"v_lshlrev_b32 v{8+i}, 16, v{8+i}")
    for i in range(4):
        a(f"v_mul_f32 v{12+i}, 0xbfb8aa3b, v{8+i}")
    for i in range(4):
        a(f"v_exp_f32 v{12+i}, v{12+i}")
    a.nop(1)
    for i in range(4):
        a(f"v_add_f32 v{12+i}, 1.0, v{12+i}")
    for i in range(4):
        a(f"v_rcp_f32 v{12+i}, v{12+i}")
    a.nop(1)
    for i in range(4):
        a(f"v_mul_f32 v{8+i}, v{8+i}, v{12+i}")
    for i in range(4):
        a(f"v_cvt_pk_bf16_f32 v{8+i}, v{8+i}, v{8+i}")
    for i in range(4):
        a(f"v_lshlrev_b32 v{8+i}, 16, v{8+i}")
    for i in range(4):
        a(f"s_waitcnt vmcnt({3-i+NP})")
        for d in range(4):
            w = 16 + 4 * i + d
            a(f"v_lshlrev_b32 v32, 16, v{w}")
            a(f"v_and_b32 v33, 0xffff0000, v{w}")
            a(f"v_fmac_f32 v{40+2*d}, v{8+i}, v32")
            a(f"v_fmac_f32 v{41+2*d}, v{8+i}, v33")
    a("v_lshlrev_b32 v5, 8, v2")
    a("v_lshl_add_u32 v5, v1, 5, v5")
    a("ds_write_b128 v5, v[40:43]")
    a("ds_write_b128 v5, v[44:47] offset:16")
    a("s_waitcnt lgkmcnt(0)")
    a("s_barrier")
    a("v_cmp_gt_u32 vcc, 64, v0")
    a("s_and_saveexec_b64 s[28:29], vcc")
    a("s_cbranch_execz K0_END")
    a("v_lshlrev_b32 v5, 2, v0")
    for r in range(32):
        a(f"ds_read_b32 v{8+r}, v5 offset:{r*256}")
    a("s_waitcnt lgkmcnt(0)")
    for st in (16, 8, 4, 2, 1):
        for r in range(st):
            a(f"v_add_f32 v{8+r}, v{8+r}, v{8+r+st}")
    a("s_mul_i32 s26, s20, 3072*4")
    a("s_lshl_b32 s27, s21, 8")
    a("s_add_u32 s26, s26, s27")
    a("buffer_store_dword v8, v5, s[16:19], s26 offen")
    a("s_branch K0_END")
    a.lab("K0_LN")
    srd(a, 8, 4, 0, 2048 * 1024)
    srd(a, 12, 34, WS_XHAT, 2048 * 1024)
    srd(a, 16, 34, WS_KV, 32 * 544 * 4)
    a("s_sub_u32 s20, s2, 192")
    a("s_lshl_b32 s21, s20, 15")
    a("v_mov_b32 v4, 0")
    a("v_mov_b32 v5, 0")
    a("v_mov_b32 v6, 0")
    a("v_mov_b32 v7, 0")
    a("v_lshlrev_b32 v1, 4, v0")
    a("s_mul_i32 s22, s20, 1088")
    a("v_cmp_gt_u32 vcc, 68, v0")
    a("s_and_saveexec_b64 s[28:29], vcc")
    a("buffer_store_dwordx4 v[4:7], v1, s[16:19], s22 offen")
    a("s_mov_b64 exec, s[28:29]")
    a("v_and_b32 v1, 63, v0")
    a("v_lshrrev_b32 v2, 6, v0")
    a("v_lshlrev_b32 v2, 13, v2")
    a("v_lshl_add_u32 v1, v1, 4, v2")
    a("v_add_u32 v2, 4096, v1")
    for i in range(8):
        vo = 1 if i < 4 else 2
        a(f"buffer_load_dwordx4 v[{16+4*i}:{19+4*i}], v{vo}, s[8:11], s21 offen offset:{(i&3)*1024}")
    NP = k0_prefetch(a)
    a(f"s_waitcnt vmcnt({NP})")
    for i in range(8):
        for d in range(4):
            a(f"v_lshlrev_b32 v{64+8*i+2*d}, 16, v{16+4*i+d}")
            a(f"v_and_b32 v{65+8*i+2*d}, 0xffff0000, v{16+4*i+d}")

    def allreduce(regs, tmps):
        for sh in (1, 2, 4, 8):
            for r in regs:
                a(f"v_add_f32_dpp v{r}, v{r}, v{r} row_ror:{sh} row_mask:0xf bank_mask:0xf")
        xgroup_reduce(a, regs, tmps, "v_add_f32")

    S = list(range(8, 16))
    T = list(range(48, 56))
    for i in range(8):
        b = 64 + 8 * i
        a(f"v_add_f32 v{S[i]}, v{b}, v{b+1}")
        for e in range(2, 8):
            a(f"v_add_f32 v{S[i]}, v{S[i]}, v{b+e}")
    allreduce(S, T)
    for i in range(8):
        a(f"v_mul_f32 v{S[i]}, 0x3b000000, v{S[i]}")
    for i in range(8):
        b = 64 + 8 * i
        for e in range(8):
            a(f"v_sub_f32 v{b+e}, v{b+e}, v{S[i]}")
    for i in range(8):
        b = 64 + 8 * i
        a(f"v_mul_f32 v{S[i]}, v{b}, v{b}")
        for e in range(1, 8):
            a(f"v_fmac_f32 v{S[i]}, v{b+e}, v{b+e}")
    allreduce(S, T)
    a("s_mov_b32 s23, 0x3727c5ac")
    for i in range(8):
        a(f"v_mov_b32 v{T[i]}, s23")
    for i in range(8):
        a(f"v_fmac_f32 v{T[i]}, 0x3b000000, v{S[i]}")
    for i in range(8):
        a(f"v_rsq_f32 v{T[i]}, v{T[i]}")
    a.nop(1)
    for i in range(8):
        b = 64 + 8 * i
        for e in range(8):
            a(f"v_mul_f32 v{b+e}, v{b+e}, v{T[i]}")
        for d in range(4):
            a(f"v_cvt_pk_bf16_f32 v{16+4*i+d}, v{b+2*d}, v{b+2*d+1}")
    a("v_and_b32 v1, 63, v0")
    a("v_lshrrev_b32 v2, 2, v1")
    a("v_and_b32 v3, 3, v1")
    a("v_lshlrev_b32 v2, 10, v2")
    a("v_lshl_add_u32 v2, v3, 8, v2")
    a("v_bfe_u32 v3, v0, 6, 1")
    a("v_lshl_add_u32 v2, v3, 7, v2")
    a("v_lshrrev_b32 v3, 7, v0")
    a("v_lshl_add_u32 v2, v3, 14, v2")
    for i in range(8):
        a(f"buffer_store_dwordx4 v[{16+4*i}:{19+4*i}], v2, s[12:15], s21 offen offset:{i*16}")
    a("s_branch K0_END")
    k0_relayout(a)
    a.lab("K0_END")
    a("s_endpgm")
    return kernel_desc(name, 160)


K1_MOD = 96 * 1024
K1_PK = 100 * 1024
K1_RED = 116 * 1024
K1_LDS = K1_RED + 8 * 2176


def gen_k1(a):
    name = "k1_kernel"
    kernel_head(a, name)
    a("s_cmp_ge_u32 s2, 256")
    a("s_cbranch_scc1 K1_END")
    a.stamp(0)
    a("s_load_dwordx2 s[4:5], s[0:1], 8")
    a("s_load_dwordx2 s[6:7], s[0:1], 16")
    a("s_load_dwordx2 s[34:35], s[0:1], 96")
    a("v_lshrrev_b32 v1, 6, v0")
    a("s_nop 0")
    a("v_readfirstlane_b32 s36, v1")
    a("s_and_b32 s40, s2, 7")
    a("s_lshr_b32 s41, s2, 3")
    a("s_lshr_b32 s42, s40, 1")
    a("s_lshl_b32 s42, s42, 2")
    a("s_lshr_b32 s43, s41, 3")
    a("s_add_u32 s42, s42, s43")
    a("s_and_b32 s43, s40, 1")
    a("s_lshl_b32 s43, s43, 3")
    a("s_and_b32 s44, s41, 7")
    a("s_add_u32 s43, s43, s44")
    a("s_and_b32 s37, s36, 3")
    a("s_lshr_b32 s38, s36, 2")
    a("s_waitcnt lgkmcnt(0)")
    srd(a, 8, 4, 0, 512 * 3072)
    srd(a, 12, 34, WS_XHAT, 2048 * 1024)
    srd(a, 16, 34, WS_MODP, 4 * 3072 * 4)
    srd(a, 20, 6, 0, 32 * 512)
    srd(a, 24, 34, WS_PHIQ, 2048 * 2048)
    srd(a, 28, 34, WS_KV, 32 * 544 * 4)
    srd(a, 48, 34, WS_MODF, 3072 * 4)
    VL, VG, VRR, VQ, VM = 1, 2, 3, 4, 5
    lane_decode(a, VL, VG, VRR, VQ, VM)
    a("v_lshlrev_b32 v6, 2, v0")
    for p in range(4):
        a(f"s_mov_b32 s45, {p*3072*4}")
        a(f"buffer_load_dword v{16+p}, v6, s[16:19], s45 offen")
        a(f"buffer_load_dword v{20+p}, v6, s[16:19], s45 offen offset:2048")
    a("s_lshl_b32 s45, s43, 1")
    a("s_add_u32 s45, s45, s38")
    a("s_mov_b32 s46, s45")
    a("s_lshl_b32 s45, s45, 9")
    a(f"v_lshlrev_b32 v7, 7, v{VG}")
    a(f"v_lshl_add_u32 v7, v{VM}, 1, v7")
    for j in range(4):
        a(f"buffer_load_ushort v{24+j}, v7, s[20:23], s45 offen offset:{j*32}")
    VDMA, VX = 8, 9
    dma_voffset(a, VDMA, VG, VRR, VQ, 10, 3072, 8)
    a(f"v_lshlrev_b32 v{VX}, 10, v{VM}")
    a(f"v_lshl_add_u32 v{VX}, v{VG}, 4, v{VX}")
    a("s_lshr_b32 s52, s36, 1")
    a("s_lshl_b32 s52, s52, 5")
    a("s_and_b32 s53, s36, 1")
    a("s_lshl_b32 s53, s53, 2")
    a("s_add_u32 s52, s52, s53")
    a("s_mul_i32 s52, s52, 3072")
    a("s_lshl_b32 s53, s43, 6")
    a("s_add_u32 s52, s52, s53")
    a("s_lshl_b32 s53, s36, 10")
    a("s_lshl_b32 s54, s42, 7")
    a("s_lshl_b32 s55, s37, 5")
    a("s_add_u32 s54, s54, s55")
    a("s_lshl_b32 s55, s54, 10")
    a("s_add_u32 s56, s55, 16384")
    XB = 64
    for p in range(4):
        for seg in range(3):
            a(f"s_add_u32 s57, s52, {p*393216 + seg*1024}")
            a(f"s_add_u32 s58, s53, {seg*32768 + p*8192}")
            a("s_mov_b32 m0, s58")
            a("s_nop 0")
            if os.environ.get("K1_NODMA"):
                a("s_nop 0")
            else:
                a(f"buffer_load_dwordx4 v{VDMA}, s[8:11], s57 offen lds")
        for c in range(4 * p, 4 * p + 4):
            for rt in range(2):
                b = XB + (rt * 16 + c) * 4
                if os.environ.get("K1_NOX"):
                    a("s_nop 0")
                else:
                    a(f"buffer_load_dwordx4 v[{b}:{b+3}], v{VX}, s[12:15], s{55+rt} offen offset:{c*64}")
    a.stamp(1)
    a("s_waitcnt vmcnt(48)")
    a("v_add_f32 v16, v16, v17")
    a("v_add_f32 v18, v18, v19")
    a("v_add_f32 v20, v20, v21")
    a("v_add_f32 v22, v22, v23")
    a("v_add_f32 v16, v16, v18")
    a("v_add_f32 v20, v20, v22")
    a("v_cvt_pk_bf16_f32 v16, v16, v20")
    a("v_and_b32 v20, 0xffff0000, v16")
    a("v_lshlrev_b32 v16, 16, v16")
    a("v_add_f32 v20, 1.0, v20")
    a("v_cvt_pk_bf16_f32 v20, v20, v20")
    a("v_lshlrev_b32 v20, 16, v20")
    a(f"v_add_u32 v6, {K1_MOD}, v6")
    a("ds_write_b32 v6, v20")
    a("ds_write_b32 v6, v16 offset:2048")
    a("s_cmp_ge_u32 s2, 4")
    a("s_cbranch_scc1 K1_NOFIN")
    a("v_lshlrev_b32 v11, 2, v0")
    a("s_lshl_b32 s45, s2, 11")
    a("s_add_u32 s45, s45, 4096")
    for p in range(4):
        a(f"s_add_u32 s57, s45, {p*3072*4}")
        a(f"buffer_load_dword v{12+p}, v11, s[16:19], s57 offen")
    a("s_waitcnt vmcnt(0)")
    a("v_add_f32 v12, v12, v13")
    a("v_add_f32 v14, v14, v15")
    a("v_add_f32 v12, v12, v14")
    a("v_cvt_pk_bf16_f32 v12, v12, v12")
    a("v_lshlrev_b32 v12, 16, v12")
    a("buffer_store_dword v12, v11, s[48:51], s45 offen")
    a.lab("K1_NOFIN")
    a("s_waitcnt vmcnt(44)")
    a("v_lshl_or_b32 v28, v25, 16, v24")
    a("v_lshl_or_b32 v29, v27, 16, v26")
    WPH = 28
    VTR = 10
    a("v_mov_b32 v11, s38")
    tr_addr(a, VTR, VG, VRR, VQ, 12, tprime_vgpr=11)
    a(f"v_add_u32 v11, 32768, v{VTR}")
    a(f"v_add_u32 v12, 65536, v{VTR}")
    VTRS = [10, 11, 12]
    VMODA = 13
    a(f"v_lshlrev_b32 v{VMODA}, 5, v{VG}")
    a(f"v_add_u32 v{VMODA}, {K1_MOD}, v{VMODA}")
    ACC = 192
    for i in range(24):
        a(f"v_mov_b32 v{ACC+i}, 0")
    AF = [216, 228]
    MD = [32, 48]
    TMP = 16

    def issue_reads(c, buf):
        m = MD[buf]
        a(f"ds_read_b128 v[{m}:{m+3}], v{VMODA} offset:{c*128}")
        a(f"ds_read_b128 v[{m+4}:{m+7}], v{VMODA} offset:{c*128+16}")
        a(f"ds_read_b128 v[{m+8}:{m+11}], v{VMODA} offset:{2048+c*128}")
        a(f"ds_read_b128 v[{m+12}:{m+15}], v{VMODA} offset:{2048+c*128+16}")
        f = AF[buf]
        for seg in range(3):
            for half in range(2):
                r = f + seg * 4 + half * 2
                a(f"ds_read_b64_tr_b16 v[{r}:{r+1}], v{VTRS[seg]} offset:{c*2048+half*1024}")

    def modulate(c, buf):
        m = MD[buf]
        for rt in range(2):
            b = XB + (rt * 16 + c) * 4
            for d in range(4):
                a(f"v_lshlrev_b32 v{TMP+2*d}, 16, v{b+d}")
                a(f"v_and_b32 v{TMP+2*d+1}, 0xffff0000, v{b+d}")
            for e in range(8):
                a(f"v_fma_f32 v{TMP+e}, v{TMP+e}, v{m+e}, v{m+8+e}")
            for d in range(4):
                a(f"v_cvt_pk_bf16_f32 v{b+d}, v{TMP+2*d}, v{TMP+2*d+1}")

    def mfmas(c, buf):
        f = AF[buf]
        for rt in range(2):
            b = XB + (rt * 16 + c) * 4
            for seg in range(3):
                d = ACC + (seg * 2 + rt) * 4
                fa = f + seg * 4
                if seg < 2:
                    a(f"v_mfma_f32_16x16x32_bf16 v[{d}:{d+3}], v[{fa}:{fa+3}], v[{b}:{b+3}], v[{d}:{d+3}]")
                else:
                    a(f"v_mfma_f32_16x16x32_bf16 v[{d}:{d+3}], v[{b}:{b+3}], v[{fa}:{fa+3}], v[{d}:{d+3}]")

    for p in range(4):
        a(f"s_waitcnt vmcnt({(3-p)*11}) lgkmcnt(0)")
        a("s_barrier")
        a.stamp(2+p)
        issue_reads(4 * p, 0)
        for ci in range(4):
            c = 4 * p + ci
            buf = ci & 1
            if ci < 3:
                issue_reads(c + 1, buf ^ 1)
                a("s_waitcnt lgkmcnt(10)")
            else:
                a("s_waitcnt lgkmcnt(0)")
            modulate(c, buf)
            a.nop(1)
            mfmas(c, buf)
    a.stamp(6)
    a.nop(8)
    QB = 32
    for t in range(4):
        d = ACC + t * 4
        a(f"v_cvt_pk_bf16_f32 v{QB+2*t}, v{d}, v{d+1}")
        a(f"v_cvt_pk_bf16_f32 v{QB+2*t+1}, v{d+2}, v{d+3}")
    VB = 40
    for rt in range(2):
        d = ACC + (4 + rt) * 4
        a(f"v_cvt_pk_bf16_f32 v{VB+2*rt}, v{d}, v{d+1}")
        a(f"v_cvt_pk_bf16_f32 v{VB+2*rt+1}, v{d+2}, v{d+3}")
    a.nop(2)
    P = 64
    for t in range(4):
        a(f"v_mfma_f32_16x16x16_bf16 v[{P+4*t}:{P+4*t+3}], v[{WPH}:{WPH+1}], v[{QB+2*t}:{QB+2*t+1}], 0")
    a.nop(8)
    for t in range(4):
        p = P + 4 * t
        a(f"v_cvt_pk_bf16_f32 v{p}, v{p}, v{p+1}")
        a(f"v_cvt_pk_bf16_f32 v{p+2}, v{p+2}, v{p+3}")
    for t in range(4):
        p = P + 4 * t
        a(f"v_and_b32 v{p+1}, 0xffff0000, v{p}")
        a(f"v_lshlrev_b32 v{p}, 16, v{p}")
        a(f"v_and_b32 v{p+3}, 0xffff0000, v{p+2}")
        a(f"v_lshlrev_b32 v{p+2}, 16, v{p+2}")
    MX = [80 + t for t in range(4)]
    MN = [84 + t for t in range(4)]
    TT = [88 + t for t in range(4)]
    for t in range(4):
        p = P + 4 * t
        a(f"v_max3_f32 v{MX[t]}, v{p}, v{p+1}, v{p+2}")
        a(f"v_min3_f32 v{MN[t]}, v{p}, v{p+1}, v{p+2}")
    for t in range(4):
        p = P + 4 * t
        a(f"v_max_f32 v{MX[t]}, v{MX[t]}, v{p+3}")
        a(f"v_min_f32 v{MN[t]}, v{MN[t]}, v{p+3}")
    xgroup_reduce(a, MX, TT, "v_max_f32")
    xgroup_reduce(a, MN, TT, "v_min_f32")
    a(f"s_mov_b32 s60, 0x{LOG2E:x}")
    for t in range(4):
        a(f"v_mul_f32 v{MX[t]}, s60, v{MX[t]}")
        a(f"v_mul_f32 v{MN[t]}, s60, v{MN[t]}")
    E = 96
    for t in range(4):
        p = P + 4 * t
        e = E + 8 * t
        for r in range(4):
            a(f"v_fma_f32 v{e+r}, v{p+r}, s60, -v{MX[t]}")
            a(f"v_fma_f32 v{e+4+r}, -v{p+r}, s60, v{MN[t]}")
    for t in range(4):
        e = E + 8 * t
        for r in range(8):
            a(f"v_exp_f32 v{e+r}, v{e+r}")
    a.nop(1)
    SP = [80 + t for t in range(4)]
    SN = [84 + t for t in range(4)]
    for t in range(4):
        e = E + 8 * t
        a(f"v_add_f32 v{SP[t]}, v{e}, v{e+1}")
        a(f"v_add_f32 v{SN[t]}, v{e+4}, v{e+5}")
    for t in range(4):
        e = E + 8 * t
        a(f"v_add_f32 v{SP[t]}, v{SP[t]}, v{e+2}")
        a(f"v_add_f32 v{SN[t]}, v{SN[t]}, v{e+6}")
    for t in range(4):
        e = E + 8 * t
        a(f"v_add_f32 v{SP[t]}, v{SP[t]}, v{e+3}")
        a(f"v_add_f32 v{SN[t]}, v{SN[t]}, v{e+7}")
    xgroup_reduce(a, SP + SN, TT + [92, 93, 94, 95], "v_add_f32")
    for t in range(4):
        a(f"v_rcp_f32 v{SP[t]}, v{SP[t]}")
        a(f"v_rcp_f32 v{SN[t]}, v{SN[t]}")
    a.nop(1)
    for t in range(4):
        e = E + 8 * t
        for r in range(4):
            a(f"v_mul_f32 v{e+r}, v{e+r}, v{SP[t]}")
            a(f"v_mul_f32 v{e+4+r}, v{e+4+r}, v{SN[t]}")
    PH = 128
    for t in range(4):
        e = E + 8 * t
        for d in range(4):
            a(f"v_cvt_pk_bf16_f32 v{PH+4*t+d}, v{e+2*d}, v{e+2*d+1}")
    a(f"v_lshlrev_b32 v14, 11, v{VM}")
    a(f"v_lshl_add_u32 v14, v{VG}, 4, v14")
    a("s_lshl_b32 s57, s54, 11")
    a("s_lshl_b32 s58, s46, 6")
    a("s_add_u32 s57, s57, s58")
    a("s_add_u32 s58, s57, 32768")
    a(f"buffer_store_dwordx4 v[{PH}:{PH+3}], v14, s[24:27], s57 offen")
    a(f"buffer_store_dwordx4 v[{PH+4}:{PH+7}], v14, s[24:27], s58 offen")
    a("s_lshl_b32 s57, s36, 11")
    a(f"s_add_u32 s57, s57, {K1_PK}")
    a(f"v_lshlrev_b32 v15, 6, v{VM}")
    a(f"v_lshl_add_u32 v15, v{VG}, 4, v15")
    a("v_add_u32 v15, s57, v15")
    a(f"ds_write_b128 v15, v[{PH+8}:{PH+11}]")
    a(f"ds_write_b128 v15, v[{PH+12}:{PH+15}] offset:1024")
    a(f"v_lshlrev_b32 v15, 8, v{VG}")
    a(f"v_lshl_add_u32 v15, v{VRR}, 6, v15")
    a(f"v_lshl_add_u32 v15, v{VQ}, 3, v15")
    a("v_add_u32 v15, s57, v15")
    a("s_waitcnt lgkmcnt(0)")
    KA = 144
    for ft in range(2):
        for rt in range(2):
            r = KA + ft * 4 + rt * 2
            a(f"ds_read_b64_tr_b16 v[{r}:{r+1}], v15 offset:{rt*1024+ft*32}")
    ONES = 152
    for i in range(4):
        a(f"v_mov_b32 v{ONES+i}, 0x3f803f80")
    a("s_waitcnt lgkmcnt(0)")
    a.nop(1)
    DK = 160
    for ft in range(2):
        a(f"v_mfma_f32_16x16x32_bf16 v[{DK+4*ft}:{DK+4*ft+3}], v[{KA+4*ft}:{KA+4*ft+3}], v[{VB}:{VB+3}], 0")
    for ft in range(2):
        a(f"v_mfma_f32_16x16x32_bf16 v[{DK+8+4*ft}:{DK+8+4*ft+3}], v[{KA+4*ft}:{KA+4*ft+3}], v[{ONES}:{ONES+3}], 0")
    a("s_mul_i32 s57, s36, 2176")
    a(f"s_add_u32 s57, s57, {K1_RED}")
    a(f"v_lshlrev_b32 v15, 7, v{VM}")
    a(f"v_lshl_add_u32 v15, v{VG}, 4, v15")
    a("v_add_u32 v15, s57, v15")
    a(f"v_lshlrev_b32 v14, 4, v{VG}")
    a("v_add_u32 v14, s57, v14")
    a.nop(6)
    a(f"ds_write_b128 v15, v[{DK}:{DK+3}]")
    a(f"ds_write_b128 v15, v[{DK+4}:{DK+7}] offset:64")
    a(f"ds_write_b128 v14, v[{DK+8}:{DK+11}] offset:2048")
    a(f"ds_write_b128 v14, v[{DK+12}:{DK+15}] offset:2112")
    a("s_waitcnt lgkmcnt(0)")
    a("s_barrier")
    a("v_and_b32 v14, 255, v0")
    a("v_lshlrev_b32 v14, 2, v14")
    a("s_mul_i32 s57, s38, 4*2176")
    a(f"s_add_u32 s57, s57, {K1_RED}")
    a("v_add_u32 v15, s57, v14")
    for e in range(3):
        for m in range(4):
            a(f"ds_read_b32 v{32+e*4+m}, v15 offset:{m*2176+e*1024}")
    a("s_waitcnt lgkmcnt(0)")
    for e in range(3):
        a(f"v_add_f32 v{32+e*4}, v{32+e*4}, v{33+e*4}")
        a(f"v_add_f32 v{34+e*4}, v{34+e*4}, v{35+e*4}")
    for e in range(3):
        a(f"v_add_f32 v{32+e*4}, v{32+e*4}, v{34+e*4}")
    a("s_mul_i32 s57, s46, 2176")
    a("buffer_atomic_add_f32 v32, v14, s[28:31], s57 offen")
    a("buffer_atomic_add_f32 v36, v14, s[28:31], s57 offen offset:1024")
    a("v_cmp_gt_u32 vcc, 128, v14")
    a("s_and_saveexec_b64 s[60:61], vcc")
    a("s_cbranch_execz K1_END")
    a("buffer_atomic_add_f32 v40, v14, s[28:31], s57 offen offset:2048")
    a.lab("K1_END")
    a.stamp(7)
    a.stamp_out(8, 36)
    a("s_endpgm")
    return kernel_desc(name, 240)


K2_KVB = 64 * 1024
K2_ZB = 96 * 1024
K2_LDS = 98 * 1024


def gen_k2(a):
    name = "k2_kernel"
    kernel_head(a, name)
    a("s_cmp_ge_u32 s2, 256")
    a("s_cbranch_scc1 K2_END")
    a.stamp(0)
    a("s_load_dwordx2 s[4:5], s[0:1], 24")
    a("s_load_dwordx2 s[6:7], s[0:1], 0")
    a("s_load_dwordx2 s[34:35], s[0:1], 96")
    a("v_lshrrev_b32 v1, 6, v0")
    a("s_nop 0")
    a("v_readfirstlane_b32 s36, v1")
    a("s_and_b32 s40, s2, 7")
    a("s_lshr_b32 s41, s2, 3")
    a("s_lshl_b32 s42, s40, 2")
    a("s_lshr_b32 s43, s41, 3")
    a("s_add_u32 s42, s42, s43")
    a("s_and_b32 s43, s41, 7")
    a("s_waitcnt lgkmcnt(0)")
    srd(a, 8, 34, WS_WF + WF_O, 512 * 1024)
    srd(a, 12, 6, 0, 2048 * 1024)
    srd(a, 16, 34, WS_KV, 32 * 544 * 4)
    srd(a, 20, 34, WS_PHIQ, 2048 * 2048)
    srd(a, 24, 34, WS_X1, 2048 * 1024)
    srd(a, 28, 34, WS_STATS, 2048 * 64)
    srd(a, 48, 34, WS_MODF, 3072 * 4)
    VL, VG, VRR, VQ, VM = 1, 2, 3, 4, 5
    lane_decode(a, VL, VG, VRR, VQ, VM)
    a("v_and_b32 v6, 127, v0")
    a("v_lshrrev_b32 v7, 7, v0")
    a("s_movk_i32 s45, 2176")
    a("v_mul_lo_u32 v8, v7, s45")
    a("v_lshl_add_u32 v8, v6, 4, v8")
    KT = 192
    for i in range(16):
        a(f"s_mov_b32 s46, {i*2*2176}")
        a(f"buffer_load_dwordx4 v[{KT+4*i}:{KT+4*i+3}], v8, s[16:19], s46 offen")
    a("v_lshrrev_b32 v9, 3, v0")
    a("v_mul_lo_u32 v9, v9, s45")
    a("v_and_b32 v10, 7, v0")
    a("v_lshl_add_u32 v9, v10, 4, v9")
    a("buffer_load_dwordx4 v[12:15], v9, s[16:19], 0 offen offset:2048")
    VDMA, VP = 16, 17
    a(f"v_lshlrev_b32 v{VDMA}, 4, v{VL}")
    a("s_lshl_b32 s53, s36, 10")
    a("s_lshl_b32 s52, s43, 16")
    a("s_add_u32 s52, s52, s53")
    a("s_lshl_b32 s54, s42, 6")
    a("s_lshl_b32 s55, s36, 4")
    a("s_add_u32 s54, s54, s55")
    a("s_lshl_b32 s55, s54, 11")
    PQ = 64
    for p in range(4):
        for c in range(4 * p, 4 * p + 4):
            a(f"s_add_u32 m0, s53, {c*4096}")
            a(f"s_add_u32 s57, s52, {c*4096}")
            a(f"buffer_load_dwordx4 v{VDMA}, s[8:11], s57 offen lds")
        for h in range(8 * p, 8 * p + 8):
            b = PQ + 4 * h
            if h % 4 == 0:
                a(f"s_add_u32 s58, s55, {h*1024}")
            a(f"buffer_load_dwordx4 v[{b}:{b+3}], v{VDMA}, s[20:23], s58 offen offset:{(h&3)*1024}")
    a.stamp(1)
    a("s_waitcnt vmcnt(48)")
    a("v_lshlrev_b32 v7, 10, v7")
    a("v_lshl_add_u32 v7, v6, 3, v7")
    a(f"v_add_u32 v7, {K2_KVB}, v7")
    for i in range(16):
        k = KT + 4 * i
        a(f"v_cvt_pk_bf16_f32 v{k}, v{k}, v{k+1}")
        a(f"v_cvt_pk_bf16_f32 v{k+1}, v{k+2}, v{k+3}")
        a(f"ds_write_b64 v7, v[{k}:{k+1}] offset:{i*2048}")
    a("v_cvt_pk_bf16_f32 v12, v12, v13")
    a("v_cvt_pk_bf16_f32 v13, v14, v15")
    a("v_lshlrev_b32 v9, 3, v0")
    a(f"v_add_u32 v9, {K2_ZB}, v9")
    a("ds_write_b64 v9, v[12:13]")
    a(f"v_lshlrev_b32 v18, 10, v{VM}")
    a(f"v_lshl_add_u32 v18, v{VG}, 3, v18")
    a("s_lshl_b32 s56, s54, 10")
    a("s_lshl_b32 s57, s43, 7")
    a("s_add_u32 s56, s56, s57")
    XR = 224
    GA = 232
    a(f"v_lshlrev_b32 v19, 4, v{VG}")
    a("s_lshl_b32 s57, s43, 8")
    a("s_add_u32 s57, s57, 4096")
    a("s_waitcnt lgkmcnt(0)")
    for t in range(4):
        a(f"buffer_load_dwordx2 v[{XR+2*t}:{XR+2*t+1}], v18, s[12:15], s56 offen offset:{t*32}")
    for t in range(4):
        a(f"buffer_load_dwordx4 v[{GA+4*t}:{GA+4*t+3}], v19, s[48:51], s57 offen offset:{t*64}")
    VKV, VZ = 22, 23
    a(f"v_lshlrev_b32 v{VKV}, 6, v{VM}")
    a(f"v_lshl_add_u32 v{VKV}, v{VG}, 4, v{VKV}")
    a(f"v_add_u32 v{VKV}, {K2_KVB}, v{VKV}")
    a(f"v_lshlrev_b32 v{VZ}, 4, v{VG}")
    a(f"v_add_u32 v{VZ}, {K2_ZB}, v{VZ}")
    ACC = 24
    for i in range(16):
        a(f"v_mov_b32 v{ACC+i}, 0")
    KF = 40
    ND = 192
    OB = [56, 60]
    WF = 208
    a("s_mov_b32 s60, 0x358637bd")

    def kv_reads(j):
        for hh in range(2):
            h = 2 * j + hh
            a(f"ds_read_b128 v[{KF+8*hh}:{KF+8*hh+3}], v{VKV} offset:{h*1024}")
            a(f"ds_read_b128 v[{KF+8*hh+4}:{KF+8*hh+7}], v{VZ} offset:{h*64}")

    def o_mfma(j):
        for hh in range(2):
            h = 2 * j + hh
            b = PQ + 4 * h
            a(f"v_mfma_f32_16x16x32_bf16 v[{ND+8*hh}:{ND+8*hh+3}], v[{KF+8*hh}:{KF+8*hh+3}], v[{b}:{b+3}], 0")
            a(f"v_mfma_f32_16x16x32_bf16 v[{ND+8*hh+4}:{ND+8*hh+7}], v[{KF+8*hh+4}:{KF+8*hh+7}], v[{b}:{b+3}], 0")

    def o_valu(j):
        ob = OB[j & 1]
        for hh in range(2):
            n = ND + 8 * hh
            a(f"v_add_f32 v{n+4}, s60, v{n+4}")
        for hh in range(2):
            n = ND + 8 * hh
            a(f"v_rcp_f32 v{n+4}, v{n+4}")
        a.nop(1)
        for hh in range(2):
            n = ND + 8 * hh
            for r in range(4):
                a(f"v_mul_f32 v{n+r}, v{n+r}, v{n+4}")
        for hh in range(2):
            n = ND + 8 * hh
            a(f"v_cvt_pk_bf16_f32 v{ob+2*hh}, v{n}, v{n+1}")
            a(f"v_cvt_pk_bf16_f32 v{ob+2*hh+1}, v{n+2}, v{n+3}")

    def wo_reads(j):
        for t in range(4):
            r = WF + 4 * t
            a(f"ds_read_b128 v[{r}:{r+3}], v{VDMA} offset:{j*4096+t*1024}")

    def main_mfma(j):
        ob = OB[j & 1]
        for t in range(4):
            d = ACC + 4 * t
            a(f"v_mfma_f32_16x16x32_bf16 v[{d}:{d+3}], v[{WF+4*t}:{WF+4*t+3}], v[{ob}:{ob+3}], v[{d}:{d+3}]")

    for j in range(16):
        if j % 4 == 0:
            p = j // 4
            a(f"s_waitcnt vmcnt({(3-p)*12+8}) lgkmcnt(0)")
            a("s_barrier")
            a.stamp(2+p)
        kv_reads(j)
        wo_reads(j)
        a("s_waitcnt lgkmcnt(4)")
        o_mfma(j)
        a.nop(8)
        o_valu(j)
        a("s_waitcnt lgkmcnt(0)")
        a.nop(1)
        main_mfma(j)
    a.stamp(6)
    a("s_waitcnt vmcnt(0)")
    a.nop(8)
    X = 64
    for t in range(4):
        for d in range(2):
            a(f"v_lshlrev_b32 v{X+4*t+2*d}, 16, v{XR+2*t+d}")
            a(f"v_and_b32 v{X+4*t+2*d+1}, 0xffff0000, v{XR+2*t+d}")
    for t in range(4):
        d = ACC + 4 * t
        a(f"v_cvt_pk_bf16_f32 v{d}, v{d}, v{d+1}")
        a(f"v_cvt_pk_bf16_f32 v{d+2}, v{d+2}, v{d+3}")
    for t in range(4):
        d = ACC + 4 * t
        a(f"v_and_b32 v{d+1}, 0xffff0000, v{d}")
        a(f"v_lshlrev_b32 v{d}, 16, v{d}")
        a(f"v_and_b32 v{d+3}, 0xffff0000, v{d+2}")
        a(f"v_lshlrev_b32 v{d+2}, 16, v{d+2}")
    for i in range(16):
        a(f"v_mul_f32 v{ACC+i}, v{ACC+i}, v{GA+i}")
    for t in range(4):
        d = ACC + 4 * t
        a(f"v_cvt_pk_bf16_f32 v{d}, v{d}, v{d+1}")
        a(f"v_cvt_pk_bf16_f32 v{d+2}, v{d+2}, v{d+3}")
    for t in range(4):
        d = ACC + 4 * t
        a(f"v_and_b32 v{d+1}, 0xffff0000, v{d}")
        a(f"v_lshlrev_b32 v{d}, 16, v{d}")
        a(f"v_and_b32 v{d+3}, 0xffff0000, v{d+2}")
        a(f"v_lshlrev_b32 v{d+2}, 16, v{d+2}")
    for i in range(16):
        a(f"v_add_f32 v{X+i}, v{X+i}, v{ACC+i}")
    PK = 80
    for t in range(4):
        a(f"v_cvt_pk_bf16_f32 v{PK+2*t}, v{X+4*t}, v{X+4*t+1}")
        a(f"v_cvt_pk_bf16_f32 v{PK+2*t+1}, v{X+4*t+2}, v{X+4*t+3}")
    for t in range(4):
        for d in range(2):
            a(f"v_lshlrev_b32 v{X+4*t+2*d}, 16, v{PK+2*t+d}")
            a(f"v_and_b32 v{X+4*t+2*d+1}, 0xffff0000, v{PK+2*t+d}")
    a(f"v_add_f32 v90, v{X}, v{X+1}")
    for i in range(2, 16):
        a(f"v_add_f32 v90, v90, v{X+i}")
    xgroup_reduce(a, [90], [91], "v_add_f32")
    a("v_mul_f32 v90, 0x3c800000, v90")
    for i in range(16):
        a(f"v_sub_f32 v{X+i}, v{X+i}, v90")
    a(f"v_mul_f32 v91, v{X}, v{X}")
    for i in range(1, 16):
        a(f"v_fmac_f32 v91, v{X+i}, v{X+i}")
    xgroup_reduce(a, [91], [92], "v_add_f32")
    a(f"v_permlane16_swap_b32 v{PK}, v{PK+2}")
    a(f"v_permlane16_swap_b32 v{PK+1}, v{PK+3}")
    a(f"v_permlane16_swap_b32 v{PK+4}, v{PK+6}")
    a(f"v_permlane16_swap_b32 v{PK+5}, v{PK+7}")
    a(f"v_and_b32 v92, 1, v{VG}")
    a(f"v_lshrrev_b32 v93, 1, v{VG}")
    a(f"v_lshlrev_b32 v94, 4, v{VM}")
    a("v_lshl_add_u32 v94, v92, 9, v94")
    a("v_lshl_add_u32 v94, v93, 8, v94")
    a("s_lshr_b32 s59, s54, 4")
    a("s_lshl_b32 s59, s59, 4")
    a("s_lshl_b32 s57, s43, 1")
    a("s_add_u32 s59, s59, s57")
    a("s_lshl_b32 s59, s59, 10")
    a(f"buffer_store_dwordx4 v[{PK}:{PK+3}], v94, s[24:27], s59 offen")
    a(f"buffer_store_dwordx4 v[{PK+4}:{PK+7}], v94, s[24:27], s59 offen offset:1024")
    a(f"v_lshlrev_b32 v95, 6, v{VM}")
    a("s_lshl_b32 s57, s54, 6")
    a("s_lshl_b32 s58, s43, 3")
    a("s_add_u32 s57, s57, s58")
    a(f"v_cmp_gt_u32 vcc, 16, v{VL}")
    a("s_and_saveexec_b64 s[60:61], vcc")
    a("buffer_store_dwordx2 v[90:91], v95, s[28:31], s57 offen")
    a.lab("K2_END")
    a.stamp(7)
    a.stamp_out(8, 36)
    a("s_endpgm")
    return kernel_desc(name, 256)


K3_MOD = 144 * 1024
K3_LDS = 148 * 1024


def gen_k3(a):
    name = "k3_kernel"
    kernel_head(a, name)
    a("s_cmp_ge_u32 s2, 240")
    a("s_cbranch_scc1 K3_END")
    a.stamp(0)
    a("s_load_dwordx2 s[4:5], s[0:1], 40")
    a("s_load_dwordx2 s[6:7], s[0:1], 48")
    a("s_load_dwordx2 s[34:35], s[0:1], 96")
    a("v_lshrrev_b32 v1, 6, v0")
    a("s_nop 0")
    a("v_readfirstlane_b32 s36, v1")
    a("s_and_b32 s40, s2, 7")
    a("s_lshr_b32 s41, s2, 3")
    a("s_lshl_b32 s42, s40, 1")
    a("s_cmp_ge_u32 s41, 15")
    a("s_cselect_b32 s44, 1, 0")
    a("s_add_u32 s42, s42, s44")
    a("s_mul_i32 s44, s44, 15")
    a("s_sub_u32 s43, s41, s44")
    a("s_and_b32 s37, s36, 3")
    a("s_lshr_b32 s38, s36, 2")
    a("s_waitcnt lgkmcnt(0)")
    srd(a, 8, 4, 0, 512 * 2752)
    srd(a, 12, 6, 0, 512 * 2752)
    srd(a, 16, 34, WS_X1, 2048 * 1024)
    srd(a, 20, 34, WS_STATS, 2048 * 64)
    srd(a, 24, 34, WS_HH, 2048 * 2752)
    srd(a, 48, 34, WS_MODF, 3072 * 4)
    VL, VG, VRR, VQ, VM = 1, 2, 3, 4, 5
    lane_decode(a, VL, VG, VRR, VQ, VM)
    a("v_lshlrev_b32 v6, 2, v0")
    a("s_movk_i32 s45, 6144")
    a("buffer_load_dword v16, v6, s[48:51], s45 offen")
    a("buffer_load_dword v17, v6, s[48:51], s45 offen offset:2048")
    a("s_lshl_b32 s54, s42, 7")
    a("s_lshl_b32 s55, s37, 5")
    a("s_add_u32 s54, s54, s55")
    a(f"v_lshlrev_b32 v7, 6, v{VM}")
    a("s_lshl_b32 s45, s54, 6")
    ST = 192
    for rt in range(2):
        for q in range(4):
            a(f"buffer_load_dwordx4 v[{ST+16*rt+4*q}:{ST+16*rt+4*q+3}], v7, s[20:23], s45 offen offset:{rt*1024+q*16}")
    VDMA, VX = 8, 9
    dma_voffset(a, VDMA, VG, VRR, VQ, 10, 2752, 8)
    a(f"v_lshlrev_b32 v{VX}, 10, v{VM}")
    a(f"v_lshl_add_u32 v{VX}, v{VG}, 4, v{VX}")
    a("s_lshr_b32 s52, s36, 1")
    a("s_lshl_b32 s52, s52, 5")
    a("s_and_b32 s53, s36, 1")
    a("s_lshl_b32 s53, s53, 2")
    a("s_add_u32 s52, s52, s53")
    a("s_mul_i32 s52, s52, 2752")
    a("s_mul_i32 s53, s43, 192")
    a("s_add_u32 s52, s52, s53")
    a("s_lshl_b32 s53, s36, 10")
    a("s_lshl_b32 s55, s54, 10")
    a("s_add_u32 s56, s55, 16384")
    XB = 64

    def issue_quarter(qt):
        slot = qt % 3
        for seg in range(6):
            S = 8 if seg < 3 else 12
            a(f"s_add_u32 s57, s52, {qt*128*2752 + (seg%3)*64}")
            a(f"s_add_u32 s58, s53, {slot*49152 + seg*8192}")
            a("s_mov_b32 m0, s58")
            a("s_nop 0")
            a(f"buffer_load_dwordx4 v{VDMA}, s[{S}:{S+3}], s57 offen lds")
        for cl in range(4):
            for rt in range(2):
                b = XB + ((slot * 2 + rt) * 4 + cl) * 4
                a(f"buffer_load_dwordx4 v[{b}:{b+3}], v{VX}, s[16:19], s{55+rt} offen offset:{(qt*4+cl)*64}")

    for qt in range(3):
        issue_quarter(qt)
    a.stamp(1)
    a("s_waitcnt vmcnt(50)")
    a("v_add_f32 v17, 1.0, v17")
    a("v_cvt_pk_bf16_f32 v17, v17, v17")
    a("v_lshlrev_b32 v17, 16, v17")
    a(f"v_add_u32 v6, {K3_MOD}, v6")
    a("ds_write_b32 v6, v17")
    a("ds_write_b32 v6, v16 offset:2048")
    a("s_waitcnt vmcnt(42)")
    RS = [10, 11]
    NM = [12, 13]
    for rt in range(2):
        s = ST + 16 * rt
        a(f"v_add_f32 v14, v{s}, v{s+2}")
        for i in range(2, 8):
            a(f"v_add_f32 v14, v14, v{s+2*i}")
        a("v_mul_f32 v14, 0x3e000000, v14")
        a(f"v_add_f32 v15, v{s+1}, v{s+3}")
        for i in range(2, 8):
            a(f"v_add_f32 v15, v15, v{s+2*i+1}")
        for i in range(8):
            a(f"v_sub_f32 v{s+2*i}, v{s+2*i}, v14")
        a(f"v_mul_f32 v{s+1}, v{s}, v{s}")
        for i in range(1, 8):
            a(f"v_fmac_f32 v{s+1}, v{s+2*i}, v{s+2*i}")
        a(f"v_fmac_f32 v15, 0x42800000, v{s+1}")
        a("s_mov_b32 s45, 0x3727c5ac")
        a(f"v_mov_b32 v{RS[rt]}, s45")
        a(f"v_fmac_f32 v{RS[rt]}, 0x3b000000, v15")
        a(f"v_rsq_f32 v{RS[rt]}, v{RS[rt]}")
        a.nop(1)
        a(f"v_mul_f32 v{NM[rt]}, v14, v{RS[rt]}")
        a(f"v_sub_f32 v{NM[rt]}, 0, v{NM[rt]}")
    VT = [14, 15, 16]
    tr_addr(a, 17, VG, VRR, VQ, 18, tprime_const=0)
    tr_addr(a, 19, VG, VRR, VQ, 18, tprime_const=1)
    a("s_cmp_eq_u32 s38, 0")
    a("s_cselect_b64 s[60:61], -1, 0")
    a("v_add_u32 v20, 8192, v19")
    a("v_cndmask_b32 v14, v20, v17, s[60:61]")
    a("v_add_u32 v20, 16384, v17")
    a("v_cndmask_b32 v15, v20, v19, s[60:61]")
    a("v_add_u32 v20, 16384, v19")
    a("v_add_u32 v21, 8192, v17")
    a("v_cndmask_b32 v16, v20, v21, s[60:61]")
    VMODA = 17
    a(f"v_lshlrev_b32 v{VMODA}, 5, v{VG}")
    a(f"v_add_u32 v{VMODA}, {K3_MOD}, v{VMODA}")
    ACC = 160
    for i in range(48):
        a(f"v_mov_b32 v{ACC+i}, 0")
    AF = [208, 232]
    MD = 32
    TMP = 48

    def a_reads(c, buf):
        slot = (c // 4) % 3
        cl = c % 4
        f = AF[buf]
        for gu in range(2):
            for tt in range(3):
                for half in range(2):
                    r = f + (gu * 3 + tt) * 4 + half * 2
                    off = slot * 49152 + gu * 24576 + cl * 2048 + half * 1024
                    if off < 65536:
                        a(f"ds_read_b64_tr_b16 v[{r}:{r+1}], v{VT[tt]} offset:{off}")
                    else:
                        a(f"ds_read_b64_tr_b16 v[{r}:{r+1}], v{VTH[tt]} offset:{off-65536}")

    VTH = [18, 19, 20]
    for tt in range(3):
        a(f"v_add_u32 v{VTH[tt]}, 0x10000, v{VT[tt]}")
    VTH2 = None

    def mod_reads(c):
        m = MD
        a(f"ds_read_b128 v[{m}:{m+3}], v{VMODA} offset:{c*128}")
        a(f"ds_read_b128 v[{m+4}:{m+7}], v{VMODA} offset:{c*128+16}")
        a(f"ds_read_b128 v[{m+8}:{m+11}], v{VMODA} offset:{2048+c*128}")
        a(f"ds_read_b128 v[{m+12}:{m+15}], v{VMODA} offset:{2048+c*128+16}")

    def modulate(c):
        slot = (c // 4) % 3
        cl = c % 4
        m = MD
        for rt in range(2):
            b = XB + ((slot * 2 + rt) * 4 + cl) * 4
            for d in range(4):
                a(f"v_lshlrev_b32 v{TMP+2*d}, 16, v{b+d}")
                a(f"v_and_b32 v{TMP+2*d+1}, 0xffff0000, v{b+d}")
            for e in range(8):
                a(f"v_fma_f32 v{TMP+e}, v{TMP+e}, v{RS[rt]}, v{NM[rt]}")
            for e in range(8):
                a(f"v_fma_f32 v{TMP+e}, v{TMP+e}, v{m+e}, v{m+8+e}")
            for d in range(4):
                a(f"v_cvt_pk_bf16_f32 v{b+d}, v{TMP+2*d}, v{TMP+2*d+1}")

    def mfmas(c, buf):
        slot = (c // 4) % 3
        cl = c % 4
        f = AF[buf]
        for rt in range(2):
            b = XB + ((slot * 2 + rt) * 4 + cl) * 4
            for gu in range(2):
                for tt in range(3):
                    d = ACC + ((gu * 3 + tt) * 2 + rt) * 4
                    fa = f + (gu * 3 + tt) * 4
                    a(f"v_mfma_f32_16x16x32_bf16 v[{d}:{d+3}], v[{fa}:{fa+3}], v[{b}:{b+3}], v[{d}:{d+3}]")

    for qt in range(4):
        if qt == 0:
            a("s_waitcnt vmcnt(28) lgkmcnt(0)")
        elif qt == 1:
            a("s_waitcnt vmcnt(14) lgkmcnt(0)")
        elif qt == 2:
            a("s_waitcnt vmcnt(14) lgkmcnt(0)")
        else:
            a("s_waitcnt vmcnt(0) lgkmcnt(0)")
        a("s_barrier")
        a.stamp(2+qt)
        if qt == 1:
            issue_quarter(3)
        mod_reads(4 * qt)
        a_reads(4 * qt, 0)
        for ci in range(4):
            c = 4 * qt + ci
            buf = ci & 1
            a("s_waitcnt lgkmcnt(12)" )
            modulate(c)
            if ci < 3:
                mod_reads(c + 1) if False else None
                a_reads(c + 1, buf ^ 1)
                a("s_waitcnt lgkmcnt(12)")
            else:
                a("s_waitcnt lgkmcnt(0)")
            mfmas(c, buf)
            if ci < 3:
                mod_reads(c + 1)
                a("s_waitcnt lgkmcnt(0)")
                a("s_nop 0")
    a.stamp(6)
    a.nop(8)
    a("s_mov_b32 s60, 0x3d372713")
    a("s_mov_b32 s61, 0xc0135761")
    G = ACC
    U = ACC + 24
    for i in range(0, 48, 2):
        a(f"v_cvt_pk_bf16_f32 v{ACC+i}, v{ACC+i}, v{ACC+i+1}")
    for i in range(0, 48, 2):
        a(f"v_and_b32 v{ACC+i+1}, 0xffff0000, v{ACC+i}")
        a(f"v_lshlrev_b32 v{ACC+i}, 16, v{ACC+i}")
    T = 64
    for i in range(24):
        a(f"v_mul_f32 v{T+i}, v{G+i}, v{G+i}")
    for i in range(24):
        a(f"v_fma_f32 v{T+i}, v{T+i}, s60, 1.0")
    for i in range(24):
        a(f"v_mul_f32 v{T+i}, v{T+i}, v{G+i}")
    for i in range(24):
        a(f"v_mul_f32 v{T+i}, s61, v{T+i}")
    for i in range(24):
        a(f"v_exp_f32 v{T+i}, v{T+i}")
    for i in range(24):
        a(f"v_add_f32 v{T+i}, 1.0, v{T+i}")
    for i in range(24):
        a(f"v_rcp_f32 v{T+i}, v{T+i}")
    for i in range(24):
        a(f"v_mul_f32 v{T+i}, v{T+i}, v{G+i}")
    for i in range(0, 24, 2):
        a(f"v_cvt_pk_bf16_f32 v{T+i}, v{T+i}, v{T+i+1}")
    for i in range(0, 24, 2):
        a(f"v_and_b32 v{T+i+1}, 0xffff0000, v{T+i}")
        a(f"v_lshlrev_b32 v{T+i}, 16, v{T+i}")
    for i in range(24):
        a(f"v_mul_f32 v{T+i}, v{T+i}, v{U+i}")
    PK = 96
    for rt in range(2):
        for tt in range(3):
            s = T + (tt * 2 + rt) * 4
            a(f"v_cvt_pk_bf16_f32 v{PK+rt*6+tt*2}, v{s}, v{s+1}")
            a(f"v_cvt_pk_bf16_f32 v{PK+rt*6+tt*2+1}, v{s+2}, v{s+3}")
    a("s_mov_b32 s45, 2752")
    a(f"v_mul_lo_u32 v110, v{VM}, s45")
    a(f"v_lshl_add_u32 v110, v{VG}, 3, v110")
    a("s_mul_i32 s57, s54, 2752")
    a("s_mul_i32 s58, s43, 192")
    a("s_add_u32 s57, s57, s58")
    a("s_mul_i32 s58, s38, 96")
    a("s_add_u32 s57, s57, s58")
    a("s_add_u32 s58, s57, 16*2752")
    a("s_mul_i32 s59, s43, 96")
    a("s_mul_i32 s62, s38, 48")
    a("s_add_u32 s59, s59, s62")
    for tt in range(3):
        a(f"s_add_u32 s62, s59, {16*tt}")
        a("s_cmp_ge_u32 s62, 1376")
        a("s_cbranch_scc1 K3_END")
        for rt in range(2):
            r = PK + rt * 6 + tt * 2
            a(f"buffer_store_dwordx2 v[{r}:{r+1}], v110, s[24:27], s{57+rt} offen offset:{tt*32}")
    a.lab("K3_END")
    a.stamp(7)
    a.stamp_out(8, 36)
    a("s_endpgm")
    return kernel_desc(name, 256)


K4_SLOTS = 38
K4_LDS = K4_SLOTS * 4096


def gen_k4(a):
    name = "k4_kernel"
    kernel_head(a, name)
    a("s_cmp_ge_u32 s2, 256")
    a("s_cbranch_scc1 K4_END")
    a.stamp(0)
    a("s_load_dwordx2 s[4:5], s[0:1], 56")
    a("s_load_dwordx2 s[6:7], s[0:1], 80")
    a("s_load_dwordx2 s[34:35], s[0:1], 96")
    a("v_lshrrev_b32 v1, 6, v0")
    a("s_nop 0")
    a("v_readfirstlane_b32 s36, v1")
    a("s_and_b32 s40, s2, 7")
    a("s_lshr_b32 s41, s2, 3")
    a("s_lshl_b32 s42, s40, 2")
    a("s_lshr_b32 s43, s41, 3")
    a("s_add_u32 s42, s42, s43")
    a("s_and_b32 s43, s41, 7")
    a("s_waitcnt lgkmcnt(0)")
    srd(a, 8, 34, WS_WF + WF_D, 8 * 43 * 4096)
    srd(a, 12, 6, 0, 2048 * 1024)
    srd(a, 16, 34, WS_HH, 2048 * 2752)
    srd(a, 24, 34, WS_X1, 2048 * 1024)
    srd(a, 48, 34, WS_MODF, 3072 * 4)
    VL, VG, VRR, VQ, VM = 1, 2, 3, 4, 5
    lane_decode(a, VL, VG, VRR, VQ, VM)
    VDMA, VH = 8, 9
    a(f"v_lshlrev_b32 v{VDMA}, 4, v{VL}")
    a("s_lshl_b32 s53, s36, 10")
    a("s_mul_i32 s52, s43, 43*4096")
    a("s_add_u32 s52, s52, s53")
    a("s_lshl_b32 s54, s42, 6")
    a("s_lshl_b32 s55, s36, 4")
    a("s_add_u32 s54, s54, s55")
    a("s_lshr_b32 s55, s54, 4")
    a("s_mul_i32 s55, s55, 43*1024")
    HB = 64

    def issue(c):
        slot = c % K4_SLOTS
        b = HB + 4 * c
        a(f"s_add_u32 m0, s53, {slot*4096}")
        a(f"s_add_u32 s57, s52, {c*4096}")
        a(f"buffer_load_dwordx4 v{VDMA}, s[8:11], s57 offen lds")
        a(f"s_add_u32 s58, s55, {(c>>2)*4096}")
        a(f"buffer_load_dwordx4 v[{b}:{b+3}], v{VDMA}, s[16:19], s58 offen offset:{(c&3)*1024}")

    NPRE = 28
    for c in range(NPRE):
        issue(c)
    a.stamp(1)
    VTB = [VDMA, 12, 13]
    a(f"v_add_u32 v12, 0x10000, v{VDMA}")
    a(f"v_add_u32 v13, 0x20000, v{VDMA}")
    ACC = 16
    for i in range(16):
        a(f"v_mov_b32 v{ACC+i}, 0")
    AF = [32, 48]

    def a_reads(c, buf):
        slot = c % K4_SLOTS
        f = AF[buf]
        for t in range(4):
            off = slot * 4096 + t * 1024
            r = f + 4 * t
            a(f"ds_read_b128 v[{r}:{r+3}], v{VTB[off >> 16]} offset:{off & 0xffff}")

    def mfmas(c, buf):
        f = AF[buf]
        b = HB + 4 * c
        for t in range(4):
            d = ACC + 4 * t
            a(f"v_mfma_f32_16x16x32_bf16 v[{d}:{d+3}], v[{f+4*t}:{f+4*t+3}], v[{b}:{b+3}], v[{d}:{d+3}]")

    issued = NPRE
    phases = [list(range(i, min(i + 4, 43))) for i in range(0, 43, 4)]
    for pi, ph in enumerate(phases):
        need = ph[-1] + 1
        a(f"s_waitcnt vmcnt({2*(issued-need)}) lgkmcnt(0)")
        a("s_barrier")
        if pi in (0, 3, 6, 9):
            a.stamp(2 + pi // 3)
        nmore = 0
        while issued < 43 and nmore < 4 and (issued - K4_SLOTS) < ph[0]:
            issue(issued)
            issued += 1
            nmore += 1
        a_reads(ph[0], 0)
        for ci, c in enumerate(ph):
            buf = ci & 1
            if ci + 1 < len(ph):
                a_reads(ph[ci + 1], buf ^ 1)
                a("s_waitcnt lgkmcnt(4)")
            else:
                a("s_waitcnt lgkmcnt(0)")
            mfmas(c, buf)
    assert issued == 43
    a.stamp(6)
    a(f"v_lshrrev_b32 v36, 1, v{VG}")
    a(f"v_lshlrev_b32 v36, 8, v36")
    a(f"v_lshl_add_u32 v36, v{VM}, 4, v36")
    a(f"v_and_b32 v37, 1, v{VG}")
    a(f"v_lshl_add_u32 v36, v37, 3, v36")
    a("s_lshr_b32 s59, s54, 4")
    a("s_lshl_b32 s59, s59, 4")
    a("s_lshl_b32 s57, s43, 1")
    a("s_add_u32 s59, s59, s57")
    a("s_lshl_b32 s59, s59, 10")
    a("s_lshl_b32 s56, s54, 10")
    a("s_lshl_b32 s57, s43, 7")
    a("s_add_u32 s56, s56, s57")
    XR, GB = 40, 48
    a(f"v_lshlrev_b32 v37, 4, v{VG}")
    a("s_lshl_b32 s57, s43, 8")
    a("s_add_u32 s57, s57, 2560*4")
    a.nop(4)
    for t in range(4):
        a(f"buffer_load_dwordx2 v[{XR+2*t}:{XR+2*t+1}], v36, s[24:27], s59 offen offset:{(t>>1)*1024+(t&1)*512}")
    for t in range(4):
        a(f"buffer_load_dwordx4 v[{GB+4*t}:{GB+4*t+3}], v37, s[48:51], s57 offen offset:{t*64}")
    a.nop(4)
    for t in range(4):
        d = ACC + 4 * t
        a(f"v_cvt_pk_bf16_f32 v{d}, v{d}, v{d+1}")
        a(f"v_cvt_pk_bf16_f32 v{d+2}, v{d+2}, v{d+3}")
    for t in range(4):
        d = ACC + 4 * t
        a(f"v_and_b32 v{d+1}, 0xffff0000, v{d}")
        a(f"v_lshlrev_b32 v{d}, 16, v{d}")
        a(f"v_and_b32 v{d+3}, 0xffff0000, v{d+2}")
        a(f"v_lshlrev_b32 v{d+2}, 16, v{d+2}")
    a("s_waitcnt vmcnt(0)")
    for i in range(16):
        a(f"v_mul_f32 v{ACC+i}, v{ACC+i}, v{GB+i}")
    for t in range(4):
        d = ACC + 4 * t
        a(f"v_cvt_pk_bf16_f32 v{d}, v{d}, v{d+1}")
        a(f"v_cvt_pk_bf16_f32 v{d+2}, v{d+2}, v{d+3}")
    for t in range(4):
        d = ACC + 4 * t
        a(f"v_and_b32 v{d+1}, 0xffff0000, v{d}")
        a(f"v_lshlrev_b32 v{d}, 16, v{d}")
        a(f"v_and_b32 v{d+3}, 0xffff0000, v{d+2}")
        a(f"v_lshlrev_b32 v{d+2}, 16, v{d+2}")
    X = 64
    for t in range(4):
        for d in range(2):
            a(f"v_lshlrev_b32 v{X+4*t+2*d}, 16, v{XR+2*t+d}")
            a(f"v_and_b32 v{X+4*t+2*d+1}, 0xffff0000, v{XR+2*t+d}")
    for i in range(16):
        a(f"v_add_f32 v{X+i}, v{X+i}, v{ACC+i}")
    PK = 80
    for t in range(4):
        a(f"v_cvt_pk_bf16_f32 v{PK+2*t}, v{X+4*t}, v{X+4*t+1}")
        a(f"v_cvt_pk_bf16_f32 v{PK+2*t+1}, v{X+4*t+2}, v{X+4*t+3}")
    a(f"v_and_b32 v92, 1, v{VG}")
    a(f"v_lshrrev_b32 v93, 1, v{VG}")
    a(f"v_lshlrev_b32 v94, 10, v{VM}")
    a("v_lshl_add_u32 v94, v92, 5, v94")
    a("v_lshl_add_u32 v94, v93, 4, v94")
    a(f"v_permlane16_swap_b32 v{PK}, v{PK+2}")
    a(f"v_permlane16_swap_b32 v{PK+1}, v{PK+3}")
    a(f"v_permlane16_swap_b32 v{PK+4}, v{PK+6}")
    a(f"v_permlane16_swap_b32 v{PK+5}, v{PK+7}")
    a.nop(1)
    a(f"buffer_store_dwordx4 v[{PK}:{PK+3}], v94, s[12:15], s56 offen")
    a(f"buffer_store_dwordx4 v[{PK+4}:{PK+7}], v94, s[12:15], s56 offen offset:64")
    a.lab("K4_END")
    a.stamp(7)
    a.stamp_out(8, 36)
    a("s_endpgm")
    return kernel_desc(name, 240)


def main():
    global gen_k1, K1_LDS, gen_k3, K3_LDS
    import k3v2
    gen_k3 = k3v2.gen_k3
    K3_LDS = k3v2.K3_LDS
    K1T = 512
    if os.environ.get("K1V", "2") == "2":
        import k1v2
        gen_k1 = k1v2.gen_k1
        K1_LDS = k1v2.K1_LDS
        K1T = 256
    a = A()
    a.raw(f"; @launch kernel=k0_kernel grid=({K0_WGS},1,1) block=(256,1,1) lds=16384")
    a.raw(f"; @launch kernel=k1_kernel grid=(256,1,1) block=({K1T},1,1) lds={K1_LDS}")
    a.raw(f"; @launch kernel=k2_kernel grid=(256,1,1) block=(256,1,1) lds={K2_LDS}")
    a.raw(f"; @launch kernel=k3_kernel grid=(240,1,1) block=(256,1,1) lds={K3_LDS}")
    a.raw(f"; @launch kernel=k4_kernel grid=(256,1,1) block=(256,1,1) lds={K4_LDS}")
    a.raw('.amdgcn_target "amdgcn-amd-amdhsa--gfx950"')
    a.raw(".text")
    descs = []
    for g in (gen_k0, gen_k1, gen_k2, gen_k3, gen_k4):
        descs.append(g(a))
    a.raw('.section .rodata,"a"')
    for d in descs:
        a.raw(".p2align 6")
        a.raw(d)
    out = sys.argv[1] if len(sys.argv) > 1 else f"cdna_kernels/{NAME}.s"
    open(out, "w").write(a.text())


if __name__ == "__main__":
    main()
```

```python
import sys

NAME = "adaLN_cond__linear_kernel_hedgehog__glu_gated_geglu__prompt"

WS_MODP = 0x0
WS_MODF = 0xC000
WS_KV = 0x10000
WS_STATS = 0x30000
WS_XHAT = 0x100000
WS_PHIQ = 0x300000
WS_X1 = 0x700000
WS_HH = 0x900000
WS_WF = 0x1000000
WF_QKV = 0x0
WF_O = 0x200000
WF_GU = 0x300000
WF_D = 0x600000

LOG2E = 0x3fb8aa3b
import os
STAMP = int(os.environ.get("STAMP", "0"))
STAMP_WG = int(os.environ.get("STAMP_WG", "100"))
STAMP_WAVE = int(os.environ.get("STAMP_WAVE", "0"))


class A:
    def __init__(self):
        self.l = []

    def __call__(self, s):
        self.l.append("    " + s)

    def lab(self, s):
        self.l.append(s + ":")

    def raw(self, s):
        self.l.append(s)

    def nop(self, n):
        while n > 0:
            k = min(n, 16)
            self(f"s_nop {k-1}")
            n -= k

    def stamp(self, i):
        if STAMP:
            self(f"s_memtime s[{64+2*i}:{65+2*i}]")

    def stamp_out(self, n, wave_sgpr):
        if not STAMP:
            return
        lab = f"STAMP_SKIP_{len(self.l)}"
        self("s_mov_b64 exec, -1")
        self(f"s_cmp_lg_u32 s2, {STAMP_WG}")
        self(f"s_cbranch_scc1 {lab}")
        self(f"s_cmp_lg_u32 s{wave_sgpr}, {STAMP_WAVE}")
        self(f"s_cbranch_scc1 {lab}")
        self("s_load_dwordx2 s[92:93], s[0:1], 88")
        self("s_waitcnt lgkmcnt(0)")
        self("s_mov_b32 s96, s92")
        self("s_and_b32 s97, s93, 0xffff")
        self("s_mov_b32 s98, 256")
        self("s_mov_b32 s99, 0x00020000")
        self("v_mov_b32 v1, 0")
        for i in range(n):
            self(f"v_mov_b32 v2, s{64+2*i}")
            self(f"buffer_store_dword v2, v1, s[96:99], 0 offen offset:{4*i}")
        self.lab(lab)

    def text(self):
        import re
        for x in self.l:
            m = re.search(r"offset:(\d+)", x)
            if m:
                t = x.strip()
                lim = 4095 if t.startswith("buffer_") else 65535
                assert int(m.group(1)) <= lim, x
        return "\n".join(self.l) + "\n"


def vr(b, n=1):
    return f"v{b}" if n == 1 else f"v[{b}:{b+n-1}]"


def sr(b, n=1):
    return f"s{b}" if n == 1 else f"s[{b}:{b+n-1}]"


def srd(a, dst, ptr, off, nbytes):
    if off:
        a(f"s_add_u32 s{dst}, s{ptr}, 0x{off:x}")
        a(f"s_addc_u32 s{dst+1}, s{ptr+1}, 0")
    else:
        a(f"s_mov_b32 s{dst}, s{ptr}")
        a(f"s_mov_b32 s{dst+1}, s{ptr+1}")
    a(f"s_and_b32 s{dst+1}, s{dst+1}, 0xffff")
    a(f"s_mov_b32 s{dst+2}, 0x{nbytes:x}")
    a(f"s_mov_b32 s{dst+3}, 0x00020000")


def kernel_head(a, name):
    a.raw(f".globl {name}")
    a.raw(".p2align 8")
    a.raw(f".type {name},@function")
    a.lab(name)


def kernel_desc(name, vgpr, sgpr=102, agpr=0):
    acc = (vgpr + 3) // 4 * 4
    return f""".amdhsa_kernel {name}
  .amdhsa_next_free_vgpr {acc + agpr if agpr else vgpr}
  .amdhsa_next_free_sgpr {sgpr}
  .amdhsa_accum_offset {acc}
  .amdhsa_group_segment_fixed_size 0
  .amdhsa_kernarg_size 104
  .amdhsa_user_sgpr_count 2
  .amdhsa_user_sgpr_kernarg_segment_ptr 1
  .amdhsa_system_sgpr_workgroup_id_x 1
.end_amdhsa_kernel
"""


def xgroup_reduce(a, regs, tmps, op):
    for r, t in zip(regs, tmps):
        a(f"v_mov_b32 v{t}, v{r}")
    if len(regs) < 2:
        a.nop(2)
    else:
        a.nop(1)
    for r, t in zip(regs, tmps):
        a(f"v_permlane16_swap_b32 v{r}, v{t}")
    a.nop(1)
    for r, t in zip(regs, tmps):
        a(f"{op} v{r}, v{r}, v{t}")
    for r, t in zip(regs, tmps):
        a(f"v_mov_b32 v{t}, v{r}")
    if len(regs) < 2:
        a.nop(2)
    else:
        a.nop(1)
    for r, t in zip(regs, tmps):
        a(f"v_permlane32_swap_b32 v{r}, v{t}")
    a.nop(1)
    for r, t in zip(regs, tmps):
        a(f"{op} v{r}, v{r}, v{t}")


PREF = int(os.environ.get("PREF", "0"))


def k0_prefetch(a):
    if not PREF:
        return 0
    a("s_load_dwordx2 s[40:41], s[0:1], 8")
    a("s_load_dwordx2 s[42:43], s[0:1], 24")
    a("s_load_dwordx2 s[44:45], s[0:1], 40")
    a("s_load_dwordx2 s[46:47], s[0:1], 48")
    a("s_load_dwordx2 s[48:49], s[0:1], 56")
    a("v_lshlrev_b32 v130, 4, v0")
    a("s_waitcnt lgkmcnt(0)")
    n = 0
    for ptr, tot in ((40, 512*3072), (42, 512*1024), (44, 512*2752), (46, 512*2752), (48, 1376*1024)):
        per = tot // 256
        srd(a, 52, ptr, 0, tot)
        a(f"s_mul_i32 s56, s2, {per}")
        for r in range((per + 4095) // 4096):
            a(f"buffer_load_dwordx4 v[{132+4*(n%4)}:{135+4*(n%4)}], v130, s[52:55], s56 offen offset:{0}" if r == 0 else f"s_add_u32 s56, s56, 4096")
            if r:
                a(f"buffer_load_dwordx4 v[{132+4*(n%4)}:{135+4*(n%4)}], v130, s[52:55], s56 offen")
            n += 1
    return n

def lane_decode(a, vl, vg, vr_, vq, vm):
    a(f"v_and_b32 v{vl}, 63, v0")
    a(f"v_lshrrev_b32 v{vg}, 4, v{vl}")
    a(f"v_bfe_u32 v{vr_}, v{vl}, 2, 2")
    a(f"v_and_b32 v{vq}, 3, v{vl}")
    a(f"v_and_b32 v{vm}, 15, v{vl}")


def dma_voffset(a, dst, vg, vr_, vq, tmp, stride, gmul):
    a(f"v_mul_u32_u24 v{dst}, {gmul}, v{vg}")
    a(f"v_add_u32 v{dst}, v{dst}, v{vr_}")
    a(f"s_mov_b32 s90, {stride}")
    a(f"v_mul_lo_u32 v{dst}, v{dst}, s90")
    a(f"v_and_b32 v{tmp}, 1, v{vg}")
    a(f"v_lshlrev_b32 v{tmp}, 1, v{tmp}")
    a(f"v_xor_b32 v{tmp}, v{tmp}, v{vq}")
    a(f"v_lshl_add_u32 v{dst}, v{tmp}, 4, v{dst}")


def tr_addr(a, dst, vg, vr_, vq, tmp, tprime_vgpr=None, tprime_const=0):
    a(f"v_and_b32 v{tmp}, 1, v{vg}")
    if tprime_vgpr is not None:
        a(f"v_xor_b32 v{tmp}, v{tmp}, v{tprime_vgpr}")
    elif tprime_const:
        a(f"v_xor_b32 v{tmp}, 1, v{tmp}")
    a(f"v_lshlrev_b32 v{dst}, 8, v{vg}")
    a(f"v_lshl_add_u32 v{dst}, v{vr_}, 6, v{dst}")
    a(f"v_lshl_add_u32 v{dst}, v{tmp}, 5, v{dst}")
    a(f"v_lshl_add_u32 v{dst}, v{vq}, 3, v{dst}")
```

```python
from gen_common import *

K1_MOD = 96 * 1024
K1_PK = 100 * 1024
K1_RED = 116 * 1024
K1_LDS = K1_RED + 8 * 2176 + 1024


def interleave(a, mf, others, lead=0):
    n = len(mf)
    k = len(others)
    oi = 0
    for i, m in enumerate(mf):
        a(m)
        tgt = (k * (i + 1) + n - 1) // n
        while oi < tgt:
            a(others[oi])
            oi += 1
    while oi < k:
        a(others[oi])
        oi += 1


def reduce4_groups(a, groups, op):
    a.nop(1)
    for X, Y, U, W in groups:
        a(f"v_permlane16_swap_b32 v{X}, v{Y}")
        a(f"v_permlane16_swap_b32 v{U}, v{W}")
    a.nop(1)
    for X, Y, U, W in groups:
        a(f"{op} v{X}, v{X}, v{Y}")
        a(f"{op} v{U}, v{U}, v{W}")
    a.nop(1)
    for X, Y, U, W in groups:
        a(f"v_permlane32_swap_b32 v{X}, v{U}")
    a.nop(1)
    for X, Y, U, W in groups:
        a(f"{op} v{X}, v{X}, v{U}")


def bcast4_groups(a, groups):
    for X, Y, U, W in groups:
        a(f"v_mov_b32 v{U}, v{X}")
    a.nop(2)
    for X, Y, U, W in groups:
        a(f"v_permlane32_swap_b32 v{X}, v{U}")
    a.nop(1)
    for X, Y, U, W in groups:
        a(f"v_mov_b32 v{Y}, v{X}")
        a(f"v_mov_b32 v{W}, v{U}")
    a.nop(1)
    for X, Y, U, W in groups:
        a(f"v_permlane16_swap_b32 v{X}, v{Y}")
        a(f"v_permlane16_swap_b32 v{U}, v{W}")
    a.nop(1)


def gen_k1(a):
    name = "k1_kernel"
    kernel_head(a, name)
    a("s_cmp_ge_u32 s2, 256")
    a("s_cbranch_scc1 K1_END")
    a.stamp(0)
    a("s_load_dwordx2 s[4:5], s[0:1], 8")
    a("s_load_dwordx2 s[6:7], s[0:1], 16")
    a("s_load_dwordx2 s[34:35], s[0:1], 96")
    a("v_lshrrev_b32 v1, 6, v0")
    a("s_nop 0")
    a("v_readfirstlane_b32 s36, v1")
    a("s_and_b32 s40, s2, 7")
    a("s_lshr_b32 s41, s2, 3")
    a("s_lshr_b32 s42, s40, 1")
    a("s_lshl_b32 s42, s42, 2")
    a("s_lshr_b32 s43, s41, 3")
    a("s_add_u32 s42, s42, s43")
    a("s_and_b32 s43, s40, 1")
    a("s_lshl_b32 s43, s43, 3")
    a("s_and_b32 s44, s41, 7")
    a("s_add_u32 s43, s43, s44")
    VL, VG, VRR, VQ, VM = 1, 2, 3, 4, 5
    lane_decode(a, VL, VG, VRR, VQ, VM)
    VDMA, VX = 8, 9
    a(f"v_lshlrev_b32 v{VDMA}, 4, v{VL}")
    a(f"v_lshlrev_b32 v{VX}, 10, v{VM}")
    a(f"v_lshl_add_u32 v{VX}, v{VG}, 4, v{VX}")
    a("s_mul_i32 s53, s36, 6144")
    a("s_mul_i32 s52, s43, 98304")
    a("s_add_u32 s52, s52, s53")
    a("s_lshl_b32 s54, s42, 7")
    a("s_lshl_b32 s55, s36, 5")
    a("s_add_u32 s54, s54, s55")
    a("s_lshl_b32 s55, s54, 10")
    a("s_add_u32 s56, s55, 16384")
    a("v_lshlrev_b32 v6, 3, v0")
    a(f"v_lshlrev_b32 v7, 7, v{VG}")
    a(f"v_lshl_add_u32 v7, v{VM}, 1, v7")
    a("s_lshl_b32 s46, s43, 1")
    a("s_lshl_b32 s45, s43, 10")
    a("s_waitcnt lgkmcnt(0)")
    srd(a, 8, 34, WS_WF + WF_QKV, 512 * 3072)
    srd(a, 12, 34, WS_XHAT, 2048 * 1024)
    srd(a, 16, 34, WS_MODP, 4 * 3072 * 4)
    XB = 32
    ACC = 160
    MD = 208
    TMP = 240

    vm = []

    def phase_items(p):
        items = []
        for t in range(6):
            items.append((("D", p), [f"s_add_u32 m0, s53, {p*24576 + t*1024}",
                                     f"s_add_u32 s57, s52, {p*24576 + t*1024}",
                                     f"buffer_load_dwordx4 v{VDMA}, s[8:11], s57 offen lds"]))
        for c in range(4 * p, 4 * p + 4):
            for rt in range(2):
                b = XB + (rt * 16 + c) * 4
                pre = [f"s_add_u32 s58, s{55+rt}, {p*4096}"]
                items.append((("X", c), pre + [f"buffer_load_dwordx4 v[{b}:{b+3}], v{VDMA}, s[12:15], s58 offen offset:{(c&3)*1024}"]))
        return items

    def issue_phase(p):
        for tag, ins in phase_items(p):
            for x in ins:
                a(x)
            vm.append(tag)

    def wait_vm(tag):
        last = max(i for i, t in enumerate(vm) if t == tag)
        n = len(vm) - 1 - last
        assert n <= 63
        a(f"s_waitcnt vmcnt({n})")

    for p in range(4):
        a(f"s_mov_b32 s47, {p*3072*4}")
        a(f"buffer_load_dwordx2 v[{240+2*p}:{241+2*p}], v6, s[16:19], s47 offen")
        a(f"buffer_load_dwordx2 v[{248+2*p}:{249+2*p}], v6, s[16:19], s47 offen offset:2048")
        vm.extend(["M", "M"])
    issue_phase(0)
    srd(a, 20, 6, 0, 32 * 512)
    srd(a, 24, 34, WS_PHIQ, 2048 * 2048)
    srd(a, 28, 34, WS_KV, 32 * 544 * 4)
    srd(a, 48, 34, WS_MODF, 3072 * 4)
    for hh in range(2):
        for j in range(4):
            a(f"buffer_load_ushort v{16+4*hh+j}, v7, s[20:23], s45 offen offset:{hh*512+j*32}")
            vm.append("W")
    a("v_lshlrev_b32 v11, 2, v0")
    a("s_lshl_b32 s47, s2, 5")
    a("s_add_u32 s47, s47, 4096")
    a("v_cmp_gt_u32 vcc, 8, v0")
    a("s_and_saveexec_b64 s[60:61], vcc")
    for p in range(4):
        a(f"s_add_u32 s57, s47, {p*3072*4}")
        a(f"buffer_load_dword v{12+p}, v11, s[16:19], s57 offen")
        vm.append("F")
    a("s_mov_b64 exec, s[60:61]")
    issue_phase(1)
    DRY = int(os.environ.get("DRY", "0"))
    if DRY:
        a("s_mov_b64 s[62:63], exec")
        a("s_mov_b64 exec, 0")
        for w in range(4):
            a(f"s_cmp_eq_u32 s36, {w}")
            a(f"s_cbranch_scc1 K1_DRY{w}")
        a.lab("K1_DRYDONE")
        a("s_mov_b64 exec, s[62:63]")
    a.stamp(1)
    wait_vm("M")
    skipn = [0]

    def guarded(fn):
        if DRY:
            lab = f"K1_SK{skipn[0]}"
            skipn[0] += 1
            a(f"s_cbranch_execz {lab}")
            fn()
            a.lab(lab)
        else:
            fn()

    def boundary(i):
        if DRY:
            a("s_cbranch_execz K1_DRYDONE")
            a.lab(f"K1_DRY{i}")
    a("v_pk_add_f32 v[240:241], v[240:241], v[242:243]")
    a("v_pk_add_f32 v[244:245], v[244:245], v[246:247]")
    a("v_pk_add_f32 v[248:249], v[248:249], v[250:251]")
    a("v_pk_add_f32 v[252:253], v[252:253], v[254:255]")
    a("v_pk_add_f32 v[240:241], v[240:241], v[244:245]")
    a("v_pk_add_f32 v[248:249], v[248:249], v[252:253]")
    a("v_cvt_pk_bf16_f32 v242, v240, v241")
    a("v_cvt_pk_bf16_f32 v243, v248, v249")
    a("v_lshlrev_b32 v240, 16, v242")
    a("v_and_b32 v241, 0xffff0000, v242")
    a("v_lshlrev_b32 v244, 16, v243")
    a("v_and_b32 v245, 0xffff0000, v243")
    a("v_add_f32 v244, 1.0, v244")
    a("v_add_f32 v245, 1.0, v245")
    a("v_cvt_pk_bf16_f32 v243, v244, v245")
    a("v_lshlrev_b32 v244, 16, v243")
    a("v_and_b32 v245, 0xffff0000, v243")
    a("v_lshrrev_b32 v6, 2, v0")
    a("v_and_b32 v10, 3, v0")
    a("v_lshlrev_b32 v6, 6, v6")
    a("v_lshl_add_u32 v6, v10, 3, v6")
    a(f"v_add_u32 v6, {K1_MOD}, v6")
    a("ds_write_b64 v6, v[244:245]")
    a("ds_write_b64 v6, v[240:241] offset:32")
    a("v_mov_b32 v30, v11")
    a(f"v_add_u32 v28, 61440, v{VDMA}")
    VMODA = 31
    a(f"v_lshlrev_b32 v{VMODA}, 6, v{VG}")
    a(f"v_add_u32 v{VMODA}, {K1_MOD}, v{VMODA}")
    for i in range(48):
        a(f"v_mov_b32 v{ACC+i}, 0")
    wait_vm("F")
    WPH = 24
    a("v_lshl_or_b32 v24, v17, 16, v16")
    a("v_lshl_or_b32 v25, v19, 16, v18")
    a("v_lshl_or_b32 v26, v21, 16, v20")
    a("v_lshl_or_b32 v27, v23, 16, v22")
    a("v_add_f32 v12, v12, v13")
    a("v_add_f32 v14, v14, v15")
    a("v_add_f32 v12, v12, v14")
    a("v_cvt_pk_bf16_f32 v12, v12, v12")
    a("v_lshlrev_b32 v12, 16, v12")

    def lds_list(c):
        L = []
        if c > 15 or (os.environ.get("K1_NOLDS") and c > 1):
            return L
        m = MD + (c & 1) * 16
        for q in range(4):
            L.append(f"ds_read_b128 v[{m+4*q}:{m+4*q+3}], v{VMODA} offset:{c*256+q*16}")
        f = (c % 3) * 24
        for t in range(6):
            r = f + t * 4
            if c < 10:
                L.append(f"ds_read_b128 a[{r}:{r+3}], v{VDMA} offset:{c*6144+t*1024}")
            else:
                L.append(f"ds_read_b128 a[{r}:{r+3}], v28 offset:{(c-10)*6144+t*1024}")
        return L

    def mod_list(c):
        L = []
        if c > 15 or os.environ.get("K1_NOVALU"):
            return L
        m = MD + (c & 1) * 16
        for rt in range(2):
            b = XB + (rt * 16 + c) * 4
            for d in range(4):
                t0 = TMP + 2 * d
                L.append(f"v_lshlrev_b32 v{t0}, 16, v{b+d}")
                L.append(f"v_and_b32 v{t0+1}, 0xffff0000, v{b+d}")
            for d in range(4):
                t0 = TMP + 2 * d
                L.append(f"v_fma_f32 v{t0}, v{t0}, v{m+2*d}, v{m+8+2*d}")
                L.append(f"v_fma_f32 v{t0+1}, v{t0+1}, v{m+2*d+1}, v{m+8+2*d+1}")
            for d in range(4):
                t0 = TMP + 2 * d
                L.append(f"v_cvt_pk_bf16_f32 v{b+d}, v{t0}, v{t0+1}")
        return L

    def mfma_list(c):
        L = []
        if os.environ.get("K1_NOMFMA"):
            return ["s_nop 0"]
        f = (c % 3) * 24
        for rt in range(2):
            b = XB + (rt * 16 + c) * 4
            for seg in range(3):
                for hh in range(2):
                    d = ACC + ((seg * 2 + hh) * 2 + rt) * 4
                    fa = f + (seg * 2 + hh) * 4
                    if seg < 2:
                        L.append(f"v_mfma_f32_16x16x32_bf16 v[{d}:{d+3}], a[{fa}:{fa+3}], v[{b}:{b+3}], v[{d}:{d+3}]")
                    else:
                        L.append(f"v_mfma_f32_16x16x32_bf16 v[{d}:{d+3}], v[{b}:{b+3}], a[{fa}:{fa+3}], v[{d}:{d+3}]")
        return L

    a("s_waitcnt lgkmcnt(0)")
    a("s_barrier")
    a.stamp(2)
    if DRY:
        a.lab("K1_DRY0")
    for s in lds_list(0):
        a(s)
    for s in lds_list(1):
        a(s)
    a("s_waitcnt lgkmcnt(6)")
    for s in mod_list(0):
        a(s)
    for c in range(16):
        if c == 7:
            boundary(1)
        if c == 14:
            boundary(2)
        if c in (2, 6, 10):
            p = (c + 2) // 4

            def f():
                wait_vm(("X", c + 1))
                wait_vm(("D", p))
                a("s_barrier")
                a.stamp(2 + p)
            guarded(f)
        elif c + 1 <= 15:
            guarded(lambda: wait_vm(("X", c + 1)))
        if c + 1 <= 15:
            a("s_waitcnt lgkmcnt(6)")
        else:
            a("s_waitcnt lgkmcnt(0)")
        if c == 0:
            a.nop(1)
        extra = []
        if c < 8:
            it = phase_items(2 + c // 4)
            cuts = [0, 4, 8, 11, 14]
            extra = it[cuts[c % 4]:cuts[c % 4 + 1]]
        others = lds_list(c + 2) + mod_list(c + 1)
        if extra:
            step = len(others) // len(extra)
            merged = []
            ei = 0
            for i, o in enumerate(others):
                merged.append(o)
                if ei < len(extra) and i % step == step - 1:
                    merged.extend(extra[ei][1])
                    ei += 1
            while ei < len(extra):
                merged.extend(extra[ei][1])
                ei += 1
            others = merged
            vm.extend([t for t, _ in extra])
        interleave(a, mfma_list(c), others)
    a.stamp(6)
    a("v_cmp_gt_u32 vcc, 8, v0")
    a("s_and_saveexec_b64 s[60:61], vcc")
    a("buffer_store_dword v12, v30, s[48:51], s47 offen")
    a("s_mov_b64 exec, s[60:61]")
    a.nop(8)
    QB = 32
    for t in range(8):
        d = ACC + t * 4
        a(f"v_cvt_pk_bf16_f32 v{QB+2*t}, v{d}, v{d+1}")
        a(f"v_cvt_pk_bf16_f32 v{QB+2*t+1}, v{d+2}, v{d+3}")
    VB = 48
    for hh in range(2):
        for rt in range(2):
            d = ACC + ((4 + hh) * 2 + rt) * 4
            a(f"v_cvt_pk_bf16_f32 v{VB+4*hh+2*rt}, v{d}, v{d+1}")
            a(f"v_cvt_pk_bf16_f32 v{VB+4*hh+2*rt+1}, v{d+2}, v{d+3}")
    P = 208
    for t in range(8):
        hh = (t >> 1) & 1
        a(f"v_mfma_f32_16x16x16_bf16 v[{P+4*t}:{P+4*t+3}], v[{WPH+2*hh}:{WPH+2*hh+1}], v[{QB+2*t}:{QB+2*t+1}], 0")
    a.nop(6)
    for t in range(8):
        p = P + 4 * t
        a(f"v_cvt_pk_bf16_f32 v{p}, v{p}, v{p+1}")
        a(f"v_cvt_pk_bf16_f32 v{p+2}, v{p+2}, v{p+3}")
    for t in range(8):
        p = P + 4 * t
        a(f"v_and_b32 v{p+1}, 0xffff0000, v{p}")
        a(f"v_lshlrev_b32 v{p}, 16, v{p}")
        a(f"v_and_b32 v{p+3}, 0xffff0000, v{p+2}")
        a(f"v_lshlrev_b32 v{p+2}, 16, v{p+2}")
    MX = [96 + 2 * t for t in range(8)]
    MN = [112 + 2 * t for t in range(8)]
    for t in range(8):
        p = P + 4 * t
        a(f"v_max3_f32 v{MX[t]}, v{p}, v{p+1}, v{p+2}")
        a(f"v_min3_f32 v{MN[t]}, v{p}, v{p+1}, v{p+2}")
    for t in range(8):
        p = P + 4 * t
        a(f"v_max_f32 v{MX[t]}, v{MX[t]}, v{p+3}")
        a(f"v_min_f32 v{MN[t]}, v{MN[t]}, v{p+3}")
    gx = [tuple(MX[0:4]), tuple(MX[4:8])]
    gn = [tuple(MN[0:4]), tuple(MN[4:8])]
    a.nop(1)
    for X, Y, U, W in gx + gn:
        a(f"v_permlane16_swap_b32 v{X}, v{Y}")
        a(f"v_permlane16_swap_b32 v{U}, v{W}")
    for grp, op in ((gx, "v_max_f32"), (gn, "v_min_f32")):
        for X, Y, U, W in grp:
            a(f"{op} v{X}, v{X}, v{Y}")
            a(f"{op} v{U}, v{U}, v{W}")
    a.nop(1)
    for X, Y, U, W in gx + gn:
        a(f"v_permlane32_swap_b32 v{X}, v{U}")
    a.nop(1)
    for grp, op in ((gx, "v_max_f32"), (gn, "v_min_f32")):
        for X, Y, U, W in grp:
            a(f"{op} v{X}, v{X}, v{U}")
    a(f"s_mov_b32 s60, 0x{LOG2E:x}")
    a(f"s_mov_b32 s61, 0x{LOG2E:x}")
    for X, Y, U, W in gx + gn:
        a(f"v_mul_f32 v{X}, s60, v{X}")
    bcast4_groups(a, gx + gn)
    E = 128
    for t in range(8):
        p = P + 4 * t
        e = E + 8 * t
        for r in (0, 2):
            a(f"v_pk_fma_f32 v[{e+r}:{e+r+1}], v[{p+r}:{p+r+1}], s[60:61], v[{MX[t]}:{MX[t]+1}] op_sel_hi:[1,1,0] neg_lo:[0,0,1] neg_hi:[0,0,1]")
            a(f"v_pk_fma_f32 v[{e+4+r}:{e+5+r}], v[{p+r}:{p+r+1}], s[60:61], v[{MN[t]}:{MN[t]+1}] op_sel_hi:[1,1,0] neg_lo:[1,0,0] neg_hi:[1,0,0]")
    SP = MX
    SN = MN
    T2 = 64
    boundary(3)
    for t in range(8):
        e = E + 8 * t
        for r in range(8):
            a(f"v_exp_f32 v{e+r}, v{e+r}")
        if t > 0:
            e2 = E + 8 * (t - 1)
            a(f"v_pk_add_f32 v[{T2+4*(t-1)}:{T2+4*(t-1)+1}], v[{e2}:{e2+1}], v[{e2+2}:{e2+3}]")
            a(f"v_pk_add_f32 v[{T2+4*(t-1)+2}:{T2+4*(t-1)+3}], v[{e2+4}:{e2+5}], v[{e2+6}:{e2+7}]")
    a.nop(1)
    e2 = E + 8 * 7
    a(f"v_pk_add_f32 v[{T2+28}:{T2+29}], v[{e2}:{e2+1}], v[{e2+2}:{e2+3}]")
    a(f"v_pk_add_f32 v[{T2+30}:{T2+31}], v[{e2+4}:{e2+5}], v[{e2+6}:{e2+7}]")
    for t in range(8):
        a(f"v_add_f32 v{SP[t]}, v{T2+4*t}, v{T2+4*t+1}")
        a(f"v_add_f32 v{SN[t]}, v{T2+4*t+2}, v{T2+4*t+3}")
    reduce4_groups(a, gx + gn, "v_add_f32")
    for X, Y, U, W in gx + gn:
        a(f"v_rcp_f32 v{X}, v{X}")
    a.nop(1)
    bcast4_groups(a, gx + gn)
    for t in range(8):
        e = E + 8 * t
        for r in (0, 2):
            a(f"v_pk_mul_f32 v[{e+r}:{e+r+1}], v[{e+r}:{e+r+1}], v[{SP[t]}:{SP[t]+1}] op_sel_hi:[1,0]")
            a(f"v_pk_mul_f32 v[{e+4+r}:{e+5+r}], v[{e+4+r}:{e+5+r}], v[{SN[t]}:{SN[t]+1}] op_sel_hi:[1,0]")
    PH = 64
    for t in (4, 5, 6, 7, 0, 1, 2, 3):
        e = E + 8 * t
        for d in range(4):
            a(f"v_cvt_pk_bf16_f32 v{PH+4*t+d}, v{e+2*d}, v{e+2*d+1}")
        if t == 7:
            pass
    a("s_lshl_b32 s57, s36, 12")
    a(f"s_add_u32 s57, s57, {K1_PK}")
    a(f"v_lshlrev_b32 v15, 6, v{VM}")
    a(f"v_lshl_add_u32 v15, v{VG}, 4, v15")
    a("v_add_u32 v15, s57, v15")
    for hh in range(2):
        for rt in range(2):
            t = 4 + hh * 2 + rt
            a(f"ds_write_b128 v15, v[{PH+4*t}:{PH+4*t+3}] offset:{hh*2048+rt*1024}")
    a("s_lshl_b32 s58, s54, 11")
    a("s_lshl_b32 s59, s46, 10")
    a("s_add_u32 s58, s58, s59")
    a("s_add_u32 s59, s58, 32768")
    for hh in range(2):
        for rt in range(2):
            t = hh * 2 + rt
            a(f"buffer_store_dwordx4 v[{PH+4*t}:{PH+4*t+3}], v{VDMA}, s[24:27], s{58+rt} offen offset:{hh*1024}")
    a(f"v_lshlrev_b32 v15, 8, v{VG}")
    a(f"v_lshl_add_u32 v15, v{VRR}, 6, v15")
    a(f"v_lshl_add_u32 v15, v{VQ}, 3, v15")
    a("v_add_u32 v15, s57, v15")
    ONES = 152
    for i in range(4):
        a(f"v_mov_b32 v{ONES+i}, 0x3f803f80")
    a("s_waitcnt lgkmcnt(0)")
    KA = 128
    for hh in range(2):
        for ft in range(2):
            for rt in range(2):
                r = KA + (hh * 2 + ft) * 4 + rt * 2
                a(f"ds_read_b64_tr_b16 v[{r}:{r+1}], v15 offset:{hh*2048+rt*1024+ft*32}")
    a("s_mul_i32 s57, s36, 2*2176")
    a(f"s_add_u32 s57, s57, {K1_RED}")
    a(f"v_lshlrev_b32 v15, 7, v{VM}")
    a(f"v_lshl_add_u32 v15, v{VG}, 4, v15")
    a("v_add_u32 v15, s57, v15")
    a(f"v_lshlrev_b32 v14, 4, v{VG}")
    a("v_add_u32 v14, s57, v14")
    a("s_waitcnt lgkmcnt(0)")
    DK = 160
    for hh in range(2):
        for ft in range(2):
            ka = KA + (hh * 2 + ft) * 4
            a(f"v_mfma_f32_16x16x32_bf16 v[{DK+16*hh+4*ft}:{DK+16*hh+4*ft+3}], v[{ka}:{ka+3}], v[{VB+4*hh}:{VB+4*hh+3}], 0")
        for ft in range(2):
            ka = KA + (hh * 2 + ft) * 4
            a(f"v_mfma_f32_16x16x32_bf16 v[{DK+16*hh+8+4*ft}:{DK+16*hh+8+4*ft+3}], v[{ka}:{ka+3}], v[{ONES}:{ONES+3}], 0")
    a.nop(8)
    for hh in range(2):
        dk = DK + 16 * hh
        a(f"ds_write_b128 v15, v[{dk}:{dk+3}] offset:{hh*2176}")
        a(f"ds_write_b128 v15, v[{dk+4}:{dk+7}] offset:{hh*2176+64}")
        a(f"ds_write_b128 v14, v[{dk+8}:{dk+11}] offset:{hh*2176+2048}")
        a(f"ds_write_b128 v14, v[{dk+12}:{dk+15}] offset:{hh*2176+2112}")
    a("v_lshlrev_b32 v14, 2, v0")
    a(f"v_add_u32 v15, {K1_RED}, v14")
    a("s_waitcnt lgkmcnt(0)")
    guarded(lambda: a("s_barrier"))
    for hh in range(2):
        for e in range(3):
            for m in range(4):
                a(f"ds_read_b32 v{32+hh*12+e*4+m}, v15 offset:{(m*2+hh)*2176+e*1024}")
    a("s_waitcnt lgkmcnt(0)")
    for i in range(6):
        a(f"v_add_f32 v{32+i*4}, v{32+i*4}, v{33+i*4}")
        a(f"v_add_f32 v{34+i*4}, v{34+i*4}, v{35+i*4}")
    for i in range(6):
        a(f"v_add_f32 v{32+i*4}, v{32+i*4}, v{34+i*4}")
    a("s_mul_i32 s57, s46, 2176")
    a("buffer_atomic_add_f32 v32, v14, s[28:31], s57 offen")
    a("buffer_atomic_add_f32 v36, v14, s[28:31], s57 offen offset:1024")
    a("s_add_u32 s58, s57, 2176")
    a("buffer_atomic_add_f32 v44, v14, s[28:31], s58 offen")
    a("buffer_atomic_add_f32 v48, v14, s[28:31], s58 offen offset:1024")
    if DRY:
        a("s_cbranch_execz K1_DRYDONE")
    a("v_cmp_gt_u32 vcc, 128, v14")
    a("s_and_saveexec_b64 s[60:61], vcc")
    a("s_cbranch_execz K1_END")
    a("buffer_atomic_add_f32 v40, v14, s[28:31], s57 offen offset:2048")
    a("buffer_atomic_add_f32 v52, v14, s[28:31], s58 offen offset:2048")
    a.lab("K1_END")
    a.stamp(7)
    a.stamp_out(8, 36)
    a("s_endpgm")
    return kernel_desc(name, 256, agpr=72)
```

```python
from gen_common import *
from k1v2 import interleave

K3_MOD = 144 * 1024
K3_LDS = 148 * 1024


def gen_k3(a):
    name = "k3_kernel"
    kernel_head(a, name)
    a("s_cmp_ge_u32 s2, 240")
    a("s_cbranch_scc1 K3_END")
    a.stamp(0)
    a("s_load_dwordx2 s[34:35], s[0:1], 96")
    a("v_lshrrev_b32 v1, 6, v0")
    a("s_nop 0")
    a("v_readfirstlane_b32 s36, v1")
    a("s_and_b32 s40, s2, 7")
    a("s_lshr_b32 s41, s2, 3")
    a("s_lshl_b32 s42, s40, 1")
    a("s_cmp_ge_u32 s41, 15")
    a("s_cselect_b32 s44, 1, 0")
    a("s_add_u32 s42, s42, s44")
    a("s_mul_i32 s44, s44, 15")
    a("s_sub_u32 s43, s41, s44")
    VL, VG, VRR, VQ, VM = 1, 2, 3, 4, 5
    lane_decode(a, VL, VG, VRR, VQ, VM)
    VDMA = 8
    a(f"v_lshlrev_b32 v{VDMA}, 4, v{VL}")
    a("s_mul_i32 s53, s36, 12288")
    a("s_mul_i32 s52, s43, 16*12288")
    a("s_add_u32 s52, s52, s53")
    a("s_lshl_b32 s54, s42, 7")
    a("s_lshl_b32 s55, s36, 5")
    a("s_add_u32 s54, s54, s55")
    a("s_lshl_b32 s55, s54, 10")
    a("s_add_u32 s56, s55, 16384")
    a("v_lshlrev_b32 v6, 3, v0")
    a(f"v_lshlrev_b32 v7, 6, v{VM}")
    a("s_lshl_b32 s45, s54, 6")
    a("s_movk_i32 s46, 6144")
    a("s_waitcnt lgkmcnt(0)")
    srd(a, 8, 34, WS_WF + WF_GU, 15 * 16 * 12288)
    srd(a, 16, 34, WS_X1, 2048 * 1024)
    srd(a, 20, 34, WS_STATS, 2048 * 64)
    srd(a, 48, 34, WS_MODF, 3072 * 4)
    XB = 32
    ACC = 128
    MD = 224
    TMP = 24
    vm = []

    def xreg(c, rt):
        return XB + ((((c // 4) % 3) * 4 + (c % 4)) * 2 + rt) * 4

    def q_items(q):
        slot = q % 3
        items = []
        for t in range(12):
            items.append((("D", q), [f"s_add_u32 m0, s53, {slot*49152 + t*1024}",
                                     f"s_add_u32 s57, s52, {q*49152 + t*1024}",
                                     f"buffer_load_dwordx4 v{VDMA}, s[8:11], s57 offen lds"]))
        for c in range(4 * q, 4 * q + 4):
            for rt in range(2):
                b = xreg(c, rt)
                items.append((("X", c), [f"s_add_u32 s58, s{55+rt}, {q*4096}",
                                         f"buffer_load_dwordx4 v[{b}:{b+3}], v{VDMA}, s[16:19], s58 offen offset:{(c&3)*1024}"]))
        return items

    def issue_q(q):
        for tag, ins in q_items(q):
            for x in ins:
                a(x)
            vm.append(tag)

    def wait_vm(tag):
        last = max(i for i, t in enumerate(vm) if t == tag)
        n = len(vm) - 1 - last
        assert n <= 63
        a(f"s_waitcnt vmcnt({n})")

    a(f"buffer_load_dwordx2 v[{MD}:{MD+1}], v6, s[48:51], s46 offen")
    a(f"buffer_load_dwordx2 v[{MD+2}:{MD+3}], v6, s[48:51], s46 offen offset:2048")
    vm.extend(["M", "M"])
    ST = ACC
    for rt in range(2):
        for q in range(4):
            a(f"buffer_load_dwordx4 v[{ST+16*rt+4*q}:{ST+16*rt+4*q+3}], v7, s[20:23], s45 offen offset:{rt*1024+q*16}")
            vm.append("S")
    issue_q(0)
    srd(a, 24, 34, WS_HH, 2048 * 2752)
    issue_q(1)
    a.stamp(1)
    wait_vm("M")
    a(f"v_add_f32 v{MD+2}, 1.0, v{MD+2}")
    a(f"v_add_f32 v{MD+3}, 1.0, v{MD+3}")
    a(f"v_cvt_pk_bf16_f32 v{MD+4}, v{MD+2}, v{MD+3}")
    a(f"v_lshlrev_b32 v{MD+2}, 16, v{MD+4}")
    a(f"v_and_b32 v{MD+3}, 0xffff0000, v{MD+4}")
    a("v_lshrrev_b32 v6, 2, v0")
    a("v_and_b32 v10, 3, v0")
    a("v_lshlrev_b32 v6, 6, v6")
    a("v_lshl_add_u32 v6, v10, 3, v6")
    a(f"v_add_u32 v6, {K3_MOD}, v6")
    a(f"ds_write_b64 v6, v[{MD+2}:{MD+3}]")
    a(f"ds_write_b64 v6, v[{MD}:{MD+1}] offset:32")
    wait_vm("S")
    RS = [10, 11]
    NM = [12, 13]
    for rt in range(2):
        s = ST + 16 * rt
        a(f"v_add_f32 v14, v{s}, v{s+2}")
        for i in range(2, 8):
            a(f"v_add_f32 v14, v14, v{s+2*i}")
        a("v_mul_f32 v14, 0x3e000000, v14")
        a(f"v_add_f32 v15, v{s+1}, v{s+3}")
        for i in range(2, 8):
            a(f"v_add_f32 v15, v15, v{s+2*i+1}")
        for i in range(8):
            a(f"v_sub_f32 v{s+2*i}, v{s+2*i}, v14")
        a(f"v_mul_f32 v{s+1}, v{s}, v{s}")
        for i in range(1, 8):
            a(f"v_fmac_f32 v{s+1}, v{s+2*i}, v{s+2*i}")
        a(f"v_fmac_f32 v15, 0x42800000, v{s+1}")
        a("s_mov_b32 s45, 0x3727c5ac")
        a(f"v_mov_b32 v{RS[rt]}, s45")
        a(f"v_fmac_f32 v{RS[rt]}, 0x3b000000, v15")
        a(f"v_rsq_f32 v{RS[rt]}, v{RS[rt]}")
        a.nop(1)
        a(f"v_mul_f32 v{NM[rt]}, v14, v{RS[rt]}")
        a(f"v_sub_f32 v{NM[rt]}, 0, v{NM[rt]}")
    VTB = [VDMA, 14, 15]
    a(f"v_add_u32 v14, 0x10000, v{VDMA}")
    a(f"v_add_u32 v15, 0x20000, v{VDMA}")
    VMODA = 16
    a(f"v_lshlrev_b32 v{VMODA}, 6, v{VG}")
    a(f"v_add_u32 v{VMODA}, {K3_MOD}, v{VMODA}")
    a("s_mov_b32 s47, 0xffff0000")
    for i in range(96):
        a(f"v_mov_b32 v{ACC+i}, 0")

    def lds_list(c):
        L = []
        if c > 15:
            return L
        m = MD + (c & 1) * 16
        for q in range(4):
            L.append(f"ds_read_b128 v[{m+4*q}:{m+4*q+3}], v{VMODA} offset:{c*256+q*16}")
        f = (c % 3) * 48
        slot = (c // 4) % 3
        for t in range(12):
            off = slot * 49152 + (c % 4) * 12288 + t * 1024
            r = f + t * 4
            L.append(f"ds_read_b128 a[{r}:{r+3}], v{VTB[off >> 16]} offset:{off & 0xffff}")
        return L

    def mod_list(c):
        L = []
        if c > 15:
            return L
        m = MD + (c & 1) * 16
        for rt in range(2):
            b = xreg(c, rt)
            for d in range(4):
                t0 = TMP + 2 * d
                L.append(f"v_lshlrev_b32 v{t0}, 16, v{b+d}")
                L.append(f"v_and_b32 v{t0+1}, s47, v{b+d}")
            for e in range(8):
                L.append(f"v_fma_f32 v{TMP+e}, v{TMP+e}, v{RS[rt]}, v{NM[rt]}")
            for e in range(8):
                L.append(f"v_fma_f32 v{TMP+e}, v{TMP+e}, v{m+e}, v{m+8+e}")
            for d in range(4):
                t0 = TMP + 2 * d
                L.append(f"v_cvt_pk_bf16_f32 v{b+d}, v{t0}, v{t0+1}")
        return L

    def mfma_list(c):
        L = []
        f = (c % 3) * 48
        for rt in range(2):
            b = xreg(c, rt)
            for t in range(12):
                d = ACC + (t * 2 + rt) * 4
                fa = f + t * 4
                L.append(f"v_mfma_f32_16x16x32_bf16 v[{d}:{d+3}], a[{fa}:{fa+3}], v[{b}:{b+3}], v[{d}:{d+3}]")
        return L

    wait_vm(("X", 0))
    wait_vm(("D", 0))
    a("s_waitcnt lgkmcnt(0)")
    a("s_barrier")
    a.stamp(2)
    for s in lds_list(0):
        a(s)
    for s in lds_list(1):
        a(s)
    a("s_waitcnt lgkmcnt(12)")
    for s in mod_list(0):
        a(s)
    for c in range(16):
        if c in (2, 6, 10):
            q = (c + 2) // 4
            wait_vm(("X", c + 1))
            wait_vm(("D", q))
            a("s_waitcnt lgkmcnt(0)")
            a("s_barrier")
            a.stamp(2 + q)
        elif c + 1 <= 15:
            wait_vm(("X", c + 1))
        if c + 1 <= 15:
            a("s_waitcnt lgkmcnt(12)")
        else:
            a("s_waitcnt lgkmcnt(0)")
        if c == 0:
            a.nop(1)
        extra = []
        if c < 8:
            it = q_items(2 + c // 4)
            extra = it[5 * (c % 4):5 * (c % 4) + 5]
        others = lds_list(c + 2) + mod_list(c + 1)
        if extra:
            step = len(others) // len(extra)
            merged = []
            ei = 0
            for i, o in enumerate(others):
                merged.append(o)
                if ei < len(extra) and i % step == step - 1:
                    merged.extend(extra[ei][1])
                    ei += 1
            while ei < len(extra):
                merged.extend(extra[ei][1])
                ei += 1
            others = merged
            vm.extend([t for t, _ in extra])
        interleave(a, mfma_list(c), others)
    a.stamp(6)
    a.nop(8)
    a("s_mov_b32 s60, 0x3d372713")
    a("s_mov_b32 s61, 0x3d372713")
    a("s_mov_b32 s62, 0xc0135761")
    a("s_mov_b32 s63, 0xc0135761")
    G = ACC
    U = ACC + 48
    for i in range(0, 96, 2):
        a(f"v_cvt_pk_bf16_f32 v{ACC+i}, v{ACC+i}, v{ACC+i+1}")
    for i in range(0, 96, 2):
        a(f"v_and_b32 v{ACC+i+1}, s47, v{ACC+i}")
        a(f"v_lshlrev_b32 v{ACC+i}, 16, v{ACC+i}")
    T = 32
    for i in range(0, 48, 2):
        a(f"v_pk_mul_f32 v[{T+i}:{T+i+1}], v[{G+i}:{G+i+1}], v[{G+i}:{G+i+1}]")
    for i in range(0, 48, 2):
        a(f"v_pk_fma_f32 v[{T+i}:{T+i+1}], v[{T+i}:{T+i+1}], s[60:61], 1.0 op_sel_hi:[1,1,0]")
    for i in range(0, 48, 2):
        a(f"v_pk_mul_f32 v[{T+i}:{T+i+1}], v[{T+i}:{T+i+1}], v[{G+i}:{G+i+1}]")
    for i in range(0, 48, 2):
        a(f"v_pk_mul_f32 v[{T+i}:{T+i+1}], v[{T+i}:{T+i+1}], s[62:63]")
    for i in range(48):
        a(f"v_exp_f32 v{T+i}, v{T+i}")
    for i in range(0, 48, 2):
        a(f"v_pk_add_f32 v[{T+i}:{T+i+1}], v[{T+i}:{T+i+1}], 1.0 op_sel_hi:[1,0]")
    for i in range(48):
        a(f"v_rcp_f32 v{T+i}, v{T+i}")
    for i in range(0, 48, 2):
        a(f"v_pk_mul_f32 v[{T+i}:{T+i+1}], v[{T+i}:{T+i+1}], v[{G+i}:{G+i+1}]")
    for i in range(0, 48, 2):
        a(f"v_cvt_pk_bf16_f32 v{T+i}, v{T+i}, v{T+i+1}")
    for i in range(0, 48, 2):
        a(f"v_and_b32 v{T+i+1}, s47, v{T+i}")
        a(f"v_lshlrev_b32 v{T+i}, 16, v{T+i}")
    for i in range(0, 48, 2):
        a(f"v_pk_mul_f32 v[{T+i}:{T+i+1}], v[{T+i}:{T+i+1}], v[{U+i}:{U+i+1}]")
    PK = 80
    for rt in range(2):
        for tt in range(6):
            s = T + (tt * 2 + rt) * 4
            p = PK + rt * 12 + tt * 2
            a(f"v_cvt_pk_bf16_f32 v{p}, v{s}, v{s+1}")
            a(f"v_cvt_pk_bf16_f32 v{p+1}, v{s+2}, v{s+3}")
    a(f"v_and_b32 v110, 1, v{VG}")
    a(f"v_lshrrev_b32 v111, 1, v{VG}")
    a(f"v_lshlrev_b32 v112, 4, v{VM}")
    a("v_lshl_add_u32 v112, v110, 9, v112")
    a("v_lshl_add_u32 v112, v111, 8, v112")
    for rt in range(2):
        for i in range(3):
            p = PK + rt * 12 + i * 4
            a(f"v_permlane16_swap_b32 v{p}, v{p+2}")
            a(f"v_permlane16_swap_b32 v{p+1}, v{p+3}")
    a("s_lshr_b32 s57, s54, 4")
    a("s_mul_i32 s57, s57, 43")
    a("s_mul_i32 s58, s43, 3")
    a("s_add_u32 s57, s57, s58")
    a("s_lshl_b32 s57, s57, 10")
    a("s_add_u32 s58, s57, 43*1024")
    for i in range(3):
        if i == 1:
            a("s_cmp_eq_u32 s43, 14")
            a("s_cbranch_scc1 K3_END")
        for rt in range(2):
            p = PK + rt * 12 + i * 4
            a(f"buffer_store_dwordx4 v[{p}:{p+3}], v112, s[24:27], s{57+rt} offen offset:{i*1024}")
    a.lab("K3_END")
    a.stamp(7)
    a.stamp_out(8, 36)
    a("s_endpgm")
    return kernel_desc(name, 256, agpr=144)
```

```python
import sys, os, re
import gen_common
from gen_common import *
import gen as G
import k1v2, k3v2

WS_FLAGS = 0x60000
SPIN_MAX = 400000


def body(genfn):
    b = A()
    genfn(b)
    L = b.l
    assert L[0].startswith(".globl") and L[3].endswith("_kernel:")
    L = L[4:]
    assert L[-1].strip() == "s_endpgm"
    return L[:-1]


def add_sc1(L, store=True, load_srds=()):
    out = []
    for x in L:
        t = x.strip()
        if store and (t.startswith("buffer_store") or t.startswith("buffer_atomic")) and "s[96:99]" not in t:
            x = x + " sc1"
        if t.startswith("buffer_load") and " lds" not in t:
            for s in load_srds:
                if f"s[{s}:{s+3}]" in t:
                    x = x + " sc1"
        out.append(x)
    return out


def flag_barrier(a, idx):
    a("s_mov_b64 exec, -1")
    a("s_waitcnt vmcnt(0) lgkmcnt(0)")
    a("s_barrier")
    a("v_lshrrev_b32 v1, 6, v0")
    a("s_nop 0")
    a("v_readfirstlane_b32 s20, v1")
    a("s_cmp_lg_u32 s20, 0")
    a(f"s_cbranch_scc1 FB{idx}_W")
    a("s_load_dwordx2 s[4:5], s[0:1], 96")
    a("v_lshlrev_b32 v2, 12, v0")
    a("v_lshlrev_b32 v3, 6, v0")
    a("v_mov_b32 v4, 1")
    a("s_lshl_b32 s21, s2, 4")
    a("s_and_b32 s22, s2, 7")
    a("s_lshl_b32 s22, s22, 12")
    a("s_waitcnt lgkmcnt(0)")
    srd(a, 8, 4, WS_FLAGS + idx * 32768, 32768)
    a("s_mov_b64 exec, 255")
    a("buffer_store_dword v4, v2, s[8:11], s21 offen sc1")
    a("s_mov_b64 exec, -1")
    a("s_mov_b32 s25, 0")
    a("s_sleep 12")
    a.lab(f"FB{idx}_P")
    for q in range(4):
        a(f"buffer_load_dword v{12+q}, v3, s[8:11], s22 offen offset:{q*16} sc1")
    a("s_add_u32 s25, s25, 1")
    a(f"s_cmp_gt_u32 s25, {SPIN_MAX}")
    a(f"s_cbranch_scc1 FB{idx}_W")
    a("s_waitcnt vmcnt(0)")
    a("v_and_b32 v12, v12, v13")
    a("v_and_b32 v14, v14, v15")
    a("v_and_b32 v12, v12, v14")
    a("v_cmp_ne_u32 vcc, 1, v12")
    a(f"s_cbranch_vccz FB{idx}_W")
    a("s_sleep 4")
    a(f"s_branch FB{idx}_P")
    a.lab(f"FB{idx}_W")
    a("s_waitcnt vmcnt(0)")
    a("s_barrier")


def tree_barrier(a):
    a("s_mov_b64 exec, -1")
    a("s_waitcnt vmcnt(0) lgkmcnt(0)")
    a("s_barrier")
    a("v_lshrrev_b32 v1, 6, v0")
    a("s_nop 0")
    a("v_readfirstlane_b32 s20, v1")
    a("s_cmp_lg_u32 s20, 0")
    a("s_cbranch_scc1 TB_W")
    a("s_load_dwordx2 s[4:5], s[0:1], 88")
    a("v_mov_b32 v2, 0")
    a("v_mov_b32 v4, 1")
    a("v_mov_b32 v12, 1")
    a("s_and_b32 s24, s2, 3")
    a("s_lshl_b32 s24, s24, 5")
    a("s_waitcnt lgkmcnt(0)")
    srd(a, 8, 4, 0, 256)
    a("s_mov_b64 exec, 1")
    a("buffer_atomic_add v12, v2, s[8:11], s24 offen sc0 sc1")
    a("s_waitcnt vmcnt(0)")
    a("v_cmp_ne_u32 vcc, 63, v12")
    a("s_cbranch_vccnz TB_N")
    a("v_mov_b32 v12, 1")
    a("s_movk_i32 s24, 112")
    a("buffer_atomic_add v12, v2, s[8:11], s24 offen sc0 sc1")
    a("s_waitcnt vmcnt(0)")
    a("v_cmp_ne_u32 vcc, 3, v12")
    a("s_cbranch_vccnz TB_N")
    a("s_movk_i32 s24, 128")
    a("buffer_store_dword v4, v2, s[8:11], s24 offen sc1")
    a("buffer_store_dword v4, v2, s[8:11], s24 offen offset:64 sc1")
    a.lab("TB_N")
    a("s_and_b32 s24, s2, 1")
    a("s_lshl_b32 s24, s24, 6")
    a("s_add_u32 s24, s24, 128")
    a("s_mov_b32 s25, 0")
    a.lab("TB_P")
    a("buffer_load_dword v12, v2, s[8:11], s24 offen sc1")
    a("s_add_u32 s25, s25, 1")
    a(f"s_cmp_gt_u32 s25, {SPIN_MAX}")
    a("s_cbranch_scc1 TB_W")
    a("s_waitcnt vmcnt(0)")
    a("v_cmp_ne_u32 vcc, 1, v12")
    a("s_cbranch_vccz TB_W")
    a("s_sleep 4")
    a("s_branch TB_P")
    a.lab("TB_W")
    a("s_mov_b64 exec, -1")
    a("s_waitcnt vmcnt(0)")
    a("s_barrier")


def phase0(a):
    L = body(G.gen_k0)
    txt = "\n".join(L)
    i = L.index("K0_RL:")
    main, rl = L[:i], L[i:]
    assert rl[-1] == "K0_END:"
    rl = rl[:-1]
    assert "s_cmp_ge_u32 s2, 646" in main[0]
    main = main[4:]
    main = [x.replace("K0_END", "P0_RL") for x in main]
    j = next(k for k, x in enumerate(main) if "buffer_store_dwordx4" in x and "s[12:15], s21" in x)
    st = main[j:j + 8]
    assert all("buffer_store_dwordx4" in x for x in st)
    pre = main[:j - 9]
    assert "v_and_b32 v1, 63, v0" in main[j - 9]
    post = main[j + 8:]
    n = A()
    n("v_lshlrev_b32 v1, 7, v0")
    for i2 in range(8):
        n(f"ds_write_b128 v1, v[{16+4*i2}:{19+4*i2}] offset:{i2*16}")
    n("v_and_b32 v1, 63, v0")
    n("v_lshrrev_b32 v2, 6, v0")
    n("v_lshlrev_b32 v3, 13, v2")
    n("v_lshl_add_u32 v3, v1, 4, v3")
    n("v_lshrrev_b32 v4, 5, v1")
    n("v_lshlrev_b32 v4, 10, v4")
    n("v_bfe_u32 v5, v1, 3, 2")
    n("v_lshl_add_u32 v4, v5, 8, v4")
    n("v_and_b32 v5, 7, v1")
    n("v_lshl_add_u32 v4, v5, 4, v4")
    n("v_and_b32 v5, 1, v2")
    n("v_lshl_add_u32 v4, v5, 7, v4")
    n("v_lshrrev_b32 v5, 1, v2")
    n("v_lshl_add_u32 v4, v5, 14, v4")
    n("v_add_u32 v5, 4096, v4")
    n("v_add_u32 v6, 8192, v4")
    n("v_add_u32 v7, 12288, v4")
    n("s_waitcnt lgkmcnt(0)")
    for j2 in range(8):
        n(f"ds_read_b128 v[{16+4*j2}:{19+4*j2}], v3 offset:{j2*1024}")
    n("s_waitcnt lgkmcnt(0)")
    for j2 in range(8):
        n(f"buffer_store_dwordx4 v[{16+4*j2}:{19+4*j2}], v{4 + (j2>>1)}, s[12:15], s21 offen offset:{(j2&1)*2048}")
    main = pre + n.l + post
    a.stamp(0)
    for x in add_sc1(main):
        a.l.append(x)
    a.lab("P0_RL")
    a("s_mov_b64 exec, -1")
    a.stamp(1)
    a("s_load_dwordx2 s[34:35], s[0:1], 96")
    a("v_lshlrev_b32 v2, 12, v0")
    a("v_mov_b32 v4, 0")
    a("s_lshl_b32 s21, s2, 4")
    a("s_waitcnt lgkmcnt(0)")
    srd(a, 8, 34, WS_FLAGS, 3 * 32768)
    a("v_cmp_gt_u32 vcc, 24, v0")
    a("s_and_saveexec_b64 s[28:29], vcc")
    a("buffer_store_dword v4, v2, s[8:11], s21 offen sc1")
    a("s_mov_b64 exec, s[28:29]")
    for rep in range(2):
        R = []
        for x in rl:
            x = re.sub(r"K0_R(\w+)", rf"K0_R\1_{rep}", x)
            x = x.replace("K0_END", f"K0_REND_{rep}")
            R.append(x)
        k = next(i for i, x in enumerate(R) if "s_sub_u32 s37, s2, 256" in x)
        R[k] = f"    s_add_u32 s37, s2, {256*rep}"
        k = next(i for i, x in enumerate(R) if "s_add_u32 s37, s37, s36" in x)
        R.insert(k + 1, f"    s_cmp_ge_u32 s37, 1560")
        R.insert(k + 2, f"    s_cbranch_scc1 K0_REND_{rep}")
        k = next(i for i, x in enumerate(R) if "s_lshl_b32 s31, s36, 12" in x)
        R.insert(k + 1, f"    s_add_u32 s31, s31, {32768 + rep*16384}")
        for x in add_sc1(R):
            a.l.append(x)
        a.lab(f"K0_REND_{rep}")
    a.stamp(2)


def fix_stamps(L, ph):
    out = []
    for x in L:
        if "s_mov_b32 s98, 256" in x:
            x = x.replace("256", "8192")
        if "s[96:99], 0 offen offset:" in x:
            off = int(x.split("offset:")[1])
            x = x.split("offset:")[0] + f"offset:{off + 512*ph}"
        out.append(x)
    return out


def main():
    a = A()
    LDS = max(k1v2.K1_LDS, G.K2_LDS, k3v2.K3_LDS, G.K4_LDS)
    a.raw(f"; @launch kernel=mk_kernel grid=(256,1,1) block=(256,1,1) lds={LDS}")
    a.raw('.amdgcn_target "amdgcn-amd-amdhsa--gfx950"')
    a.raw(".text")
    kernel_head(a, "mk_kernel")
    a("s_cmp_ge_u32 s2, 256")
    a("s_cbranch_scc1 MK_END")
    p = A()
    phase0(p)
    tree_barrier(p)
    if STAMP:
        p.stamp(3)
        p("v_lshrrev_b32 v1, 6, v0")
        p("s_nop 0")
        p("v_readfirstlane_b32 s36, v1")
        p("s_waitcnt lgkmcnt(0)")
        p.stamp_out(8, 36)
    a.l += fix_stamps(p.l, 1)
    a.l += fix_stamps(add_sc1(body(k1v2.gen_k1), load_srds=(16,)), 2)
    flag_barrier(a, 0)
    a.l += fix_stamps(add_sc1(body(G.gen_k2), load_srds=(16, 48)), 3)
    flag_barrier(a, 1)
    a.l += fix_stamps(add_sc1(body(k3v2.gen_k3), load_srds=(20, 48)), 4)
    flag_barrier(a, 2)
    a.l += fix_stamps(add_sc1(body(G.gen_k4), store=False, load_srds=(48,)), 5)
    a.lab("MK_END")
    a("s_endpgm")
    a.raw('.section .rodata,"a"')
    a.raw(".p2align 6")
    a.raw(kernel_desc("mk_kernel", 256, agpr=256))
    out = sys.argv[1] if len(sys.argv) > 1 else f"cdna_kernels/{NAME}.s"
    open(out, "w").write(a.text())


if __name__ == "__main__":
    main()
```

```python
from gen_common import *
import mk2
from mk2 import *


def p3(a):
    a.stamp(0)
    a("s_cmp_ge_u32 s2, 240")
    a("s_cbranch_scc1 P3_END")
    a("s_and_b32 s48, s2, 7")
    a("s_lshr_b32 s49, s2, 3")
    a("s_lshl_b32 s50, s48, 1")
    a("s_cmp_ge_u32 s49, 15")
    a("s_cselect_b32 s51, 1, 0")
    a("s_add_u32 s50, s50, s51")
    a("s_mul_i32 s51, s51, 15")
    a("s_sub_u32 s51, s49, s51")
    a("s_mul_i32 s53, s3, 12288")
    a("s_mul_i32 s52, s51, 16*12288")
    a("s_add_u32 s52, s52, s53")
    a(f"s_add_u32 s52, s52, {WS_WF + WF_GU}")
    a("s_lshl_b32 s54, s50, 7")
    a("s_lshl_b32 s55, s3, 5")
    a("s_add_u32 s54, s54, s55")
    a("s_lshl_b32 s55, s54, 10")
    a(f"s_add_u32 s55, s55, {WS_X1}")
    a("s_add_u32 s56, s55, 16384")
    VDMA = V16
    XB = 32
    ACC = 128
    MD = 224
    TMP = 24
    a.vq = []
    a.lq = []

    def xreg(c, rt):
        return XB + ((((c // 4) % 3) * 4 + (c % 4)) * 2 + rt) * 4

    def d_items(q):
        slot = q % 3
        items = []
        for t in range(12):
            items.append([f"s_add_u32 m0, s53, {slot*49152 + t*1024}",
                          f"s_add_u32 s57, s52, {q*49152 + t*1024}",
                          ('v', ("D", q), f"buffer_load_dwordx4 v{VDMA}, s[40:43], s57 offen lds")])
        return items

    def x_items(q):
        items = []
        for c in range(4 * q, 4 * q + 4):
            for rt in range(2):
                b = xreg(c, rt)
                items.append([f"s_add_u32 s58, s{55+rt}, {q*4096}",
                              ('v', ("X", c), f"buffer_load_dwordx4 v[{b}:{b+3}], v{VDMA}, s[40:43], s58 offen offset:{(c&3)*1024}")])
        return items

    def issue(items):
        for it in items:
            for x in it:
                a.emit(x)
    issue(d_items(0))
    issue(d_items(1))
    VTB = [VDMA, 14, 15]
    a(f"v_add_u32 v14, 0x10000, v{VDMA}")
    a(f"v_add_u32 v15, 0x20000, v{VDMA}")
    VMODA = 16
    a(f"v_lshlrev_b32 v{VMODA}, 6, v{VG}")
    a(f"v_add_u32 v{VMODA}, {L_K3MOD}, v{VMODA}")
    a("s_mov_b32 s47, 0xffff0000")
    a(f"v_lshlrev_b32 v7, 3, v{VM_}")
    a("s_lshl_b32 s45, s50, 1")
    a("s_lshr_b32 s46, s3, 1")
    a("s_add_u32 s45, s45, s46")
    a("s_lshl_b32 s45, s45, 12")
    a("s_and_b32 s46, s3, 1")
    a("s_lshl_b32 s46, s46, 8")
    a("s_add_u32 s45, s45, s46")
    a(f"s_add_u32 s45, s45, {WS_ST2}")
    a("s_lshl_b32 s48, s50, 8")
    a(f"s_add_u32 s48, s48, {WS_FLG + F_G3}")
    a.stamp(1)
    poll(a, "G3", 16, V16, 48, presleep=0)
    a("s_barrier")
    a.stamp(2)
    ST = ACC
    for rt in range(2):
        for cb in range(8):
            a.vm("S", f"buffer_load_dwordx2 v[{ST+16*rt+2*cb}:{ST+16*rt+2*cb+1}], v7, s[40:43], s45 offen offset:{cb*512+rt*128} sc1")
    issue(x_items(0))
    issue(x_items(1))
    a.wv("S")
    RS = [10, 11]
    NM = [12, 13]
    for rt in range(2):
        s = ST + 16 * rt
        a(f"v_add_f32 v17, v{s}, v{s+2}")
        for i in range(2, 8):
            a(f"v_add_f32 v17, v17, v{s+2*i}")
        a("v_mul_f32 v17, 0x3e000000, v17")
        a(f"v_add_f32 v18, v{s+1}, v{s+3}")
        for i in range(2, 8):
            a(f"v_add_f32 v18, v18, v{s+2*i+1}")
        for i in range(8):
            a(f"v_sub_f32 v{s+2*i}, v{s+2*i}, v17")
        a(f"v_mul_f32 v{s+1}, v{s}, v{s}")
        for i in range(1, 8):
            a(f"v_fmac_f32 v{s+1}, v{s+2*i}, v{s+2*i}")
        a(f"v_fmac_f32 v18, 0x42800000, v{s+1}")
        a("s_mov_b32 s45, 0x3727c5ac")
        a(f"v_mov_b32 v{RS[rt]}, s45")
        a(f"v_fmac_f32 v{RS[rt]}, 0x3b000000, v18")
        a(f"v_rsq_f32 v{RS[rt]}, v{RS[rt]}")
        a.nop(1)
        a(f"v_mul_f32 v{NM[rt]}, v17, v{RS[rt]}")
        a(f"v_sub_f32 v{NM[rt]}, 0, v{NM[rt]}")
    for i in range(96):
        a(f"v_mov_b32 v{ACC+i}, 0")

    def lds_list(c):
        L = []
        if c > 15:
            return L
        m = MD + (c & 1) * 16
        for q in range(4):
            L.append(f"ds_read_b128 v[{m+4*q}:{m+4*q+3}], v{VMODA} offset:{c*256+q*16}")
        f = (c % 3) * 48
        slot = (c // 4) % 3
        for t in range(12):
            off = slot * 49152 + (c % 4) * 12288 + t * 1024
            r = f + t * 4
            L.append(f"ds_read_b128 a[{r}:{r+3}], v{VTB[off >> 16]} offset:{off & 0xffff}")
        return L

    def mod_list(c):
        L = []
        if c > 15:
            return L
        m = MD + (c & 1) * 16
        for rt in range(2):
            b = xreg(c, rt)
            for d in range(4):
                t0 = TMP + 2 * d
                L.append(f"v_lshlrev_b32 v{t0}, 16, v{b+d}")
                L.append(f"v_and_b32 v{t0+1}, s47, v{b+d}")
            for e in range(8):
                L.append(f"v_fma_f32 v{TMP+e}, v{TMP+e}, v{RS[rt]}, v{NM[rt]}")
            for e in range(8):
                L.append(f"v_fma_f32 v{TMP+e}, v{TMP+e}, v{m+e}, v{m+8+e}")
            for d in range(4):
                t0 = TMP + 2 * d
                L.append(f"v_cvt_pk_bf16_f32 v{b+d}, v{t0}, v{t0+1}")
        return L

    def mfma_list(c):
        L = []
        f = (c % 3) * 48
        for rt in range(2):
            b = xreg(c, rt)
            for t in range(12):
                d = ACC + (t * 2 + rt) * 4
                fa = f + t * 4
                L.append(f"v_mfma_f32_16x16x32_bf16 v[{d}:{d+3}], a[{fa}:{fa+3}], v[{b}:{b+3}], v[{d}:{d+3}]")
        return L

    a.wv(("X", 0))
    a.wv(("D", 0))
    a("s_waitcnt lgkmcnt(0)")
    a("s_barrier")
    a.stamp(3)
    for s in lds_list(0):
        a(s)
    for s in lds_list(1):
        a(s)
    a("s_waitcnt lgkmcnt(12)")
    for s in mod_list(0):
        a(s)
    for c in range(16):
        if c in (2, 6, 10):
            q = (c + 2) // 4
            a.wv(("X", c + 1))
            a.wv(("D", q))
            a("s_waitcnt lgkmcnt(0)")
            a("s_barrier")
        elif c + 1 <= 15:
            a.wv(("X", c + 1))
        if c + 1 <= 15:
            a("s_waitcnt lgkmcnt(12)")
        else:
            a("s_waitcnt lgkmcnt(0)")
        if c == 0:
            a.nop(1)
        extra = []
        if c < 8:
            it = d_items(2 + c // 4) + x_items(2 + c // 4)
            extra = it[5 * (c % 4):5 * (c % 4) + 5]
        others = lds_list(c + 2) + mod_list(c + 1)
        if extra:
            step = len(others) // len(extra)
            merged = []
            ei = 0
            for i, o in enumerate(others):
                merged.append(o)
                if ei < len(extra) and i % step == step - 1:
                    merged.extend(extra[ei])
                    ei += 1
            while ei < len(extra):
                merged.extend(extra[ei])
                ei += 1
            others = merged
        a.inter(mfma_list(c), others)
    a.stamp(4)
    a.nop(8)
    a("s_mov_b32 s60, 0x3d372713")
    a("s_mov_b32 s61, 0x3d372713")
    a("s_mov_b32 s62, 0xc0135761")
    a("s_mov_b32 s63, 0xc0135761")
    G = ACC
    U = ACC + 48
    for i in range(0, 96, 2):
        a(f"v_cvt_pk_bf16_f32 v{ACC+i}, v{ACC+i}, v{ACC+i+1}")
    for i in range(0, 96, 2):
        a(f"v_and_b32 v{ACC+i+1}, s47, v{ACC+i}")
        a(f"v_lshlrev_b32 v{ACC+i}, 16, v{ACC+i}")
    T = 32
    for i in range(0, 48, 2):
        a(f"v_pk_mul_f32 v[{T+i}:{T+i+1}], v[{G+i}:{G+i+1}], v[{G+i}:{G+i+1}]")
    for i in range(0, 48, 2):
        a(f"v_pk_fma_f32 v[{T+i}:{T+i+1}], v[{T+i}:{T+i+1}], s[60:61], 1.0 op_sel_hi:[1,1,0]")
    for i in range(0, 48, 2):
        a(f"v_pk_mul_f32 v[{T+i}:{T+i+1}], v[{T+i}:{T+i+1}], v[{G+i}:{G+i+1}]")
    for i in range(0, 48, 2):
        a(f"v_pk_mul_f32 v[{T+i}:{T+i+1}], v[{T+i}:{T+i+1}], s[62:63]")
    for i in range(48):
        a(f"v_exp_f32 v{T+i}, v{T+i}")
    for i in range(0, 48, 2):
        a(f"v_pk_add_f32 v[{T+i}:{T+i+1}], v[{T+i}:{T+i+1}], 1.0 op_sel_hi:[1,0]")
    for i in range(48):
        a(f"v_rcp_f32 v{T+i}, v{T+i}")
    for i in range(0, 48, 2):
        a(f"v_pk_mul_f32 v[{T+i}:{T+i+1}], v[{T+i}:{T+i+1}], v[{G+i}:{G+i+1}]")
    for i in range(0, 48, 2):
        a(f"v_cvt_pk_bf16_f32 v{T+i}, v{T+i}, v{T+i+1}")
    for i in range(0, 48, 2):
        a(f"v_and_b32 v{T+i+1}, s47, v{T+i}")
        a(f"v_lshlrev_b32 v{T+i}, 16, v{T+i}")
    for i in range(0, 48, 2):
        a(f"v_pk_mul_f32 v[{T+i}:{T+i+1}], v[{T+i}:{T+i+1}], v[{U+i}:{U+i+1}]")
    PK = 80
    for rt in range(2):
        for tt in range(6):
            s = T + (tt * 2 + rt) * 4
            p = PK + rt * 12 + tt * 2
            a(f"v_cvt_pk_bf16_f32 v{p}, v{s}, v{s+1}")
            a(f"v_cvt_pk_bf16_f32 v{p+1}, v{s+2}, v{s+3}")
    a(f"v_and_b32 v110, 1, v{VG}")
    a(f"v_lshrrev_b32 v111, 1, v{VG}")
    a(f"v_lshlrev_b32 v112, 4, v{VM_}")
    a("v_lshl_add_u32 v112, v110, 9, v112")
    a("v_lshl_add_u32 v112, v111, 8, v112")
    for rt in range(2):
        for i in range(3):
            p = PK + rt * 12 + i * 4
            a(f"v_permlane16_swap_b32 v{p}, v{p+2}")
            a(f"v_permlane16_swap_b32 v{p+1}, v{p+3}")
    a("s_lshr_b32 s57, s54, 4")
    a("s_mul_i32 s57, s57, 43")
    a("s_mul_i32 s58, s51, 3")
    a("s_add_u32 s57, s57, s58")
    a("s_lshl_b32 s57, s57, 10")
    a(f"s_add_u32 s57, s57, {WS_HH}")
    a("s_add_u32 s58, s57, 43*1024")
    for i in range(3):
        if i == 1:
            a("s_cmp_eq_u32 s51, 14")
            a("s_cbranch_scc1 P3_ST")
        for rt in range(2):
            p = PK + rt * 12 + i * 4
            a(f"buffer_store_dwordx4 v[{p}:{p+3}], v112, s[40:43], s{57+rt} offen offset:{i*1024} sc1")
    a.lab("P3_ST")
    a.stamp(5)
    a("s_waitcnt vmcnt(0)")
    a("s_barrier")
    a("s_cmp_lg_u32 s3, 0")
    a("s_cbranch_scc1 P3_END")
    a("v_mov_b32 v13, 1")
    a("v_mov_b32 v12, 0")
    a("s_lshl_b32 s48, s50, 8")
    a("s_lshl_b32 s49, s51, 4")
    a("s_add_u32 s49, s49, s48")
    a(f"s_add_u32 s49, s49, {WS_FLG + F_G4}")
    a("s_mov_b64 exec, 1")
    a("buffer_store_dword v13, v12, s[40:43], s49 offen sc1")
    a("s_mov_b64 exec, -1")
    a.lab("P3_END")
    a.stamp(6)


K4_SLOTS = 38


def p4(a):
    a("s_load_dwordx2 s[8:9], s[0:1], 80")
    VDMA = V16
    a("s_lshl_b32 s53, s3, 10")
    a("s_mul_i32 s52, s7, 43*4096")
    a("s_add_u32 s52, s52, s53")
    a(f"s_add_u32 s52, s52, {WS_WF + WF_D}")
    a("s_lshl_b32 s54, s6, 6")
    a("s_lshl_b32 s55, s3, 4")
    a("s_add_u32 s54, s54, s55")
    a("s_lshr_b32 s55, s54, 4")
    a("s_mul_i32 s55, s55, 43*1024")
    a(f"s_add_u32 s55, s55, {WS_HH}")
    HB = 64
    a.vq = []
    a.lq = []

    def issue_d(c):
        slot = c % K4_SLOTS
        a(f"s_add_u32 m0, s53, {slot*4096}")
        a(f"s_add_u32 s57, s52, {c*4096}")
        a.vm(("D", c), f"buffer_load_dwordx4 v{VDMA}, s[40:43], s57 offen lds")

    def issue_h(c):
        b = HB + 4 * c
        a(f"s_add_u32 s58, s55, {(c>>2)*4096}")
        a.vm(("H", c), f"buffer_load_dwordx4 v[{b}:{b+3}], v{VDMA}, s[40:43], s58 offen offset:{(c&3)*1024}")

    for c in range(K4_SLOTS):
        issue_d(c)
    VTB = [VDMA, 14, 15]
    a(f"v_add_u32 v14, 0x10000, v{VDMA}")
    a(f"v_add_u32 v15, 0x20000, v{VDMA}")
    ACC = 16
    for i in range(16):
        a(f"v_mov_b32 v{ACC+i}, 0")
    AF = [32, 48]
    a("s_waitcnt lgkmcnt(0)")
    srd(a, 12, 8, 0, 2048 * 1024)
    a("s_lshr_b32 s48, s6, 1")
    a("s_lshl_b32 s48, s48, 8")
    a(f"s_add_u32 s48, s48, {WS_FLG + F_G4}")
    a.stamp(7)
    poll(a, "G4", 15, V16, 48, presleep=0)
    a("s_barrier")
    a.stamp(8)
    for c in range(43):
        issue_h(c)

    def a_reads(c, buf):
        slot = c % K4_SLOTS
        f = AF[buf]
        for t in range(4):
            off = slot * 4096 + t * 1024
            r = f + 4 * t
            a(f"ds_read_b128 v[{r}:{r+3}], v{VTB[off >> 16]} offset:{off & 0xffff}")

    def mfmas(c, buf):
        f = AF[buf]
        b = HB + 4 * c
        for t in range(4):
            d = ACC + 4 * t
            a(f"v_mfma_f32_16x16x32_bf16 v[{d}:{d+3}], v[{f+4*t}:{f+4*t+3}], v[{b}:{b+3}], v[{d}:{d+3}]")

    issued = K4_SLOTS
    phases = [list(range(i, min(i + 4, 43))) for i in range(0, 43, 4)]
    for pi, ph in enumerate(phases):
        a.wv(("D", ph[-1]))
        a.wv(("H", ph[-1]))
        a("s_waitcnt lgkmcnt(0)")
        a("s_barrier")
        if pi == 0:
            a.stamp(9)
        nmore = 0
        while issued < 43 and nmore < 4 and (issued - K4_SLOTS) < ph[0]:
            issue_d(issued)
            issued += 1
            nmore += 1
        a_reads(ph[0], 0)
        for ci, c in enumerate(ph):
            buf = ci & 1
            if ci + 1 < len(ph):
                a_reads(ph[ci + 1], buf ^ 1)
                a("s_waitcnt lgkmcnt(4)")
            else:
                a("s_waitcnt lgkmcnt(0)")
            mfmas(c, buf)
    assert issued == 43
    a.stamp(10)
    XR, GB = 40, 48
    a(f"v_lshlrev_b32 v37, 4, v{VG}")
    a(f"v_add_u32 v37, {L_GB}, v37")
    a("s_lshl_b32 s56, s54, 10")
    a("s_lshl_b32 s57, s7, 7")
    a("s_add_u32 s56, s56, s57")
    a.nop(4)
    for t in range(4):
        a(f"ds_read_b128 v[{GB+4*t}:{GB+4*t+3}], v37 offset:{t*64}")
    for i in range(8):
        a(f"v_accvgpr_read_b32 v{XR+i}, a{248+i}")
    for t in range(4):
        d = ACC + 4 * t
        a(f"v_cvt_pk_bf16_f32 v{d}, v{d}, v{d+1}")
        a(f"v_cvt_pk_bf16_f32 v{d+2}, v{d+2}, v{d+3}")
    for t in range(4):
        d = ACC + 4 * t
        a(f"v_and_b32 v{d+1}, 0xffff0000, v{d}")
        a(f"v_lshlrev_b32 v{d}, 16, v{d}")
        a(f"v_and_b32 v{d+3}, 0xffff0000, v{d+2}")
        a(f"v_lshlrev_b32 v{d+2}, 16, v{d+2}")
    a("s_waitcnt lgkmcnt(0)")
    for i in range(16):
        a(f"v_mul_f32 v{ACC+i}, v{ACC+i}, v{GB+i}")
    for t in range(4):
        d = ACC + 4 * t
        a(f"v_cvt_pk_bf16_f32 v{d}, v{d}, v{d+1}")
        a(f"v_cvt_pk_bf16_f32 v{d+2}, v{d+2}, v{d+3}")
    for t in range(4):
        d = ACC + 4 * t
        a(f"v_and_b32 v{d+1}, 0xffff0000, v{d}")
        a(f"v_lshlrev_b32 v{d}, 16, v{d}")
        a(f"v_and_b32 v{d+3}, 0xffff0000, v{d+2}")
        a(f"v_lshlrev_b32 v{d+2}, 16, v{d+2}")
    X = 64
    for t in range(4):
        for d in range(2):
            a(f"v_lshlrev_b32 v{X+4*t+2*d}, 16, v{XR+2*t+d}")
            a(f"v_and_b32 v{X+4*t+2*d+1}, 0xffff0000, v{XR+2*t+d}")
    for i in range(16):
        a(f"v_add_f32 v{X+i}, v{X+i}, v{ACC+i}")
    PK = 80
    for t in range(4):
        a(f"v_cvt_pk_bf16_f32 v{PK+2*t}, v{X+4*t}, v{X+4*t+1}")
        a(f"v_cvt_pk_bf16_f32 v{PK+2*t+1}, v{X+4*t+2}, v{X+4*t+3}")
    a(f"v_and_b32 v92, 1, v{VG}")
    a(f"v_lshrrev_b32 v93, 1, v{VG}")
    a(f"v_lshlrev_b32 v94, 10, v{VM_}")
    a("v_lshl_add_u32 v94, v92, 5, v94")
    a("v_lshl_add_u32 v94, v93, 4, v94")
    a(f"v_permlane16_swap_b32 v{PK}, v{PK+2}")
    a(f"v_permlane16_swap_b32 v{PK+1}, v{PK+3}")
    a(f"v_permlane16_swap_b32 v{PK+4}, v{PK+6}")
    a(f"v_permlane16_swap_b32 v{PK+5}, v{PK+7}")
    a.nop(1)
    a(f"buffer_store_dwordx4 v[{PK}:{PK+3}], v94, s[12:15], s56 offen")
    a(f"buffer_store_dwordx4 v[{PK+4}:{PK+7}], v94, s[12:15], s56 offen offset:64")
    a.stamp(11)
```

```python
import sys, os, re
import gen_common
from gen_common import *
from k1v2 import reduce4_groups, bcast4_groups

WS_O = 0x300000
WS_FLG = 0x60000
F_B1, F_G2, F_G3, F_G4 = 0, 32768, 36864, 40960
WS_ST2 = 0x30000
SPIN_MAX = 400000

L_H = 0
L_XS = 65536
L_GV = 132096
L_MOD = 140288
L_RL = 144384
L_K3MOD = 144 * 1024
L_GA = 156 * 1024
L_GB = 156 * 1024 + 256
LDS_TOTAL = 160768

NSTAMP = 14


class M(A):
    def __init__(self):
        super().__init__()
        self.lq = []
        self.vq = []

    def stamp(self, i):
        if STAMP:
            self(f"s_memtime s[{72+2*i}:{73+2*i}]")

    def stamp_out(self, ph, n=NSTAMP):
        if not STAMP:
            return
        lab = f"STAMP_SKIP_{ph}"
        self("s_mov_b64 exec, -1")
        self(f"s_cmp_lg_u32 s2, {STAMP_WG}")
        self(f"s_cbranch_scc1 {lab}")
        self(f"s_cmp_lg_u32 s3, {STAMP_WAVE}")
        self(f"s_cbranch_scc1 {lab}")
        self("s_load_dwordx2 s[64:65], s[0:1], 88")
        self("s_waitcnt lgkmcnt(0)")
        self("s_mov_b32 s68, s64")
        self("s_and_b32 s69, s65, 0xffff")
        self("s_mov_b32 s70, 8192")
        self("s_mov_b32 s71, 0x00020000")
        self("v_mov_b32 v12, 0")
        for i in range(n):
            self(f"v_mov_b32 v13, s{72+2*i}")
            self(f"buffer_store_dword v13, v12, s[68:71], 0 offen offset:{512*ph+4*i}")
        for i in range(n):
            self(f"s_mov_b32 s{72+2*i}, 0")
        self.lab(lab)

    def lds(self, tag, s):
        self(s)
        self.lq.append(tag)

    def vm(self, tag, s):
        self(s)
        self.vq.append(tag)

    def wl(self, tag):
        idx = [i for i, t in enumerate(self.lq) if t == tag]
        if not idx:
            return
        n = len(self.lq) - 1 - idx[-1]
        self(f"s_waitcnt lgkmcnt({min(n, 15)})")

    def wv(self, tag):
        idx = [i for i, t in enumerate(self.vq) if t == tag]
        if not idx:
            return
        n = len(self.vq) - 1 - idx[-1]
        self(f"s_waitcnt vmcnt({min(n, 63)})")

    def emit(self, it):
        if isinstance(it, str):
            self(it)
        elif it[0] == 'l':
            self.lds(it[1], it[2])
        elif it[0] == 'v':
            self.vm(it[1], it[2])
        elif it[0] == 'wl':
            self.wl(it[1])
        elif it[0] == 'wv':
            self.wv(it[1])
        else:
            raise ValueError(it)

    def inter(self, mf, others):
        n = len(mf)
        k = len(others)
        oi = 0
        for i, m in enumerate(mf):
            self(m)
            tgt = (k * (i + 1) + n - 1) // n
            while oi < tgt:
                self.emit(others[oi])
                oi += 1
        while oi < k:
            self.emit(others[oi])
            oi += 1


VL, VG, VRR, VQ, VM_ = 1, 2, 3, 4, 5
V16 = 8


def wave_id(a, sreg, vtmp=1):
    a(f"v_lshrrev_b32 v{vtmp}, 6, v0")
    a("s_nop 0")
    a(f"v_readfirstlane_b32 s{sreg}, v{vtmp}")


def rl_issue(a, tagp, unit_expr_fn, lds_off):
    L = tagp
    unit_expr_fn()
    a("s_mov_b32 s55, 4")
    a("s_cmp_lt_u32 s54, 704")
    a(f"s_cbranch_scc1 {L}_C")
    a("s_load_dwordx2 s[56:57], s[0:1], 56")
    a("s_sub_u32 s54, s54, 704")
    a("s_and_b32 s48, s54, 7")
    a("s_lshr_b32 s49, s54, 3")
    a("s_movk_i32 s50, 1024")
    a("s_mov_b32 s58, 1376*1024")
    a("s_mul_i32 s60, s48, 43")
    a("s_add_u32 s60, s60, s49")
    a("s_lshl_b32 s60, s60, 12")
    a(f"s_add_u32 s60, s60, {WS_WF + WF_D}")
    a("s_add_u32 s61, s60, 1024")
    a("s_add_u32 s62, s60, 2048")
    a("s_add_u32 s63, s60, 3072")
    a("s_waitcnt lgkmcnt(0)")
    a(f"s_branch {L}_GO")
    a.lab(f"{L}_C")
    a("s_load_dwordx2 s[56:57], s[0:1], 40")
    a("s_load_dwordx2 s[52:53], s[0:1], 48")
    a("s_cmp_ge_u32 s54, 352")
    a("s_cselect_b32 s51, 1, 0")
    a("s_mul_i32 s48, s51, 352")
    a("s_sub_u32 s54, s54, s48")
    a("s_lshr_b32 s48, s54, 4")
    a("s_and_b32 s49, s54, 15")
    a("s_movk_i32 s50, 2752")
    a("s_mov_b32 s58, 512*2752")
    a("s_cmp_eq_u32 s48, 21")
    a("s_cselect_b32 s55, 2, 4")
    for i in range(4):
        a("s_lshl_b32 s54, s48, 2")
        a(f"s_add_u32 s54, s54, {i}")
        a("s_mul_i32 s59, s54, 43")
        a("s_lshr_b32 s59, s59, 8")
        a(f"s_mul_i32 s{60+i}, s59, 6")
        a(f"s_sub_u32 s54, s54, s{60+i}")
        a("s_lshl_b32 s59, s59, 4")
        a("s_add_u32 s59, s59, s49")
        a("s_lshl_b32 s59, s59, 1")
        a("s_add_u32 s59, s59, s51")
        a("s_mul_i32 s59, s59, 6")
        a("s_add_u32 s59, s59, s54")
        a("s_lshl_b32 s59, s59, 10")
        a(f"s_add_u32 s{60+i}, s59, {WS_WF + WF_GU}")
    a("s_waitcnt lgkmcnt(0)")
    a("s_cmp_eq_u32 s51, 1")
    a("s_cselect_b32 s56, s52, s56")
    a("s_cselect_b32 s57, s53, s57")
    a.lab(f"{L}_GO")
    a("s_and_b32 s57, s57, 0xffff")
    a("s_mov_b32 s59, 0x00020000")
    a("s_mul_i32 s51, s49, s50")
    a("s_lshl_b32 s51, s51, 5")
    a("s_lshl_b32 s48, s48, 7")
    a("s_add_u32 s51, s51, s48")
    a("s_lshl_b32 s52, s50, 3")
    a("s_lshl_b32 s53, s3, 12")
    a(f"s_add_u32 s53, s53, {lds_off}")
    a(f"v_lshrrev_b32 v12, 3, v{VL}")
    a(f"v_and_b32 v13, 7, v{VL}")
    a("v_mul_lo_u32 v12, v12, s50")
    a("v_lshl_add_u32 v12, v13, 4, v12")
    for i in range(4):
        a(f"s_add_u32 m0, s53, {i*1024}")
        a("s_nop 0")
        a.vm(tagp, "buffer_load_dwordx4 v12, s[56:59], s51 offen lds")
        a("s_add_u32 s51, s51, s52")


def rl_finish(a, tagp, lds_off, R):
    L = tagp
    a(f"v_lshlrev_b32 v12, 10, v{VG}")
    a(f"v_lshl_add_u32 v12, v{VRR}, 7, v12")
    a(f"v_lshl_add_u32 v12, v{VQ}, 3, v12")
    a("s_lshl_b32 s53, s3, 12")
    a(f"s_add_u32 s53, s53, {lds_off}")
    a("v_add_u32 v12, s53, v12")
    a.wv(tagp)
    for i in range(4):
        a(f"ds_read_b64_tr_b16 v[{R+4*i}:{R+4*i+1}], v12 offset:{i*32}")
        a(f"ds_read_b64_tr_b16 v[{R+4*i+2}:{R+4*i+3}], v12 offset:{512+i*32}")
    a("s_waitcnt lgkmcnt(0)")
    for i in range(4):
        if i == 2:
            a("s_cmp_lt_u32 s55, 4")
            a(f"s_cbranch_scc1 {L}_END")
        a(f"buffer_store_dwordx4 v[{R+4*i}:{R+4*i+3}], v{V16}, s[40:43], s{60+i} offen sc1")
    a.lab(f"{L}_END")


MD = 16
TMP = 48
XF = 64
ACC = 192
XB = 192
HFA = 192


def issue_xw(a):
    a("s_lshl_b32 s48, s6, 6")
    a("s_lshl_b32 s49, s3, 4")
    a("s_add_u32 s48, s48, s49")
    a("s_lshl_b32 s48, s48, 10")
    a("s_mul_i32 s49, s3, 16640")
    a(f"s_add_u32 s49, s49, {L_XS}")
    for r in range(16):
        a(f"s_add_u32 m0, s49, {r*1040 - (r&3)*1024}")
        if r % 4 == 0 and r:
            a("s_add_u32 s48, s48, 4096")
        else:
            a("s_nop 0")
        a(f"buffer_load_dwordx4 v{V16}, s[20:23], s48 offen offset:{(r&3)*1024} lds")
    a("s_mul_i32 s48, s3, 8*3072")
    a("s_lshl_b32 s49, s7, 7")
    a("s_add_u32 s48, s48, s49")
    for c in range(16):
        for seg in range(3):
            u = c * 3 + seg
            a(f"buffer_load_dwordx4 a[{4*u}:{4*u+3}], v9, s[24:27], s48 offen offset:{seg*1024}")
        if c < 15:
            a("s_add_u32 s48, s48, 32*3072")


def front(a):
    a.stamp(0)
    a("s_load_dwordx2 s[4:5], s[0:1], 96")
    a("s_load_dwordx2 s[8:9], s[0:1], 0")
    a("s_load_dwordx2 s[10:11], s[0:1], 8")
    a("s_load_dwordx2 s[12:13], s[0:1], 64")
    a("s_load_dwordx2 s[14:15], s[0:1], 72")
    a("s_load_dwordx2 s[16:17], s[0:1], 88")
    a("s_load_dwordx2 s[18:19], s[0:1], 16")
    wave_id(a, 3)
    a("s_and_b32 s48, s2, 7")
    a("s_lshr_b32 s49, s2, 3")
    a("s_lshl_b32 s6, s48, 2")
    a("s_lshr_b32 s50, s49, 3")
    a("s_add_u32 s6, s6, s50")
    a("s_and_b32 s7, s49, 7")
    lane_decode(a, VL, VG, VRR, VQ, VM_)
    a(f"v_lshlrev_b32 v{V16}, 4, v{VL}")
    a(f"v_lshrrev_b32 v9, 3, v{VL}")
    a(f"v_and_b32 v10, 7, v{VL}")
    a("v_mul_u32_u24 v9, 3072, v9")
    a("v_lshl_add_u32 v9, v10, 4, v9")
    a("s_waitcnt lgkmcnt(0)")
    srd(a, 32, 14, 0, 512 * 6144)
    srd(a, 28, 12, 0, 1024)
    srd(a, 40, 4, 0, 32 << 20)
    srd(a, 20, 8, 0, 2048 * 1024)
    srd(a, 24, 10, 0, 512 * 3072)
    srd(a, 36, 16, 0, 256)
    srd(a, 44, 18, 0, 32 * 512)
    a("s_cmp_ge_u32 s2, 192")
    a("s_cbranch_scc1 F_NOGV")
    a("s_and_b32 s50, s2, 3")
    a("s_lshr_b32 s51, s2, 2")
    a("v_and_b32 v10, 7, v0")
    a("v_lshrrev_b32 v11, 3, v0")
    a("v_mul_u32_u24 v12, 6144, v11")
    a("v_lshl_add_u32 v12, v10, 4, v12")
    a("v_lshlrev_b32 v13, 1, v11")
    a("s_mul_i32 s52, s50, 128*6144")
    a("s_lshl_b32 s53, s51, 7")
    a("s_add_u32 s52, s52, s53")
    a("s_lshl_b32 s53, s50, 8")
    for i in range(4):
        a(f"buffer_load_ushort v{16+i}, v13, s[28:31], s53 offen offset:{i*64}")
    for i in range(4):
        a(f"s_add_u32 s54, s52, {i*32*6144}")
        a(f"buffer_load_dwordx4 v[{24+4*i}:{27+4*i}], v12, s[32:35], s54 offen")
    a("s_cmp_eq_u32 s3, 0")
    a("s_cbranch_scc1 F_W0A")
    issue_xw(a)
    a("s_waitcnt vmcnt(63)")
    a("s_branch F_GV2")
    a.lab("F_W0A")
    a("s_cmp_ge_u32 s2, 64")
    a("s_cbranch_scc1 F_W0B")
    for i in range(4):
        a(f"v_mov_b32 v{48+i}, 0")
    a("s_mul_i32 s54, s2, 1088")
    a(f"s_add_u32 s54, s54, {WS_KV}")
    a(f"buffer_store_dwordx4 v[48:51], v{V16}, s[40:43], s54 offen sc1")
    a("s_lshl_b32 s55, s2, 10")
    a(f"s_add_u32 s55, s55, {WS_FLG}")
    a(f"buffer_store_dwordx4 v[48:51], v{V16}, s[40:43], s55 offen sc1")
    a("s_mov_b64 exec, 15")
    a(f"buffer_store_dwordx4 v[48:51], v{V16}, s[40:43], s54 offen offset:1024 sc1")
    a("s_mov_b64 exec, -1")
    a.lab("F_W0B")
    a("s_waitcnt vmcnt(0)")
    a.lab("F_GV2")
    for j in range(8):
        a(f"v_mov_b32 v{40+j}, 0")
    for i in range(4):
        a(f"v_lshlrev_b32 v{16+i}, 16, v{16+i}")
    for i in range(4):
        a(f"v_mul_f32 v{20+i}, 0xbfb8aa3b, v{16+i}")
    for i in range(4):
        a(f"v_exp_f32 v{20+i}, v{20+i}")
    a.nop(1)
    for i in range(4):
        a(f"v_add_f32 v{20+i}, 1.0, v{20+i}")
    for i in range(4):
        a(f"v_rcp_f32 v{20+i}, v{20+i}")
    a.nop(1)
    for i in range(4):
        a(f"v_mul_f32 v{16+i}, v{16+i}, v{20+i}")
    for i in range(4):
        a(f"v_cvt_pk_bf16_f32 v{16+i}, v{16+i}, v{16+i}")
    for i in range(4):
        a(f"v_lshlrev_b32 v{16+i}, 16, v{16+i}")
    for i in range(4):
        for d in range(4):
            w = 24 + 4 * i + d
            a(f"v_lshlrev_b32 v20, 16, v{w}")
            a(f"v_and_b32 v21, 0xffff0000, v{w}")
            a(f"v_fmac_f32 v{40+2*d}, v{16+i}, v20")
            a(f"v_fmac_f32 v{41+2*d}, v{16+i}, v21")
    a("v_lshlrev_b32 v12, 8, v11")
    a("v_lshl_add_u32 v12, v10, 5, v12")
    a(f"v_add_u32 v12, {L_GV}, v12")
    a("ds_write_b128 v12, v[40:43]")
    a("ds_write_b128 v12, v[44:47] offset:16")
    a("s_waitcnt lgkmcnt(0)")
    a("s_barrier")
    a("s_cmp_lg_u32 s3, 0")
    a("s_cbranch_scc1 F_JOIN")
    a("v_lshlrev_b32 v12, 2, v0")
    a(f"v_add_u32 v13, {L_GV}, v12")
    for r in range(32):
        a(f"ds_read_b32 v{16+r}, v13 offset:{r*256}")
    a("s_waitcnt lgkmcnt(0)")
    for st in (16, 8, 4, 2, 1):
        for r in range(st):
            a(f"v_add_f32 v{16+r}, v{16+r}, v{16+r+st}")
    a("s_mul_i32 s54, s50, 3072*4")
    a("s_lshl_b32 s55, s51, 8")
    a("s_add_u32 s54, s54, s55")
    a(f"buffer_store_dword v16, v12, s[40:43], s54 offen sc1")
    a("s_cmp_ge_u32 s2, 64")
    a("s_cbranch_scc1 F_NOGV")
    a("s_waitcnt vmcnt(0)")
    a("v_mov_b32 v16, 1")
    a("v_mov_b32 v17, 0")
    a("s_lshl_b32 s54, s2, 2")
    a("s_mov_b64 exec, 1")
    a("buffer_store_dword v16, v17, s[36:39], s54 offen sc1")
    a("s_mov_b64 exec, -1")
    a.lab("F_NOGV")
    issue_xw(a)
    a.lab("F_JOIN")
    a.stamp(1)
    a.vq = ["X"] * 16 + [("W", u // 48 * 0 + u // 16) for u in range(48)]
    a(f"v_lshlrev_b32 v12, 7, v{VG}")
    a(f"v_lshl_add_u32 v12, v{VM_}, 1, v12")
    a("s_lshl_b32 s48, s7, 2")
    a("s_add_u32 s48, s48, s3")
    a("s_lshl_b32 s48, s48, 9")
    for j in range(4):
        a.vm("P", f"buffer_load_ushort v{56+j}, v12, s[44:47], s48 offen offset:{j*32}")

    def u0():
        a("s_lshl_b32 s54, s2, 2")
        a("s_add_u32 s54, s54, s3")
    rl_issue(a, "RLA", u0, L_RL)
    a("s_mul_i32 s48, s3, 16640")
    a(f"s_add_u32 s48, s48, {L_XS}")
    a(f"v_mul_u32_u24 v10, 1040, v{VM_}")
    a(f"v_lshl_add_u32 v10, v{VG}, 4, v10")
    a("v_add_u32 v10, s48, v10")
    ONES = 48
    for i in range(4):
        a(f"v_mov_b32 v{ONES+i}, 0x3f803f80")
    S = 16
    for i in range(16):
        a(f"v_mov_b32 v{S+i}, 0")
    a.wv("X")
    a.stamp(2)
    for c in range(16):
        a.lds(("xr", c), f"ds_read_b128 v[{XB+4*c}:{XB+4*c+3}], v10 offset:{c*64}")
    for c in range(16):
        a.wl(("xr", c))
        b = XB + 4 * c
        s1 = S + (c & 1) * 4
        s2 = S + 8 + (c & 1) * 4
        a(f"v_mfma_f32_16x16x32_bf16 v[{s1}:{s1+3}], v[{ONES}:{ONES+3}], v[{b}:{b+3}], v[{s1}:{s1+3}]")
        a(f"v_mfma_f32_16x16x32_bf16 v[{s2}:{s2+3}], v[{b}:{b+3}], v[{b}:{b+3}], v[{s2}:{s2+3}]")
        f = XF + 8 * c
        for d in range(4):
            a(f"v_lshlrev_b32 v{f+2*d}, 16, v{b+d}")
            a(f"v_and_b32 v{f+2*d+1}, 0xffff0000, v{b+d}")
    a.nop(8)
    a(f"v_add_f32 v{S}, v{S}, v{S+4}")
    for r in range(4):
        a(f"v_add_f32 v{S+8+r}, v{S+8+r}, v{S+12+r}")
    a(f"v_and_b32 v32, 3, v{VM_}")
    a("v_cmp_eq_u32 vcc, 1, v32")
    a(f"v_cndmask_b32 v33, v{S+8}, v{S+9}, vcc")
    a("v_cmp_eq_u32 vcc, 2, v32")
    a(f"v_cndmask_b32 v33, v33, v{S+10}, vcc")
    a("v_cmp_eq_u32 vcc, 3, v32")
    a(f"v_cndmask_b32 v33, v33, v{S+11}, vcc")
    a(f"v_lshrrev_b32 v32, 2, v{VM_}")
    a(f"v_cmp_eq_u32 vcc, v32, v{VG}")
    a("v_cndmask_b32 v33, 0, v33, vcc")
    xgroup_reduce(a, [33], [34], "v_add_f32")
    a(f"v_mul_f32 v34, 0x3b000000, v{S}")
    a("v_mul_f32 v33, 0x3b000000, v33")
    a("v_fma_f32 v33, -v34, v34, v33")
    a("v_max_f32 v33, 0, v33")
    a("v_add_f32 v33, 0x3727c5ac, v33")
    a("v_rsq_f32 v36, v33")
    a.nop(1)
    a("v_mul_f32 v38, v34, v36")
    a("v_sub_f32 v38, 0, v38")
    a.stamp(3)

    def norm_chunk(c):
        f = XF + 8 * c
        L = []
        for d in range(4):
            L.append(f"v_pk_fma_f32 v[{f+2*d}:{f+2*d+1}], v[{f+2*d}:{f+2*d+1}], v[36:37], v[38:39] op_sel_hi:[1,0,0]")
        for d in range(4):
            L.append(f"v_cvt_pk_bf16_f32 v{f+2*d}, v{f+2*d}, v{f+2*d+1}")
        for d in range(4):
            L.append(f"v_and_b32 v{f+2*d+1}, 0xffff0000, v{f+2*d}")
            L.append(f"v_lshlrev_b32 v{f+2*d}, 16, v{f+2*d}")
        return L
    a("s_lshl_b32 s48, s3, 10")
    a(f"v_add_u32 v10, s48, v{V16}")
    a(f"v_lshlrev_b32 v11, 10, v{VG}")
    a(f"v_lshl_add_u32 v11, v{VRR}, 7, v11")
    a(f"v_lshl_add_u32 v11, v{VQ}, 3, v11")
    a("s_lshl_b32 s48, s3, 5")
    a("v_add_u32 v11, s48, v11")
    nc = 0
    for b in range(3):
        a.wv(("W", b))
        for i in range(16):
            u = 16 * b + i
            a(f"ds_write_b128 v10, a[{4*u}:{4*u+3}] offset:{L_H + i*4096}")
        for x in norm_chunk(nc):
            a(x)
        nc += 1
        a("s_waitcnt lgkmcnt(0)")
        a("s_barrier")
        for i in range(16):
            u = 16 * b + i
            a(f"ds_read_b64_tr_b16 a[{4*u}:{4*u+1}], v11 offset:{L_H + i*4096}")
            a(f"ds_read_b64_tr_b16 a[{4*u+2}:{4*u+3}], v11 offset:{L_H + i*4096 + 512}")
        for k in range(4):
            for x in norm_chunk(nc):
                a(x)
            nc += 1
        a("s_waitcnt lgkmcnt(0)")
        a("s_barrier")
    while nc < 16:
        for x in norm_chunk(nc):
            a(x)
        nc += 1
    a.lq = []
    a.stamp(4)
    rl_finish(a, "RLA", L_RL, 16)
    a("s_cmp_lt_u32 s2, 192")
    a("s_cbranch_scc1 F_NORLB")
    a("s_cmp_ge_u32 s2, 198")
    a("s_cbranch_scc1 F_NORLB")

    def u1():
        a("s_lshl_b32 s54, s2, 2")
        a("s_add_u32 s54, s54, s3")
        a("s_add_u32 s54, s54, 256")
    a("s_waitcnt lgkmcnt(0)")
    rl_issue(a, "RLB", u1, L_RL)
    rl_finish(a, "RLB", L_RL, 16)
    a.lab("F_NORLB")
    a("s_waitcnt vmcnt(0)")
    a("v_lshl_or_b32 v14, v57, 16, v56")
    a("v_lshl_or_b32 v15, v59, 16, v58")
    a.vq = []
    for i in range(48):
        a(f"v_mov_b32 v{ACC+i}, 0")
    a.stamp(5)
    a("s_cmp_lg_u32 s3, 0")
    a("s_cbranch_scc1 F_PW")
    a(f"v_lshlrev_b32 v12, 2, v{VL}")
    a("s_mov_b32 s48, 0")
    a.lab("F_PP")
    a("buffer_load_dword v13, v12, s[36:39], 0 offen sc1")
    a("s_add_u32 s48, s48, 1")
    a(f"s_cmp_gt_u32 s48, {SPIN_MAX}")
    a("s_cbranch_scc1 F_PW")
    a("s_waitcnt vmcnt(0)")
    a("v_cmp_ne_u32 vcc, 1, v13")
    a("s_cbranch_vccz F_PW")
    a("s_sleep 6")
    a("s_branch F_PP")
    a.lab("F_PW")
    a("s_waitcnt vmcnt(0)")
    a("s_barrier")
    a.stamp(6)


def mod_table(a, col0, lds_base, T):
    a("v_lshlrev_b32 v12, 3, v0")
    for p in range(4):
        a(f"s_mov_b32 s48, {p*3072*4 + col0*4}")
        a(f"buffer_load_dwordx2 v[{T+2*p}:{T+2*p+1}], v12, s[40:43], s48 offen sc1")
        a(f"buffer_load_dwordx2 v[{T+8+2*p}:{T+9+2*p}], v12, s[40:43], s48 offen offset:2048 sc1")


def mod_table_fin(a, lds_base, T):
    a(f"v_pk_add_f32 v[{T}:{T+1}], v[{T}:{T+1}], v[{T+2}:{T+3}]")
    a(f"v_pk_add_f32 v[{T+4}:{T+5}], v[{T+4}:{T+5}], v[{T+6}:{T+7}]")
    a(f"v_pk_add_f32 v[{T+8}:{T+9}], v[{T+8}:{T+9}], v[{T+10}:{T+11}]")
    a(f"v_pk_add_f32 v[{T+12}:{T+13}], v[{T+12}:{T+13}], v[{T+14}:{T+15}]")
    a(f"v_pk_add_f32 v[{T}:{T+1}], v[{T}:{T+1}], v[{T+4}:{T+5}]")
    a(f"v_pk_add_f32 v[{T+8}:{T+9}], v[{T+8}:{T+9}], v[{T+12}:{T+13}]")
    a(f"v_cvt_pk_bf16_f32 v{T+2}, v{T}, v{T+1}")
    a(f"v_cvt_pk_bf16_f32 v{T+3}, v{T+8}, v{T+9}")
    a(f"v_lshlrev_b32 v{T}, 16, v{T+2}")
    a(f"v_and_b32 v{T+1}, 0xffff0000, v{T+2}")
    a(f"v_lshlrev_b32 v{T+4}, 16, v{T+3}")
    a(f"v_and_b32 v{T+5}, 0xffff0000, v{T+3}")
    a(f"v_add_f32 v{T+4}, 1.0, v{T+4}")
    a(f"v_add_f32 v{T+5}, 1.0, v{T+5}")
    a(f"v_cvt_pk_bf16_f32 v{T+3}, v{T+4}, v{T+5}")
    a(f"v_lshlrev_b32 v{T+4}, 16, v{T+3}")
    a(f"v_and_b32 v{T+5}, 0xffff0000, v{T+3}")
    a("v_lshrrev_b32 v12, 2, v0")
    a("v_and_b32 v13, 3, v0")
    a("v_lshlrev_b32 v12, 6, v12")
    a("v_lshl_add_u32 v12, v13, 3, v12")
    a(f"v_add_u32 v12, {lds_base}, v12")
    a(f"ds_write_b64 v12, v[{T+4}:{T+5}]")
    a(f"ds_write_b64 v12, v[{T}:{T+1}] offset:32")


PH = 64


def p1(a):
    mod_table(a, 0, L_MOD, 240)
    VMODA, VHW = 10, 11
    a(f"v_lshlrev_b32 v{VMODA}, 6, v{VG}")
    a(f"v_add_u32 v{VMODA}, {L_MOD}, v{VMODA}")
    a("s_lshl_b32 s48, s3, 14")
    a(f"v_add_u32 v{VHW}, s48, v{V16}")
    a("s_waitcnt vmcnt(0)")
    mod_table_fin(a, L_MOD, 240)
    a("s_waitcnt lgkmcnt(0)")
    a("s_barrier")
    a.stamp(7)
    a.lq = []

    def mreads(c):
        m = MD + (c & 1) * 16
        return [('l', ("m", c), f"ds_read_b128 v[{m+4*q}:{m+4*q+3}], v{VMODA} offset:{c*256+q*16}") for q in range(4)]

    def mwork(c):
        m = MD + (c & 1) * 16
        f = XF + 8 * c
        t = TMP + (c & 1) * 8
        L = [('wl', ("m", c))]
        for e in range(8):
            L.append(f"v_fma_f32 v{t+e}, v{f+e}, v{m+e}, v{m+8+e}")
        for d in range(4):
            L.append(f"v_cvt_pk_bf16_f32 v{t+d}, v{t+2*d}, v{t+2*d+1}")
        L.append(('l', ("hw", c), f"ds_write_b128 v{VHW}, v[{t}:{t+3}] offset:{L_H + c*1024}"))
        return L

    def hreads(c):
        if c > 15:
            return []
        L = []
        for rt in range(4):
            r = HFA + (c & 3) * 16 + rt * 4
            L.append(('l', ("h", c), f"ds_read_b128 a[{r}:{r+3}], v{V16} offset:{L_H + (rt*16+c)*1024}"))
        return L

    def mfmas(c):
        L = []
        for rt in range(4):
            b = HFA + (c & 3) * 16 + rt * 4
            for seg in range(3):
                d = ACC + (seg * 4 + rt) * 4
                w = (c * 3 + seg) * 4
                if seg < 2:
                    L.append(f"v_mfma_f32_16x16x32_bf16 v[{d}:{d+3}], a[{w}:{w+3}], a[{b}:{b+3}], v[{d}:{d+3}]")
                else:
                    L.append(f"v_mfma_f32_16x16x32_bf16 v[{d}:{d+3}], a[{b}:{b+3}], a[{w}:{w+3}], v[{d}:{d+3}]")
        return L

    def modq(q):
        L = mreads(4 * q) + mreads(4 * q + 1)
        for i in range(4):
            c = 4 * q + i
            L += mwork(c)
            if i + 2 < 4:
                L += mreads(c + 2)
        return L
    for it in modq(0):
        a.emit(it)
    a("s_waitcnt lgkmcnt(0)")
    a("s_barrier")
    for it in hreads(0):
        a.emit(it)
    for c in range(16):
        q = c // 4
        oth = []
        if c % 4 == 3 and c < 15:
            a("s_waitcnt lgkmcnt(0)")
            a("s_barrier")
        else:
            a.wl(("h", c))
        oth += hreads(c + 1)
        if q < 3 and c % 4 < 3:
            S = modq(q + 1)
            n = len(S)
            i = c % 4
            oth += S[i * n // 3:(i + 1) * n // 3]
        a.inter(mfmas(c), oth)
    a.stamp(8)
    a("s_waitcnt lgkmcnt(0)")
    a("s_barrier")
    a("s_load_dwordx2 s[8:9], s[0:1], 24")
    a(f"v_lshrrev_b32 v12, 3, v{VL}")
    a(f"v_and_b32 v13, 7, v{VL}")
    a("v_lshlrev_b32 v12, 10, v12")
    a("v_lshl_add_u32 v12, v13, 4, v12")
    a("s_lshl_b32 s48, s3, 13")
    a("s_lshl_b32 s49, s7, 7")
    a("s_add_u32 s48, s48, s49")
    a("s_lshl_b32 s49, s3, 10")
    a("s_waitcnt lgkmcnt(0)")
    srd(a, 24, 8, 0, 512 * 1024)
    for c in range(16):
        a(f"s_add_u32 m0, s49, {L_H + c*4096}")
        a(f"s_add_u32 s50, s48, {c*32768}")
        a("buffer_load_dwordx4 v12, s[24:27], s50 offen lds")
    WPH = 14
    QB = 32
    for t in range(8):
        d = ACC + t * 4
        a(f"v_cvt_pk_bf16_f32 v{QB+2*t}, v{d}, v{d+1}")
        a(f"v_cvt_pk_bf16_f32 v{QB+2*t+1}, v{d+2}, v{d+3}")
    VB = 48
    for rt in range(4):
        d = ACC + (8 + rt) * 4
        a(f"v_cvt_pk_bf16_f32 v{VB+2*rt}, v{d}, v{d+1}")
        a(f"v_cvt_pk_bf16_f32 v{VB+2*rt+1}, v{d+2}, v{d+3}")
    P = 208
    a.nop(1)
    for t in range(8):
        a(f"v_mfma_f32_16x16x16_bf16 v[{P+4*t}:{P+4*t+3}], v[{WPH}:{WPH+1}], v[{QB+2*t}:{QB+2*t+1}], 0")
    a.nop(6)
    for t in range(8):
        p = P + 4 * t
        a(f"v_cvt_pk_bf16_f32 v{p}, v{p}, v{p+1}")
        a(f"v_cvt_pk_bf16_f32 v{p+2}, v{p+2}, v{p+3}")
    for t in range(8):
        p = P + 4 * t
        a(f"v_and_b32 v{p+1}, 0xffff0000, v{p}")
        a(f"v_lshlrev_b32 v{p}, 16, v{p}")
        a(f"v_and_b32 v{p+3}, 0xffff0000, v{p+2}")
        a(f"v_lshlrev_b32 v{p+2}, 16, v{p+2}")
    MX = [96 + 2 * t for t in range(8)]
    MN = [112 + 2 * t for t in range(8)]
    for t in range(8):
        p = P + 4 * t
        a(f"v_max3_f32 v{MX[t]}, v{p}, v{p+1}, v{p+2}")
        a(f"v_min3_f32 v{MN[t]}, v{p}, v{p+1}, v{p+2}")
    for t in range(8):
        p = P + 4 * t
        a(f"v_max_f32 v{MX[t]}, v{MX[t]}, v{p+3}")
        a(f"v_min_f32 v{MN[t]}, v{MN[t]}, v{p+3}")
    gx = [tuple(MX[0:4]), tuple(MX[4:8])]
    gn = [tuple(MN[0:4]), tuple(MN[4:8])]
    a.nop(1)
    for X, Y, U, W in gx + gn:
        a(f"v_permlane16_swap_b32 v{X}, v{Y}")
        a(f"v_permlane16_swap_b32 v{U}, v{W}")
    for grp, op in ((gx, "v_max_f32"), (gn, "v_min_f32")):
        for X, Y, U, W in grp:
            a(f"{op} v{X}, v{X}, v{Y}")
            a(f"{op} v{U}, v{U}, v{W}")
    a.nop(1)
    for X, Y, U, W in gx + gn:
        a(f"v_permlane32_swap_b32 v{X}, v{U}")
    a.nop(1)
    for grp, op in ((gx, "v_max_f32"), (gn, "v_min_f32")):
        for X, Y, U, W in grp:
            a(f"{op} v{X}, v{X}, v{U}")
    a(f"s_mov_b32 s60, 0x{LOG2E:x}")
    a(f"s_mov_b32 s61, 0x{LOG2E:x}")
    for X, Y, U, W in gx + gn:
        a(f"v_mul_f32 v{X}, s60, v{X}")
    bcast4_groups(a, gx + gn)
    E = 128
    for t in range(8):
        p = P + 4 * t
        e = E + 8 * t
        for r in (0, 2):
            a(f"v_pk_fma_f32 v[{e+r}:{e+r+1}], v[{p+r}:{p+r+1}], s[60:61], v[{MX[t]}:{MX[t]+1}] op_sel_hi:[1,1,0] neg_lo:[0,0,1] neg_hi:[0,0,1]")
            a(f"v_pk_fma_f32 v[{e+4+r}:{e+5+r}], v[{p+r}:{p+r+1}], s[60:61], v[{MN[t]}:{MN[t]+1}] op_sel_hi:[1,1,0] neg_lo:[1,0,0] neg_hi:[1,0,0]")
    SP = MX
    SN = MN
    T2 = 64
    for t in range(8):
        e = E + 8 * t
        for r in range(8):
            a(f"v_exp_f32 v{e+r}, v{e+r}")
        if t > 0:
            e2 = E + 8 * (t - 1)
            a(f"v_pk_add_f32 v[{T2+4*(t-1)}:{T2+4*(t-1)+1}], v[{e2}:{e2+1}], v[{e2+2}:{e2+3}]")
            a(f"v_pk_add_f32 v[{T2+4*(t-1)+2}:{T2+4*(t-1)+3}], v[{e2+4}:{e2+5}], v[{e2+6}:{e2+7}]")
    a.nop(1)
    e2 = E + 8 * 7
    a(f"v_pk_add_f32 v[{T2+28}:{T2+29}], v[{e2}:{e2+1}], v[{e2+2}:{e2+3}]")
    a(f"v_pk_add_f32 v[{T2+30}:{T2+31}], v[{e2+4}:{e2+5}], v[{e2+6}:{e2+7}]")
    for t in range(8):
        a(f"v_add_f32 v{SP[t]}, v{T2+4*t}, v{T2+4*t+1}")
        a(f"v_add_f32 v{SN[t]}, v{T2+4*t+2}, v{T2+4*t+3}")
    reduce4_groups(a, gx + gn, "v_add_f32")
    for X, Y, U, W in gx + gn:
        a(f"v_rcp_f32 v{X}, v{X}")
    a.nop(1)
    bcast4_groups(a, gx + gn)
    for t in (4, 5, 6, 7, 0, 1, 2, 3):
        e = E + 8 * t
        for r in (0, 2):
            a(f"v_pk_mul_f32 v[{e+r}:{e+r+1}], v[{e+r}:{e+r+1}], v[{SP[t]}:{SP[t]+1}] op_sel_hi:[1,0]")
            a(f"v_pk_mul_f32 v[{e+4+r}:{e+5+r}], v[{e+4+r}:{e+5+r}], v[{SN[t]}:{SN[t]+1}] op_sel_hi:[1,0]")
    a("s_lshl_b32 s57, s3, 12")
    a(f"s_add_u32 s57, s57, {L_XS}")
    a(f"v_lshlrev_b32 v12, 6, v{VM_}")
    a(f"v_lshl_add_u32 v12, v{VG}, 4, v12")
    a("v_add_u32 v12, s57, v12")
    for t in (4, 5, 6, 7):
        e = E + 8 * t
        for d in range(4):
            a(f"v_cvt_pk_bf16_f32 v{PH+4*t+d}, v{e+2*d}, v{e+2*d+1}")
        a(f"ds_write_b128 v12, v[{PH+4*t}:{PH+4*t+3}] offset:{(t-4)*1024}")
    for t in (0, 1, 2, 3):
        e = E + 8 * t
        for d in range(4):
            a(f"v_cvt_pk_bf16_f32 v{PH+4*t+d}, v{e+2*d}, v{e+2*d+1}")
    a(f"v_lshlrev_b32 v12, 8, v{VG}")
    a(f"v_lshl_add_u32 v12, v{VRR}, 6, v12")
    a(f"v_lshl_add_u32 v12, v{VQ}, 3, v12")
    a("v_add_u32 v12, s57, v12")
    ONES = 152
    for i in range(4):
        a(f"v_mov_b32 v{ONES+i}, 0x3f803f80")
    a("s_waitcnt lgkmcnt(0)")
    KA = 128
    for ks in range(2):
        for ft in range(2):
            for rt in range(2):
                r = KA + (ks * 2 + ft) * 4 + rt * 2
                a(f"ds_read_b64_tr_b16 v[{r}:{r+1}], v12 offset:{ks*2048+rt*1024+ft*32}")
    a(f"v_lshlrev_b32 v12, 7, v{VM_}")
    a(f"v_lshl_add_u32 v12, v{VG}, 4, v12")
    a("v_add_u32 v12, s57, v12")
    a(f"v_lshlrev_b32 v13, 4, v{VG}")
    a("v_add_u32 v13, s57, v13")
    a("s_waitcnt lgkmcnt(0)")
    DK = 160
    for ks in range(2):
        for ft in range(2):
            ka = KA + (ks * 2 + ft) * 4
            cc = "0" if ks == 0 else f"v[{DK+4*ft}:{DK+4*ft+3}]"
            a(f"v_mfma_f32_16x16x32_bf16 v[{DK+4*ft}:{DK+4*ft+3}], v[{ka}:{ka+3}], v[{VB+4*ks}:{VB+4*ks+3}], {cc}")
        for ft in range(2):
            ka = KA + (ks * 2 + ft) * 4
            cc = "0" if ks == 0 else f"v[{DK+8+4*ft}:{DK+8+4*ft+3}]"
            a(f"v_mfma_f32_16x16x32_bf16 v[{DK+8+4*ft}:{DK+8+4*ft+3}], v[{ka}:{ka+3}], v[{ONES}:{ONES+3}], {cc}")
    a.nop(8)
    a(f"ds_write_b128 v12, v[{DK}:{DK+3}]")
    a(f"ds_write_b128 v12, v[{DK+4}:{DK+7}] offset:64")
    a(f"ds_write_b128 v13, v[{DK+8}:{DK+11}] offset:2048")
    a(f"ds_write_b128 v13, v[{DK+12}:{DK+15}] offset:2112")
    a(f"v_lshlrev_b32 v12, 2, v{VL}")
    a("v_add_u32 v13, s57, v12")
    a("s_lshl_b32 s58, s7, 2")
    a("s_add_u32 s58, s58, s3")
    a("s_mul_i32 s58, s58, 2176")
    a(f"s_add_u32 s58, s58, {WS_KV}")
    a("s_waitcnt lgkmcnt(0)")
    for e in range(9):
        a(f"ds_read_b32 v{32+e}, v13 offset:{e*256}")
    a("s_waitcnt lgkmcnt(0)")
    for e in range(8):
        a(f"buffer_atomic_add_f32 v{32+e}, v12, s[40:43], s58 offen offset:{e*256} sc1")
    a("s_mov_b64 exec, 0xffffffff")
    a("buffer_atomic_add_f32 v40, v12, s[40:43], s58 offen offset:2048 sc1")
    a("s_mov_b64 exec, -1")
    a.stamp(9)


def poll(a, lab, nl, voff, soff, presleep=0):
    a("s_cmp_lg_u32 s3, 0")
    a(f"s_cbranch_scc1 {lab}_W")
    if nl < 64:
        a(f"s_mov_b64 exec, {(1 << nl) - 1}")
    a("s_mov_b32 s49, 0")
    if presleep:
        a(f"s_sleep {presleep}")
    a.lab(f"{lab}_P")
    a(f"buffer_load_dword v13, v{voff}, s[40:43], s{soff} offen sc1")
    a("s_add_u32 s49, s49, 1")
    a(f"s_cmp_gt_u32 s49, {SPIN_MAX}")
    a(f"s_cbranch_scc1 {lab}_W")
    a("s_waitcnt vmcnt(0)")
    a("v_cmp_ne_u32 vcc, 1, v13")
    a(f"s_cbranch_vccz {lab}_W")
    a("s_sleep 3")
    a(f"s_branch {lab}_P")
    a.lab(f"{lab}_W")
    a("s_mov_b64 exec, -1")


def p2(a):
    a("s_waitcnt vmcnt(0)")
    a("s_barrier")
    a("s_cmp_lg_u32 s3, 0")
    a("s_cbranch_scc1 B1_A")
    a(f"v_lshlrev_b32 v12, 12, v{VL}")
    a("v_mov_b32 v13, 1")
    a("s_lshl_b32 s48, s2, 4")
    a(f"s_add_u32 s48, s48, {WS_FLG + F_B1}")
    a("s_mov_b64 exec, 255")
    a("buffer_store_dword v13, v12, s[40:43], s48 offen sc1")
    a("s_mov_b64 exec, -1")
    a.lab("B1_A")
    a(f"v_lshlrev_b32 v12, 9, v{VG}")
    a(f"v_lshl_add_u32 v12, v{VRR}, 7, v12")
    a(f"v_lshl_add_u32 v12, v{VQ}, 3, v12")
    a("s_lshl_b32 s48, s3, 14")
    a("v_add_u32 v12, s48, v12")
    a(f"v_add_u32 v13, s48, v{V16}")
    R = 128
    for u in range(4):
        for i in range(4):
            r = R + u * 16 + 4 * i
            a(f"ds_read_b64_tr_b16 v[{r}:{r+1}], v12 offset:{L_H + u*4096 + i*32}")
            a(f"ds_read_b64_tr_b16 v[{r+2}:{r+3}], v12 offset:{L_H + u*4096 + 2048 + i*32}")
    XR = 224
    a(f"v_lshlrev_b32 v10, 10, v{VM_}")
    a(f"v_lshl_add_u32 v10, v{VG}, 3, v10")
    a("s_lshl_b32 s54, s6, 6")
    a("s_lshl_b32 s55, s3, 4")
    a("s_add_u32 s54, s54, s55")
    a("s_lshl_b32 s56, s54, 10")
    a("s_lshl_b32 s57, s7, 7")
    a("s_add_u32 s56, s56, s57")
    for t in range(4):
        a(f"buffer_load_dwordx2 v[{XR+2*t}:{XR+2*t+1}], v10, s[20:23], s56 offen offset:{t*32}")
    a("s_waitcnt lgkmcnt(0)")
    for u in range(4):
        for i in range(4):
            r = R + u * 16 + 4 * i
            a(f"ds_write_b128 v13, v[{r}:{r+3}] offset:{L_H + u*4096 + i*1024}")
    a.stamp(10)
    a("s_cmp_lg_u32 s3, 0")
    a("s_cbranch_scc1 B1_W")
    a(f"v_lshlrev_b32 v12, 6, v{VL}")
    a("s_and_b32 s48, s2, 7")
    a("s_lshl_b32 s48, s48, 12")
    a(f"s_add_u32 s48, s48, {WS_FLG + F_B1}")
    a("s_mov_b32 s49, 0")
    a("s_sleep 6")
    a.lab("B1_P")
    for q in range(4):
        a(f"buffer_load_dword v{16+q}, v12, s[40:43], s48 offen offset:{q*16} sc1")
    a("s_add_u32 s49, s49, 1")
    a(f"s_cmp_gt_u32 s49, {SPIN_MAX}")
    a("s_cbranch_scc1 B1_W")
    a("s_waitcnt vmcnt(0)")
    a("v_and_b32 v16, v16, v17")
    a("v_and_b32 v18, v18, v19")
    a("v_and_b32 v16, v16, v18")
    a("v_cmp_ne_u32 vcc, 1, v16")
    a("s_cbranch_vccz B1_W")
    a("s_sleep 6")
    a("s_branch B1_P")
    a.lab("B1_W")
    a("s_waitcnt vmcnt(0) lgkmcnt(0)")
    a("s_barrier")
    a.stamp(11)
    a(f"v_lshlrev_b32 v12, 7, v{VM_}")
    a(f"v_lshl_add_u32 v12, v{VG}, 5, v12")
    a(f"v_lshlrev_b32 v13, 5, v{VG}")
    KF = 16
    a(f"buffer_load_dwordx4 v[{KF}:{KF+3}], v12, s[40:43], s58 offen sc1")
    a(f"buffer_load_dwordx4 v[{KF+4}:{KF+7}], v12, s[40:43], s58 offen offset:16 sc1")
    a(f"buffer_load_dwordx4 v[{KF+8}:{KF+11}], v13, s[40:43], s58 offen offset:2048 sc1")
    a(f"buffer_load_dwordx4 v[{KF+12}:{KF+15}], v13, s[40:43], s58 offen offset:2064 sc1")
    mod_table(a, 1536, L_K3MOD, 240)
    a(f"v_lshlrev_b32 v11, 2, v{VL}")
    a("s_and_b32 s48, s3, 1")
    a("s_mul_i32 s48, s48, 1536*4")
    a("s_lshl_b32 s49, s7, 8")
    a("s_add_u32 s48, s48, s49")
    a("s_add_u32 s48, s48, 4096")
    for p in range(4):
        a(f"s_add_u32 s49, s48, {p*3072*4}")
        a(f"buffer_load_dword v{232+p}, v11, s[40:43], s49 offen sc1")
    a("s_waitcnt vmcnt(12)")
    for i in range(8):
        a(f"v_cvt_pk_bf16_f32 v{KF+i}, v{KF+2*i}, v{KF+2*i+1}")
    ND = 128
    a.nop(1)
    for rt in range(4):
        b = PH + 4 * rt
        a(f"v_mfma_f32_16x16x32_bf16 v[{ND+8*rt}:{ND+8*rt+3}], v[{KF}:{KF+3}], v[{b}:{b+3}], 0")
        a(f"v_mfma_f32_16x16x32_bf16 v[{ND+8*rt+4}:{ND+8*rt+7}], v[{KF+4}:{KF+7}], v[{b}:{b+3}], 0")
    a("s_mov_b32 s60, 0x358637bd")
    L_OC = L_XS + 16384
    a(f"v_lshlrev_b32 v12, 4, v{VL}")
    a("s_lshr_b32 s48, s3, 1")
    a("s_lshl_b32 s48, s48, 10")
    a("s_and_b32 s49, s3, 1")
    a("s_lshl_b32 s49, s49, 3")
    a("s_add_u32 s48, s48, s49")
    a(f"s_add_u32 s48, s48, {L_OC}")
    a("v_add_u32 v12, s48, v12")
    a.nop(6)
    for rt in range(4):
        n = ND + 8 * rt
        a(f"v_add_f32 v{n+4}, s60, v{n+4}")
    for rt in range(4):
        n = ND + 8 * rt
        a(f"v_rcp_f32 v{n+4}, v{n+4}")
    a.nop(1)
    for rt in range(4):
        n = ND + 8 * rt
        for r in range(4):
            a(f"v_mul_f32 v{n+r}, v{n+r}, v{n+4}")
    for rt in range(4):
        n = ND + 8 * rt
        a(f"v_cvt_pk_bf16_f32 v{n}, v{n}, v{n+1}")
        a(f"v_cvt_pk_bf16_f32 v{n+1}, v{n+2}, v{n+3}")
        a(f"ds_write_b64 v12, v[{n}:{n+1}] offset:{rt*2048}")
    a("s_waitcnt vmcnt(0)")
    mod_table_fin(a, L_K3MOD, 240)
    a("v_add_f32 v232, v232, v233")
    a("v_add_f32 v234, v234, v235")
    a("v_add_f32 v232, v232, v234")
    a("v_cvt_pk_bf16_f32 v232, v232, v232")
    a("v_lshlrev_b32 v232, 16, v232")
    a("s_and_b32 s48, s3, 1")
    a("s_lshl_b32 s48, s48, 8")
    a(f"s_add_u32 s48, s48, {L_GA}")
    a("v_add_u32 v11, s48, v11")
    a("ds_write_b32 v11, v232")
    a("s_lshl_b32 s48, s3, 11")
    a(f"s_add_u32 s48, s48, {L_OC}")
    a(f"v_add_u32 v12, s48, v{V16}")
    a("s_waitcnt lgkmcnt(0)")
    a("s_barrier")
    a("ds_read_b128 v[16:19], v12")
    a("ds_read_b128 v[20:23], v12 offset:1024")
    a("s_lshl_b32 s55, s54, 10")
    a(f"s_add_u32 s55, s55, {WS_O}")
    a("s_lshl_b32 s48, s7, 11")
    a("s_add_u32 s48, s48, s55")
    a("s_waitcnt lgkmcnt(0)")
    a(f"buffer_store_dwordx4 v[16:19], v{V16}, s[40:43], s48 offen sc1")
    a(f"buffer_store_dwordx4 v[20:23], v{V16}, s[40:43], s48 offen offset:1024 sc1")
    a("s_waitcnt vmcnt(0)")
    a("s_barrier")
    a.stamp(12)
    a("s_lshl_b32 s48, s6, 7")
    a(f"s_add_u32 s48, s48, {WS_FLG + F_G2}")
    a("s_cmp_lg_u32 s3, 0")
    a("s_cbranch_scc1 G2_A")
    a("v_mov_b32 v13, 1")
    a("v_mov_b32 v12, 0")
    a("s_lshl_b32 s49, s7, 4")
    a("s_add_u32 s49, s49, s48")
    a("s_mov_b64 exec, 1")
    a("buffer_store_dword v13, v12, s[40:43], s49 offen sc1")
    a("s_mov_b64 exec, -1")
    a.lab("G2_A")
    ACC2 = 24
    for i in range(16):
        a(f"v_mov_b32 v{ACC2+i}, 0")
    poll(a, "G2", 8, V16, 48, presleep=6)
    a("s_waitcnt vmcnt(0)")
    a("s_barrier")
    a.stamp(13)
    OB = 64
    a.vq = []
    a.lq = []
    for c in range(16):
        if c % 4 == 0:
            a(f"s_add_u32 s48, s55, {c*1024}")
        a.vm(("o", c), f"buffer_load_dwordx4 v[{OB+4*c}:{OB+4*c+3}], v{V16}, s[40:43], s48 offen offset:{(c&3)*1024}")
    WF = 128

    def wreads(c):
        if c > 15:
            return []
        return [('l', ("w", c), f"ds_read_b128 v[{WF+(c%3)*16+4*t}:{WF+(c%3)*16+4*t+3}], v{V16} offset:{L_H + c*4096 + t*1024}") for t in range(4)]
    for it in wreads(0) + wreads(1):
        a.emit(it)
    GA = 232
    a(f"v_lshlrev_b32 v12, 4, v{VG}")
    a(f"v_add_u32 v12, {L_GA}, v12")
    for c in range(16):
        a.wv(("o", c))
        a.wl(("w", c))
        mf = []
        for t in range(4):
            d = ACC2 + 4 * t
            w = WF + (c % 3) * 16 + 4 * t
            mf.append(f"v_mfma_f32_16x16x32_bf16 v[{d}:{d+3}], v[{w}:{w+3}], v[{OB+4*c}:{OB+4*c+3}], v[{d}:{d+3}]")
        oth = wreads(c + 2)
        if c == 14:
            oth = [('l', "ga", f"ds_read_b128 v[{GA+4*t}:{GA+4*t+3}], v12 offset:{t*64}") for t in range(4)]
        a.inter(mf, oth)
    ACCx = ACC2
    X = 64
    for t in range(4):
        for d in range(2):
            a(f"v_lshlrev_b32 v{X+4*t+2*d}, 16, v{XR+2*t+d}")
            a(f"v_and_b32 v{X+4*t+2*d+1}, 0xffff0000, v{XR+2*t+d}")
    a("s_waitcnt lgkmcnt(0)")
    a.nop(4)
    for t in range(4):
        d = ACCx + 4 * t
        a(f"v_cvt_pk_bf16_f32 v{d}, v{d}, v{d+1}")
        a(f"v_cvt_pk_bf16_f32 v{d+2}, v{d+2}, v{d+3}")
    for t in range(4):
        d = ACCx + 4 * t
        a(f"v_and_b32 v{d+1}, 0xffff0000, v{d}")
        a(f"v_lshlrev_b32 v{d}, 16, v{d}")
        a(f"v_and_b32 v{d+3}, 0xffff0000, v{d+2}")
        a(f"v_lshlrev_b32 v{d+2}, 16, v{d+2}")
    for i in range(16):
        a(f"v_mul_f32 v{ACCx+i}, v{ACCx+i}, v{GA+i}")
    for t in range(4):
        d = ACCx + 4 * t
        a(f"v_cvt_pk_bf16_f32 v{d}, v{d}, v{d+1}")
        a(f"v_cvt_pk_bf16_f32 v{d+2}, v{d+2}, v{d+3}")
    for t in range(4):
        d = ACCx + 4 * t
        a(f"v_and_b32 v{d+1}, 0xffff0000, v{d}")
        a(f"v_lshlrev_b32 v{d}, 16, v{d}")
        a(f"v_and_b32 v{d+3}, 0xffff0000, v{d+2}")
        a(f"v_lshlrev_b32 v{d+2}, 16, v{d+2}")
    for i in range(16):
        a(f"v_add_f32 v{X+i}, v{X+i}, v{ACCx+i}")
    PK = 80
    for t in range(4):
        a(f"v_cvt_pk_bf16_f32 v{PK+2*t}, v{X+4*t}, v{X+4*t+1}")
        a(f"v_cvt_pk_bf16_f32 v{PK+2*t+1}, v{X+4*t+2}, v{X+4*t+3}")
    for t in range(4):
        for d in range(2):
            a(f"v_lshlrev_b32 v{X+4*t+2*d}, 16, v{PK+2*t+d}")
            a(f"v_and_b32 v{X+4*t+2*d+1}, 0xffff0000, v{PK+2*t+d}")
    for i in range(8):
        a(f"v_accvgpr_write_b32 a{248+i}, v{PK+i}")
    a(f"v_permlane16_swap_b32 v{PK}, v{PK+2}")
    a(f"v_permlane16_swap_b32 v{PK+1}, v{PK+3}")
    a(f"v_permlane16_swap_b32 v{PK+4}, v{PK+6}")
    a(f"v_permlane16_swap_b32 v{PK+5}, v{PK+7}")
    a(f"v_and_b32 v92, 1, v{VG}")
    a(f"v_lshrrev_b32 v93, 1, v{VG}")
    a(f"v_lshlrev_b32 v94, 4, v{VM_}")
    a("v_lshl_add_u32 v94, v92, 9, v94")
    a("v_lshl_add_u32 v94, v93, 8, v94")
    a("s_lshl_b32 s59, s54, 10")
    a("s_lshl_b32 s57, s7, 11")
    a("s_add_u32 s59, s59, s57")
    a(f"s_add_u32 s59, s59, {WS_X1}")
    a(f"buffer_store_dwordx4 v[{PK}:{PK+3}], v94, s[40:43], s59 offen sc1")
    a(f"buffer_store_dwordx4 v[{PK+4}:{PK+7}], v94, s[40:43], s59 offen offset:1024 sc1")
    a(f"v_add_f32 v90, v{X}, v{X+1}")
    for i in range(2, 16):
        a(f"v_add_f32 v90, v90, v{X+i}")
    xgroup_reduce(a, [90], [91], "v_add_f32")
    a("v_mul_f32 v90, 0x3c800000, v90")
    for i in range(16):
        a(f"v_sub_f32 v{X+i}, v{X+i}, v90")
    a(f"v_mul_f32 v91, v{X}, v{X}")
    for i in range(1, 16):
        a(f"v_fmac_f32 v91, v{X+i}, v{X+i}")
    xgroup_reduce(a, [91], [92], "v_add_f32")
    a(f"v_lshlrev_b32 v95, 3, v{VM_}")
    a("s_lshl_b32 s57, s6, 3")
    a("s_add_u32 s57, s57, s7")
    a("s_lshl_b32 s57, s57, 9")
    a("s_lshl_b32 s48, s3, 7")
    a("s_add_u32 s57, s57, s48")
    a(f"s_add_u32 s57, s57, {WS_ST2}")
    a("s_mov_b64 exec, 0xffff")
    a("buffer_store_dwordx2 v[90:91], v95, s[40:43], s57 offen sc1")
    a("s_mov_b64 exec, -1")
    a("s_waitcnt vmcnt(0)")
    a("s_barrier")
    a("s_cmp_lg_u32 s3, 0")
    a("s_cbranch_scc1 G3_A")
    a("v_mov_b32 v13, 1")
    a("v_mov_b32 v12, 0")
    a("s_lshl_b32 s48, s6, 7")
    a("s_lshl_b32 s49, s7, 4")
    a("s_add_u32 s49, s49, s48")
    a(f"s_add_u32 s49, s49, {WS_FLG + F_G3}")
    a("s_mov_b64 exec, 1")
    a("buffer_store_dword v13, v12, s[40:43], s49 offen sc1")
    a("s_mov_b64 exec, -1")
    a.lab("G3_A")


def main():
    import p34
    a = M()
    a.raw(f"; @launch kernel=mk_kernel grid=(256,1,1) block=(256,1,1) lds={LDS_TOTAL}")
    a.raw('.amdgcn_target "amdgcn-amd-amdhsa--gfx950"')
    a.raw(".text")
    kernel_head(a, "mk_kernel")
    a("s_cmp_ge_u32 s2, 256")
    a("s_cbranch_scc1 MK_END")
    front(a)
    p1(a)
    p2(a)
    if STAMP:
        a("s_waitcnt lgkmcnt(0)")
        a.stamp_out(1)
    p34.p3(a)
    p34.p4(a)
    if STAMP:
        a("s_waitcnt lgkmcnt(0)")
        a.stamp_out(2)
    a.lab("MK_END")
    a("s_endpgm")
    a.raw('.section .rodata,"a"')
    a.raw(".p2align 6")
    a.raw(kernel_desc("mk_kernel", 256, agpr=256))
    out = sys.argv[1] if len(sys.argv) > 1 else f"cdna_kernels/{NAME}.s"
    open(out, "w").write(a.text())


if __name__ == "__main__":
    main()
```

```python
from gen_common import *
import mk5
from mk5 import *


def d_addr(d):
    if d >= 39:
        d -= 39
    if d < 12:
        return 110592 + d * 4096
    if d < 24:
        return (d - 12) * 4096
    return 49152 + (d - 24) * 4096


VDD = 63


def p4_setup(a):
    a("s_load_dwordx2 s[16:17], s[0:1], 56")
    a(f"v_lshrrev_b32 v12, 3, v{VL}")
    a(f"v_and_b32 v13, 7, v{VL}")
    a("v_and_b32 v16, 3, v12")
    a("v_lshrrev_b32 v17, 2, v12")
    a("v_xor_b32 v16, v16, v17")
    a("v_lshlrev_b32 v16, 1, v16")
    a("v_xor_b32 v13, v13, v16")
    a("v_lshlrev_b32 v12, 10, v12")
    a(f"v_lshl_add_u32 v{VDD}, v13, 4, v12")
    a("s_lshl_b32 s44, s3, 13")
    a("s_lshl_b32 s45, s7, 7")
    a("s_add_u32 s44, s44, s45")
    a("s_lshl_b32 s45, s3, 10")
    a("s_waitcnt lgkmcnt(0)")
    srd(a, 24, 16, 0, 1376 * 1024)


def p4_dma(d):
    return [f"s_add_u32 m0, s45, {d_addr(d)}",
            f"s_add_u32 s50, s44, {d*32768}",
            ('v', ("E", d), f"buffer_load_dwordx4 v{VDD}, s[24:27], s50 offen lds")]


def tr_base(a, dst):
    a(f"v_lshl_add_u32 v{dst}, v{VG}, 2, v{VRR}")
    a(f"v_mul_u32_u24 v{dst}, 192, v{dst}")
    a(f"v_lshl_add_u32 v{dst}, v{VQ}, 3, v{dst}")


def p3x(a):
    T = 16
    mod_table(a, 1536, 0, T)
    tr_base(a, 12)
    a(f"v_and_b32 v13, 1, v{VG}")
    a("s_and_b32 s48, s3, 1")
    a("s_mul_i32 s48, s48, 3")
    a("s_lshr_b32 s49, s3, 1")
    a("s_mul_i32 s49, s49, 6144")
    VA = 32
    for i in range(3):
        a(f"s_add_u32 s51, s48, {i}")
        a("v_xor_b32 v14, s51, v13")
        a(f"v_lshl_add_u32 v{VA+3*i}, v14, 5, v12")
        a(f"v_add_u32 v{VA+3*i}, s49, v{VA+3*i}")
        a(f"v_add_u32 v{VA+3*i+1}, 0x10000, v{VA+3*i}")
        a(f"v_add_u32 v{VA+3*i+2}, 0x20000, v{VA+3*i}")
    a("s_waitcnt vmcnt(0)")
    a(f"v_pk_add_f32 v[{T}:{T+1}], v[{T}:{T+1}], v[{T+2}:{T+3}]")
    a(f"v_pk_add_f32 v[{T+4}:{T+5}], v[{T+4}:{T+5}], v[{T+6}:{T+7}]")
    a(f"v_pk_add_f32 v[{T+8}:{T+9}], v[{T+8}:{T+9}], v[{T+10}:{T+11}]")
    a(f"v_pk_add_f32 v[{T+12}:{T+13}], v[{T+12}:{T+13}], v[{T+14}:{T+15}]")
    a(f"v_pk_add_f32 v[{T}:{T+1}], v[{T}:{T+1}], v[{T+4}:{T+5}]")
    a(f"v_pk_add_f32 v[{T+8}:{T+9}], v[{T+8}:{T+9}], v[{T+12}:{T+13}]")
    a(f"v_cvt_pk_bf16_f32 v{T+2}, v{T}, v{T+1}")
    a(f"v_cvt_pk_bf16_f32 v{T+3}, v{T+8}, v{T+9}")
    a(f"v_lshlrev_b32 v{T+4}, 16, v{T+3}")
    a(f"v_and_b32 v{T+5}, 0xffff0000, v{T+3}")
    a(f"v_add_f32 v{T+4}, 1.0, v{T+4}")
    a(f"v_add_f32 v{T+5}, 1.0, v{T+5}")
    a(f"v_cvt_pk_bf16_f32 v{T+3}, v{T+4}, v{T+5}")
    a("v_lshlrev_b32 v12, 2, v0")
    a(f"v_add_u32 v12, {L_AS}, v12")
    a(f"ds_write_b32 v12, v{T+3}")
    a(f"ds_write_b32 v12, v{T+2} offset:1024")
    a(f"v_and_b32 v12, 1, v{VM_}")
    a("v_lshlrev_b32 v12, 10, v12")
    a(f"v_lshl_add_u32 v12, v{VG}, 3, v12")
    a(f"v_add_u32 v12, {L_AS}, v12")
    a("s_waitcnt lgkmcnt(0)")
    a("s_barrier")
    B = 64
    for c in range(16):
        a(f"ds_read_b64 v[{B+4*c}:{B+4*c+1}], v12 offset:{c*64}")
        a(f"ds_read_b64 v[{B+4*c+2}:{B+4*c+3}], v12 offset:{c*64+32}")
    AC = 48

    def grp(cs):
        for c in cs:
            for i in range(3):
                off = p3_slot(c) * 12288
                r = (c * 3 + i) * 4
                a(f"ds_read_b64_tr_b16 a[{r}:{r+1}], v{VA+3*i+(off>>16)} offset:{off & 0xffff}")
                off += 3072
                a(f"ds_read_b64_tr_b16 a[{r+2}:{r+3}], v{VA+3*i+(off>>16)} offset:{off & 0xffff}")
        a("s_waitcnt lgkmcnt(0)")

    def mm(cs):
        for c in cs:
            for i in range(3):
                r = (c * 3 + i) * 4
                d = AC + 4 * i
                cc = "0" if c == 0 else f"v[{d}:{d+3}]"
                a(f"v_mfma_f32_16x16x32_bf16 v[{d}:{d+3}], a[{r}:{r+3}], v[{B+4*c}:{B+4*c+3}], {cc}")
    grp(range(0, 3))
    a("s_barrier")
    for c in range(13, 16):
        for it in p3_dma(c):
            for x in it:
                a.emit(x)
    grp(range(3, 13))
    mm(range(0, 13))
    a("s_waitcnt vmcnt(0)")
    a("s_barrier")
    grp(range(13, 16))
    mm(range(13, 16))
    a(f"v_lshlrev_b32 v12, 6, v{VM_}")
    a(f"v_lshl_add_u32 v12, v{VG}, 4, v12")
    a("s_mul_i32 s48, s32, 1536")
    a("s_mul_i32 s49, s3, 384")
    a("s_add_u32 s48, s48, s49")
    a(f"s_add_u32 s48, s48, {WS_AS}")
    a("s_mov_b32 s50, 0x00030003")
    a("s_mov_b32 s51, 0x00030003")
    a.nop(4)
    a("s_mov_b64 exec, s[50:51]")
    for i in range(3):
        a(f"buffer_store_dwordx4 v[{AC+4*i}:{AC+4*i+3}], v12, s[40:43], s48 offen offset:{i*128} sc1")
    a("s_mov_b64 exec, -1")
    a("s_waitcnt vmcnt(0)")
    a("s_barrier")
    a("s_cmp_lg_u32 s3, 0")
    a("s_cbranch_scc1 P3X_E")
    a("v_mov_b32 v13, 1")
    a("v_mov_b32 v12, 0")
    a("s_lshl_b32 s48, s32, 7")
    a(f"s_add_u32 s48, s48, {WS_FLG + F_G5}")
    a("s_mov_b64 exec, 1")
    a("buffer_store_dword v13, v12, s[40:43], s48 offen sc1")
    a("s_mov_b64 exec, -1")
    a.lab("P3X_E")


def p3(a):
    a.stamp(0)
    p4_setup(a)
    a("s_cmp_lt_u32 s2, 240")
    a("s_cbranch_scc1 P3_GO")
    a("s_cmp_eq_u32 s2, 255")
    a("s_cbranch_scc1 P3X_S")
    p3x(a)
    a.lab("P3X_S")
    a("s_waitcnt vmcnt(0)")
    a("s_barrier")
    for d in range(39):
        for x in p4_dma(d):
            a.emit(x)
    a("s_branch P3_END")
    a.lab("P3_GO")
    a("s_lshl_b32 s54, s33, 7")
    a("s_lshl_b32 s55, s3, 5")
    a("s_add_u32 s54, s54, s55")
    a("s_lshl_b32 s55, s54, 10")
    a(f"s_add_u32 s55, s55, {WS_X1}")
    a("s_add_u32 s56, s55, 16384")
    ACC = 64
    a.vq = []
    a.lq = []

    def yreg(c, rt):
        if c < 12:
            b = 144 + (c * 2 + rt) * 4
            return f"a[{b}:{b+3}]"
        b = 160 + ((c - 12) * 2 + rt) * 4
        return f"v[{b}:{b+3}]"
    VE = [6, 7, 9]
    VO = [10, 11, 14]
    tr_base(a, 12)
    a(f"v_and_b32 v13, 1, v{VG}")
    a("v_lshlrev_b32 v13, 5, v13")
    a(f"v_add_u32 v{VE[0]}, v12, v13")
    a(f"v_sub_u32 v{VO[0]}, v12, v13")
    a(f"v_add_u32 v{VO[0]}, 32, v{VO[0]}")
    for k in (1, 2):
        a(f"v_add_u32 v{VE[k]}, {k<<16}, v{VE[0]}")
        a(f"v_add_u32 v{VO[k]}, {k<<16}, v{VO[0]}")
    a("s_mov_b32 s47, 0xffff0000")
    a(f"v_lshlrev_b32 v15, 3, v{VM_}")
    a(f"v_lshlrev_b32 v48, 4, v{VG}")
    a("s_lshl_b32 s52, s33, 1")
    a("s_lshr_b32 s53, s3, 1")
    a("s_add_u32 s52, s52, s53")
    a("s_lshl_b32 s52, s52, 12")
    a("s_and_b32 s53, s3, 1")
    a("s_lshl_b32 s53, s53, 8")
    a("s_add_u32 s52, s52, s53")
    a(f"s_add_u32 s52, s52, {WS_ST2}")
    a("s_mul_i32 s53, s32, 1536")
    a(f"s_add_u32 s53, s53, {WS_AS}")
    a("s_lshl_b32 s51, s32, 7")
    a(f"s_add_u32 s51, s51, {WS_FLG + F_G5}")
    a("s_lshl_b32 s48, s33, 8")
    a(f"s_add_u32 s48, s48, {WS_FLG + F_G3}")
    a.stamp(1)
    poll(a, "G3", 16, V16, 48, presleep=0)
    a("s_waitcnt vmcnt(0)")
    a("s_barrier")
    a.stamp(2)
    for c in range(16):
        for rt in range(2):
            if c % 4 == 0:
                a(f"s_add_u32 s{57+rt}, s{55+rt}, {(c>>2)*4096}")
            a.vm(("X", c), f"buffer_load_dwordx4 {yreg(c, rt)}, v{V16}, s[40:43], s{57+rt} offen offset:{(c&3)*1024}")

    def lds_list(c):
        L = []
        if c > 15:
            return L
        f = (c % 3) * 48
        for t in range(12):
            gu, tt = t // 6, t % 6
            off = p3_slot(c) * 12288 + gu * 6144 + (tt & ~1) * 32
            V = VO if tt & 1 else VE
            r = f + t * 4
            L.append(f"ds_read_b64_tr_b16 a[{r}:{r+1}], v{V[off >> 16]} offset:{off & 0xffff}")
            off += 3072
            L.append(f"ds_read_b64_tr_b16 a[{r+2}:{r+3}], v{V[off >> 16]} offset:{off & 0xffff}")
        return L

    def mfma_list(c):
        L = []
        f = (c % 3) * 48
        for rt in range(2):
            for t in range(12):
                d = ACC + (t * 2 + rt) * 4
                fa = f + t * 4
                cc = "0" if c == 0 else f"v[{d}:{d+3}]"
                L.append(f"v_mfma_f32_16x16x32_bf16 v[{d}:{d+3}], a[{fa}:{fa+3}], {yreg(c, rt)}, {cc}")
        return L
    ST = 192
    RS = [50, 52]
    NM = [54, 56]

    def stat_loads():
        L = []
        for rt in range(2):
            for cb in range(8):
                L.append(('v', "S", f"buffer_load_dwordx2 v[{ST+16*rt+2*cb}:{ST+16*rt+2*cb+1}], v15, s[40:43], s52 offen offset:{cb*512+rt*128} sc1"))
        return L

    def stat_code():
        L = [('wv', "S")]
        for st in (8, 4, 2):
            for rt in range(2):
                s = ST + 16 * rt
                for i in range(st):
                    L.append(f"v_add_f32 v{s+i}, v{s+i}, v{s+i+st}")
        for rt in range(2):
            s = ST + 16 * rt
            L.append(f"v_mul_f32 v{s}, 0x3b000000, v{s}")
            L.append(f"v_mul_f32 v{s+1}, 0x3b000000, v{s+1}")
        for rt in range(2):
            s = ST + 16 * rt
            L.append(f"v_fma_f32 v{s+1}, -v{s}, v{s}, v{s+1}")
        for rt in range(2):
            s = ST + 16 * rt
            L.append(f"v_max_f32 v{s+1}, 0, v{s+1}")
        for rt in range(2):
            s = ST + 16 * rt
            L.append(f"v_add_f32 v{s+1}, 0x3727c5ac, v{s+1}")
        for rt in range(2):
            s = ST + 16 * rt
            L.append(f"v_rsq_f32 v{RS[rt]}, v{s+1}")
        L.append("s_nop 1")
        for rt in range(2):
            s = ST + 16 * rt
            L.append(f"v_mul_f32 v{NM[rt]}, v{s}, v{RS[rt]}")
        for rt in range(2):
            L.append(f"v_sub_f32 v{NM[rt]}, 0, v{NM[rt]}")
        return L

    def asreg(t, kind):
        i = t * 2 + kind
        return 192 + 4 * i if i < 16 else 16 + 4 * (i - 16)

    def as_loads():
        L = []
        for t in range(12):
            for kind in range(2):
                r = asreg(t, kind)
                L.append(('v', "AS", f"buffer_load_dwordx4 v[{r}:{r+3}], v48, s[40:43], s53 offen offset:{t*128+kind*64} sc1"))
        return L

    def flat(items):
        L = []
        for it in items:
            L += it
        return L
    for s in lds_list(0) + lds_list(1):
        a(s)
    a.stamp(3)
    for c in range(16):
        extra = []
        if c in (3, 7, 11):
            if c == 11:
                a.wv(("D", 15))
            a("s_waitcnt lgkmcnt(15)")
            a("s_barrier")
        if c == 1:
            extra = stat_loads()
        if c == 3:
            extra = flat(p3_dma(13) + p3_dma(14) + p3_dma(15))
        if c == 5:
            extra = stat_code()
        if c in (7, 8, 11, 12):
            d0 = {7: 0, 8: 6, 11: 12, 12: 18}[c]
            extra = flat([p4_dma(d) for d in range(d0, d0 + 6)])
        if c == 9:
            extra = ["v_mov_b32 v12, 0", ('v', "F", "buffer_load_dword v13, v12, s[40:43], s51 offen sc1")]
        if c == 13:
            a.wv("F")
            a("v_cmp_ne_u32 vcc, 1, v13")
            a("s_cbranch_vccz G5_OK")
            a("s_mov_b32 s49, 0")
            a.lab("G5_P")
            a("buffer_load_dword v13, v12, s[40:43], s51 offen sc1")
            a("s_add_u32 s49, s49, 1")
            a(f"s_cmp_gt_u32 s49, {SPIN_MAX}")
            a("s_cbranch_scc1 G5_OK")
            a("s_waitcnt vmcnt(0)")
            a("v_cmp_ne_u32 vcc, 1, v13")
            a("s_cbranch_vccz G5_OK")
            a("s_sleep 3")
            a("s_branch G5_P")
            a.lab("G5_OK")
            extra = as_loads()
        a.wv(("X", c))
        if c < 15:
            a("s_waitcnt lgkmcnt(15)")
        else:
            a("s_waitcnt lgkmcnt(0)")
        others = lds_list(c + 2)
        if extra:
            if others:
                merged = []
                n, k = len(others), len(extra)
                ei = 0
                for i, o in enumerate(others):
                    merged.append(o)
                    tgt = k * (i + 1) // n
                    merged += extra[ei:tgt]
                    ei = tgt
                others = merged
            else:
                others = extra
        a.inter(mfma_list(c), others)
    a.stamp(4)
    a("s_barrier")
    for d in range(24, 39):
        for x in p4_dma(d):
            a.emit(x)
    a("s_mov_b32 s60, 0x3d372713")
    a("s_mov_b32 s61, 0x3d372713")
    a("s_mov_b32 s62, 0xc0135761")
    a("s_mov_b32 s63, 0xc0135761")
    a.wv("AS")
    TT = 160
    for t in range(12):
        A_, S_ = asreg(t, 0), asreg(t, 1)
        for rt in range(2):
            tmp = TT + ((t * 2 + rt) % 4) * 4
            d = ACC + (t * 2 + rt) * 4
            for h in (0, 2):
                a(f"v_pk_fma_f32 v[{tmp+h}:{tmp+h+1}], v[{A_+h}:{A_+h+1}], v[{NM[rt]}:{NM[rt]+1}], v[{S_+h}:{S_+h+1}] op_sel_hi:[1,0,1]")
            for h in (0, 2):
                a(f"v_pk_fma_f32 v[{d+h}:{d+h+1}], v[{d+h}:{d+h+1}], v[{RS[rt]}:{RS[rt]+1}], v[{tmp+h}:{tmp+h+1}] op_sel_hi:[1,0,1]")
    G = ACC
    U = ACC + 48
    for i in range(0, 96, 2):
        a(f"v_cvt_pk_bf16_f32 v{ACC+i}, v{ACC+i}, v{ACC+i+1}")
    for i in range(0, 96, 2):
        a(f"v_and_b32 v{ACC+i+1}, s47, v{ACC+i}")
        a(f"v_lshlrev_b32 v{ACC+i}, 16, v{ACC+i}")
    T = 192
    for i in range(0, 48, 2):
        a(f"v_pk_mul_f32 v[{T+i}:{T+i+1}], v[{G+i}:{G+i+1}], v[{G+i}:{G+i+1}]")
    for i in range(0, 48, 2):
        a(f"v_pk_fma_f32 v[{T+i}:{T+i+1}], v[{T+i}:{T+i+1}], s[60:61], 1.0 op_sel_hi:[1,1,0]")
    for i in range(0, 48, 2):
        a(f"v_pk_mul_f32 v[{T+i}:{T+i+1}], v[{T+i}:{T+i+1}], v[{G+i}:{G+i+1}]")
    for i in range(0, 48, 2):
        a(f"v_pk_mul_f32 v[{T+i}:{T+i+1}], v[{T+i}:{T+i+1}], s[62:63]")
    for i in range(48):
        a(f"v_exp_f32 v{T+i}, v{T+i}")
    for i in range(0, 48, 2):
        a(f"v_pk_add_f32 v[{T+i}:{T+i+1}], v[{T+i}:{T+i+1}], 1.0 op_sel_hi:[1,0]")
    for i in range(48):
        a(f"v_rcp_f32 v{T+i}, v{T+i}")
    for i in range(0, 48, 2):
        a(f"v_pk_mul_f32 v[{T+i}:{T+i+1}], v[{T+i}:{T+i+1}], v[{G+i}:{G+i+1}]")
    for i in range(0, 48, 2):
        a(f"v_cvt_pk_bf16_f32 v{T+i}, v{T+i}, v{T+i+1}")
    for i in range(0, 48, 2):
        a(f"v_and_b32 v{T+i+1}, s47, v{T+i}")
        a(f"v_lshlrev_b32 v{T+i}, 16, v{T+i}")
    for i in range(0, 48, 2):
        a(f"v_pk_mul_f32 v[{T+i}:{T+i+1}], v[{T+i}:{T+i+1}], v[{U+i}:{U+i+1}]")
    PK = 160
    for rt in range(2):
        for tt in range(6):
            s = T + (tt * 2 + rt) * 4
            p = PK + rt * 12 + tt * 2
            a(f"v_cvt_pk_bf16_f32 v{p}, v{s}, v{s+1}")
            a(f"v_cvt_pk_bf16_f32 v{p+1}, v{s+2}, v{s+3}")
    a("s_lshr_b32 s57, s54, 4")
    a("s_mul_i32 s57, s57, 43")
    a("s_mul_i32 s58, s32, 3")
    a("s_add_u32 s57, s57, s58")
    a("s_lshl_b32 s57, s57, 10")
    a(f"s_add_u32 s57, s57, {WS_HH}")
    a("s_add_u32 s58, s57, 43*1024")
    for i in range(3):
        if i == 1:
            a("s_cmp_eq_u32 s32, 14")
            a("s_cbranch_scc1 P3_ST")
        for rt in range(2):
            p = PK + rt * 12 + i * 4
            a(f"buffer_store_dwordx4 v[{p}:{p+3}], v{V16}, s[40:43], s{57+rt} offen offset:{i*1024} sc1")
    a.lab("P3_ST")
    a.stamp(5)
    a("s_waitcnt vmcnt(0)")
    a("s_barrier")
    a("s_cmp_lg_u32 s3, 0")
    a("s_cbranch_scc1 P3_END")
    a("v_mov_b32 v13, 1")
    a("v_mov_b32 v12, 0")
    a("s_lshl_b32 s48, s33, 8")
    a("s_lshl_b32 s49, s32, 4")
    a("s_add_u32 s49, s49, s48")
    a(f"s_add_u32 s49, s49, {WS_FLG + F_G4}")
    a("s_mov_b64 exec, 1")
    a("buffer_store_dword v13, v12, s[40:43], s49 offen sc1")
    a("s_mov_b64 exec, -1")
    a.lab("P3_END")
    a.stamp(6)


def p4(a):
    a("s_load_dwordx2 s[8:9], s[0:1], 80")
    a("s_lshl_b32 s54, s6, 6")
    a("s_lshl_b32 s55, s3, 4")
    a("s_add_u32 s54, s54, s55")
    a("s_lshr_b32 s55, s54, 4")
    a("s_mul_i32 s55, s55, 43*1024")
    a(f"s_add_u32 s55, s55, {WS_HH}")
    HB = 64
    a.vq = []
    a.lq = []
    wo_addr(a)
    VT = [[VWO[t], 32 + 2 * t, 33 + 2 * t] for t in range(4)]
    for t in range(4):
        a(f"v_add_u32 v{VT[t][1]}, 0x10000, v{VWO[t]}")
        a(f"v_add_u32 v{VT[t][2]}, 0x20000, v{VWO[t]}")
    ACC = 16
    a("s_waitcnt lgkmcnt(0)")
    srd(a, 12, 8, 0, 2048 * 1024)
    a("s_lshr_b32 s48, s6, 1")
    a("s_lshl_b32 s48, s48, 8")
    a(f"s_add_u32 s48, s48, {WS_FLG + F_G4}")
    a.stamp(7)
    poll(a, "G4", 15, V16, 48, presleep=0)
    a("s_waitcnt vmcnt(0)")
    a("s_barrier")
    a.stamp(8)
    for c in range(43):
        b = HB + 4 * c
        if c % 4 == 0:
            a(f"s_add_u32 s58, s55, {(c>>2)*4096}")
        a.vm(("H", c), f"buffer_load_dwordx4 v[{b}:{b+3}], v{V16}, s[40:43], s58 offen offset:{(c&3)*1024}")

    def a_reads(c):
        if c > 42:
            return []
        L = []
        f = (c % 3) * 16
        for t in range(4):
            off = d_addr(c)
            r = f + 4 * t
            L.append(('l', ("w", c), f"ds_read_b64_tr_b16 a[{r}:{r+1}], v{VT[t][off >> 16]} offset:{off & 0xffff}"))
            L.append(('l', ("w", c), f"ds_read_b64_tr_b16 a[{r+2}:{r+3}], v{VT[t][off >> 16]} offset:{(off & 0xffff) + 2048}"))
        return L

    def mfmas(c):
        L = []
        f = (c % 3) * 16
        b = HB + 4 * c
        for t in range(4):
            d = ACC + 4 * t
            cc = "0" if c == 0 else f"v[{d}:{d+3}]"
            L.append(f"v_mfma_f32_16x16x32_bf16 v[{d}:{d+3}], a[{f+4*t}:{f+4*t+3}], v[{b}:{b+3}], {cc}")
        return L
    for it in a_reads(0) + a_reads(1):
        a.emit(it)
    a.stamp(9)
    for c in range(43):
        extra = []
        if c == 4:
            a("s_barrier")
            for d in range(39, 43):
                extra += p4_dma(d)
        if c == 36:
            a.wv(("E", 42))
            a("s_barrier")
        a.wv(("H", c))
        a.wl(("w", c))
        a.inter(mfmas(c), a_reads(c + 2) + extra)
    a.stamp(10)
    XR, GB = 40, 48
    a(f"v_lshlrev_b32 v37, 4, v{VG}")
    a(f"v_add_u32 v37, {L_GB}, v37")
    a("s_lshl_b32 s56, s54, 10")
    a("s_lshl_b32 s57, s7, 7")
    a("s_add_u32 s56, s56, s57")
    for t in range(4):
        a(f"ds_read_b128 v[{GB+4*t}:{GB+4*t+3}], v37 offset:{t*64}")
    for i in range(8):
        a(f"v_accvgpr_read_b32 v{XR+i}, a{248+i}")
    for t in range(4):
        d = ACC + 4 * t
        a(f"v_cvt_pk_bf16_f32 v{d}, v{d}, v{d+1}")
        a(f"v_cvt_pk_bf16_f32 v{d+2}, v{d+2}, v{d+3}")
    for t in range(4):
        d = ACC + 4 * t
        a(f"v_and_b32 v{d+1}, 0xffff0000, v{d}")
        a(f"v_lshlrev_b32 v{d}, 16, v{d}")
        a(f"v_and_b32 v{d+3}, 0xffff0000, v{d+2}")
        a(f"v_lshlrev_b32 v{d+2}, 16, v{d+2}")
    a("s_waitcnt lgkmcnt(0)")
    for i in range(16):
        a(f"v_mul_f32 v{ACC+i}, v{ACC+i}, v{GB+i}")
    for t in range(4):
        d = ACC + 4 * t
        a(f"v_cvt_pk_bf16_f32 v{d}, v{d}, v{d+1}")
        a(f"v_cvt_pk_bf16_f32 v{d+2}, v{d+2}, v{d+3}")
    for t in range(4):
        d = ACC + 4 * t
        a(f"v_and_b32 v{d+1}, 0xffff0000, v{d}")
        a(f"v_lshlrev_b32 v{d}, 16, v{d}")
        a(f"v_and_b32 v{d+3}, 0xffff0000, v{d+2}")
        a(f"v_lshlrev_b32 v{d+2}, 16, v{d+2}")
    X = 64
    for t in range(4):
        for d in range(2):
            a(f"v_lshlrev_b32 v{X+4*t+2*d}, 16, v{XR+2*t+d}")
            a(f"v_and_b32 v{X+4*t+2*d+1}, 0xffff0000, v{XR+2*t+d}")
    for i in range(16):
        a(f"v_add_f32 v{X+i}, v{X+i}, v{ACC+i}")
    PK = 80
    for t in range(4):
        a(f"v_cvt_pk_bf16_f32 v{PK+2*t}, v{X+4*t}, v{X+4*t+1}")
        a(f"v_cvt_pk_bf16_f32 v{PK+2*t+1}, v{X+4*t+2}, v{X+4*t+3}")
    a(f"v_and_b32 v92, 1, v{VG}")
    a(f"v_lshrrev_b32 v93, 1, v{VG}")
    a(f"v_lshlrev_b32 v94, 10, v{VM_}")
    a("v_lshl_add_u32 v94, v92, 5, v94")
    a("v_lshl_add_u32 v94, v93, 4, v94")
    a(f"v_permlane16_swap_b32 v{PK}, v{PK+2}")
    a(f"v_permlane16_swap_b32 v{PK+1}, v{PK+3}")
    a(f"v_permlane16_swap_b32 v{PK+4}, v{PK+6}")
    a(f"v_permlane16_swap_b32 v{PK+5}, v{PK+7}")
    a.nop(1)
    a(f"buffer_store_dwordx4 v[{PK}:{PK+3}], v94, s[12:15], s56 offen")
    a(f"buffer_store_dwordx4 v[{PK+4}:{PK+7}], v94, s[12:15], s56 offen offset:64")
    a.stamp(11)
```

```python
import sys, os, re
import gen_common
from gen_common import *
from k1v2 import reduce4_groups, bcast4_groups
import mk2
from mk2 import M, VL, VG, VRR, VQ, VM_, V16, wave_id, rl_issue, rl_finish, WS_O, WS_FLG, F_B1, F_G2, F_G3, F_G4, \
    WS_ST2, SPIN_MAX, poll, mod_table, mod_table_fin

L_WQ = 0
L_H = 65536
L_TAB = 159744
L_GA, L_GB, L_A2, L_AS = L_TAB, L_TAB + 256, L_TAB + 512, L_TAB + 2048
WS_AS = 0x50000
F_G5 = 45056
VD = [60, 61, 62]
L_GV = 131072
L_PK = 131072
LDS_TOTAL = 163840

NB1 = int(os.environ.get("NB1", "6"))
PF = int(os.environ.get("PF", "0"))
NWO1 = int(os.environ.get("NWO1", "48"))

XF = 64
XB = 192
ACC = 192
HFA = 192
PH = 64


FS = int(os.environ.get("FS", "0"))
_orig_stamp = M.stamp


def fs(a, i):
    if FS:
        _orig_stamp(a, i)


if FS:
    def _st(self, i):
        if i == 0 or getattr(self, "late", 0):
            _orig_stamp(self, i)
        elif i in (2, 3, 4, 5, 6, 7):
            _orig_stamp(self, i + 6)
    M.stamp = _st


def dma_items():
    L = []
    for h in range(2):
        for i in range(16 * h, 16 * h + 16):
            c, seg = i >> 1, 1 + (i & 1)
            L.append([f"s_add_u32 m0, s49, {i*4096}",
                      f"s_add_u32 s50, s48, {c*98304 + seg*1024}",
                      "buffer_load_dwordx4 v9, s[24:27], s50 offen lds"])
        for j in range(6):
            it = [f"s_add_u32 s52, s3, {16*h + 3*j}"]
            if j == 5:
                it.append(f"s_min_u32 s52, s52, {16*h + 15}")
            it += ["s_lshr_b32 s53, s52, 1",
                   "s_mul_i32 s53, s53, 98304",
                   "s_and_b32 s50, s52, 1",
                   "s_lshl_b32 s50, s50, 10",
                   "s_add_u32 s50, s50, s53",
                   "s_lshl_b32 s52, s52, 12",
                   "s_add_u32 m0, s52, 3072",
                   "s_add_u32 s50, s50, s51",
                   "buffer_load_dwordx4 v6, s[24:27], s50 offen lds"]
            L.append(it)
    return L


def weave(a, code, items):
    n, k = len(code), len(items)
    ii = 0
    for i, c in enumerate(code):
        a.emit(c)
        tgt = (k * (i + 1)) // n
        while ii < tgt:
            for x in items[ii]:
                a.emit(x)
            ii += 1
    while ii < k:
        for x in items[ii]:
            a.emit(x)
        ii += 1


def stats_code():
    L = []

    def sreg(kind, r):
        return 16 + (r >> 3) * 16 + ((r >> 2) & 1) * 8 + kind * 4 + (r & 3)
    for r0 in range(0, 16, 2):
        for d in range(4):
            for r in (r0, r0 + 1):
                x = XB + 4 * r + d
                c0 = "0" if d == 0 else f"v{sreg(0, r)}"
                c1 = "0" if d == 0 else f"v{sreg(1, r)}"
                L.append(f"v_dot2_f32_bf16 v{sreg(0, r)}, v{x}, s46, {c0}")
                L.append(f"v_dot2_f32_bf16 v{sreg(1, r)}, v{x}, v{x}, {c1}")
    fill = []
    for r in range(16):
        for d in range(4):
            fill.append(f"v_lshlrev_b32 v{XF+8*r+2*d}, 16, v{XB+4*r+d}")
            fill.append(f"v_and_b32 v{XF+8*r+2*d+1}, 0xffff0000, v{XB+4*r+d}")

    def F(n):
        for _ in range(n):
            if fill:
                L.append(fill.pop(0))
    F(4)
    for i in range(16):
        L.append(f"v_permlane32_swap_b32 v{16+i}, v{32+i}")
    F(2)
    for i in range(16):
        L.append(f"v_add_f32 v{16+i}, v{16+i}, v{32+i}")
    F(2)
    for i in range(8):
        L.append(f"v_permlane16_swap_b32 v{16+i}, v{24+i}")
    F(2)
    for i in range(8):
        L.append(f"v_add_f32 v{16+i}, v{16+i}, v{24+i}")
    F(2)
    for ror in (8, 4, 2, 1):
        for i in range(8):
            L.append(f"v_add_f32_dpp v{16+i}, v{16+i}, v{16+i} row_ror:{ror} row_mask:0xf bank_mask:0xf")
        F(2)
    for j in range(4):
        L.append(f"v_mul_f32 v{16+j}, 0x3b000000, v{16+j}")
        L.append(f"v_mul_f32 v{20+j}, 0x3b000000, v{20+j}")
    for j in range(4):
        L.append(f"v_fma_f32 v{20+j}, -v{16+j}, v{16+j}, v{20+j}")
    for j in range(4):
        L.append(f"v_max_f32 v{20+j}, 0, v{20+j}")
    for j in range(4):
        L.append(f"v_add_f32 v{20+j}, 0x3727c5ac, v{20+j}")
    for j in range(4):
        L.append(f"v_rsq_f32 v{20+j}, v{20+j}")
    F(2)
    for j in range(4):
        L.append(f"v_mul_f32 v{16+j}, v{16+j}, v{20+j}")
    for j in range(4):
        L.append(f"v_sub_f32 v{16+j}, 0, v{16+j}")
    F(1000)
    return L


def front(a):
    a.stamp(0)
    a("s_load_dwordx2 s[4:5], s[0:1], 96")
    a("s_load_dwordx2 s[8:9], s[0:1], 0")
    a("s_load_dwordx2 s[10:11], s[0:1], 8")
    a("s_load_dwordx2 s[12:13], s[0:1], 64")
    a("s_load_dwordx2 s[14:15], s[0:1], 72")
    a("s_load_dwordx2 s[16:17], s[0:1], 88")
    a("s_load_dwordx2 s[18:19], s[0:1], 16")
    wave_id(a, 3)
    a("s_and_b32 s48, s2, 7")
    a("s_lshr_b32 s49, s2, 3")
    a("s_lshl_b32 s6, s48, 2")
    a("s_lshr_b32 s50, s49, 3")
    a("s_add_u32 s6, s6, s50")
    a("s_and_b32 s7, s49, 7")
    lane_decode(a, VL, VG, VRR, VQ, VM_)
    a(f"v_lshlrev_b32 v{V16}, 4, v{VL}")
    a(f"v_lshrrev_b32 v9, 3, v{VL}")
    a(f"v_and_b32 v10, 7, v{VL}")
    a("v_and_b32 v11, 3, v9")
    a("v_mul_u32_u24 v9, 3072, v9")
    a("v_xor_b32 v12, 1, v11")
    a("v_lshlrev_b32 v12, 1, v12")
    a("v_xor_b32 v12, v12, v10")
    a("v_lshl_add_u32 v6, v12, 4, v9")
    a("s_and_b32 s50, s3, 1")
    a("v_xor_b32 v12, s50, v11")
    a("v_lshlrev_b32 v12, 1, v12")
    a("v_xor_b32 v12, v12, v10")
    a("v_lshl_add_u32 v9, v12, 4, v9")
    a("s_and_b32 s46, s2, 3")
    a("s_lshr_b32 s47, s2, 2")
    a("v_and_b32 v10, 7, v0")
    a("v_lshrrev_b32 v11, 3, v0")
    a("v_mul_u32_u24 v12, 6144, v11")
    a("v_lshl_add_u32 v12, v10, 4, v12")
    a("v_lshlrev_b32 v13, 1, v11")
    a("s_mul_i32 s52, s46, 128*6144")
    a("s_lshl_b32 s53, s47, 7")
    a("s_add_u32 s52, s52, s53")
    a("s_lshl_b32 s53, s46, 8")
    a("s_lshl_b32 s54, s6, 6")
    a("s_lshl_b32 s55, s3, 4")
    a("s_add_u32 s54, s54, s55")
    a("s_lshl_b32 s54, s54, 10")
    a("s_mul_i32 s48, s3, 8*3072")
    a("s_lshl_b32 s49, s7, 7")
    a("s_add_u32 s48, s48, s49")
    a("s_lshl_b32 s49, s3, 10")
    a("s_lshl_b32 s51, s7, 7")
    a(f"s_add_u32 s51, s51, {24*3072 + 1024}")
    a("s_waitcnt lgkmcnt(0)")
    srd(a, 32, 14, 0, 512 * 6144)
    srd(a, 28, 12, 0, 1024)
    a("s_cmp_ge_u32 s2, 192")
    a("s_cbranch_scc1 F_L1")
    for i in range(4):
        a(f"buffer_load_ushort v{16+i}, v13, s[28:31], s53 offen offset:{i*64}")
    for i in range(4):
        a(f"s_add_u32 s55, s52, {i*32*6144}")
        a(f"buffer_load_dwordx4 v[{24+4*i}:{27+4*i}], v12, s[32:35], s55 offen")
    a.lab("F_L1")
    srd(a, 20, 8, 0, 2048 * 1024)
    for r in range(16):
        if r % 4 == 0 and r:
            a("s_add_u32 s54, s54, 4096")
        a(f"buffer_load_dwordx4 v[{XB+4*r}:{XB+4*r+3}], v{V16}, s[20:23], s54 offen offset:{(r&3)*1024}")
    fs(a, 1)
    srd(a, 24, 10, 0, 512 * 3072)
    srd(a, 40, 4, 0, 32 << 20)
    srd(a, 36, 16, 0, 256)
    srd(a, 28, 18, 0, 32 * 512)
    a("s_cmp_eq_u32 s3, 3")
    a("s_cbranch_scc1 F_W3A")
    DI = dma_items()
    for it in DI[:NB1]:
        for x in it:
            a(x)
    fs(a, 2)
    a("s_cmp_ge_u32 s2, 192")
    a("s_cbranch_scc1 F_REST")
    a(f"s_waitcnt vmcnt({16+NB1})")
    a("s_branch F_GV2")
    a.lab("F_W3A")
    a("s_cmp_ge_u32 s2, 192")
    a("s_cbranch_scc1 F_W3D")
    a("s_cmp_ge_u32 s2, 64")
    a("s_cbranch_scc1 F_W3B")
    for i in range(4):
        a(f"v_mov_b32 v{48+i}, 0")
    a("s_mul_i32 s54, s2, 1088")
    a(f"s_add_u32 s54, s54, {WS_KV}")
    a(f"buffer_store_dwordx4 v[48:51], v{V16}, s[40:43], s54 offen sc1")
    a("s_lshl_b32 s55, s2, 10")
    a(f"s_add_u32 s55, s55, {WS_FLG}")
    a(f"buffer_store_dwordx4 v[48:51], v{V16}, s[40:43], s55 offen sc1")
    a("s_mov_b64 exec, 15")
    a(f"buffer_store_dwordx4 v[48:51], v{V16}, s[40:43], s54 offen offset:1024 sc1")
    a("s_mov_b64 exec, -1")
    a.lab("F_W3B")
    a("s_waitcnt vmcnt(16)")
    a.lab("F_GV2")
    fs(a, 3)
    for j in range(8):
        a(f"v_mov_b32 v{40+j}, 0")
    for i in range(4):
        a(f"v_lshlrev_b32 v{16+i}, 16, v{16+i}")
    for i in range(4):
        a(f"v_mul_f32 v{20+i}, 0xbfb8aa3b, v{16+i}")
    for i in range(4):
        a(f"v_exp_f32 v{20+i}, v{20+i}")
    a.nop(1)
    for i in range(4):
        a(f"v_add_f32 v{20+i}, 1.0, v{20+i}")
    for i in range(4):
        a(f"v_rcp_f32 v{20+i}, v{20+i}")
    a.nop(1)
    for i in range(4):
        a(f"v_mul_f32 v{16+i}, v{16+i}, v{20+i}")
    for i in range(4):
        a(f"v_cvt_pk_bf16_f32 v{16+i}, v{16+i}, v{16+i}")
    for i in range(4):
        a(f"v_lshlrev_b32 v{16+i}, 16, v{16+i}")
    for i in range(4):
        for d in range(4):
            w = 24 + 4 * i + d
            a(f"v_lshlrev_b32 v20, 16, v{w}")
            a(f"v_and_b32 v21, 0xffff0000, v{w}")
            a(f"v_fmac_f32 v{40+2*d}, v{16+i}, v20")
            a(f"v_fmac_f32 v{41+2*d}, v{16+i}, v21")
    a("v_lshlrev_b32 v12, 8, v11")
    a("v_lshl_add_u32 v12, v10, 5, v12")
    a(f"v_add_u32 v12, {L_GV}, v12")
    a("ds_write_b128 v12, v[40:43]")
    a("ds_write_b128 v12, v[44:47] offset:16")
    a("s_waitcnt lgkmcnt(0)")
    a("s_barrier")
    fs(a, 4)
    a("s_cmp_lg_u32 s3, 3")
    a("s_cbranch_scc1 F_REST")
    a(f"v_lshlrev_b32 v12, 2, v{VL}")
    a(f"v_add_u32 v13, {L_GV}, v12")
    for r in range(32):
        a(f"ds_read_b32 v{16+r}, v13 offset:{r*256}")
    a("s_waitcnt lgkmcnt(0)")
    for st in (16, 8, 4, 2, 1):
        for r in range(st):
            a(f"v_add_f32 v{16+r}, v{16+r}, v{16+r+st}")
    a("s_mul_i32 s54, s46, 3072*4")
    a("s_lshl_b32 s55, s47, 8")
    a("s_add_u32 s54, s54, s55")
    a("s_waitcnt vmcnt(0)")
    a(f"buffer_store_dword v16, v12, s[40:43], s54 offen sc1")
    a("s_cmp_ge_u32 s2, 64")
    a("s_cbranch_scc1 F_W3C")
    a("s_waitcnt vmcnt(0)")
    a("v_mov_b32 v16, 1")
    a("v_mov_b32 v17, 0")
    a("s_lshl_b32 s54, s2, 2")
    a("s_mov_b64 exec, 1")
    a("buffer_store_dword v16, v17, s[36:39], s54 offen sc1")
    a("s_mov_b64 exec, -1")
    a("s_branch F_W3C")
    a.lab("F_REST")
    a("s_mov_b32 s46, 0x3f803f80")
    a(f"s_waitcnt vmcnt({NB1})")
    fs(a, 5)
    weave(a, stats_code(), DI[NB1:])
    a("s_branch F_J")
    a.lab("F_W3D")
    a("s_waitcnt vmcnt(0)")
    a.lab("F_W3C")
    a("s_mov_b32 s46, 0x3f803f80")
    fs(a, 5)
    weave(a, stats_code(), [])
    a.lab("F_J")
    fs(a, 6)
    a.stamp(1)
    a.vq = []
    a(f"v_lshlrev_b32 v12, 7, v{VG}")
    a(f"v_lshl_add_u32 v12, v{VM_}, 1, v12")
    a("s_lshl_b32 s44, s7, 2")
    a("s_add_u32 s44, s44, s3")
    a("s_lshl_b32 s44, s44, 9")
    for j in range(4):
        a.vm("P", f"buffer_load_ushort v{56+j}, v12, s[28:31], s44 offen offset:{j*32}")
    a("s_mov_b32 s44, s48")
    if PF:
        a("s_load_dwordx2 s[8:9], s[0:1], 24")
        a(f"v_mul_u32_u24 v12, 3072, v{VL}")
        a("s_mul_i32 s48, s3, 128*3072")
        a("s_lshl_b32 s49, s7, 7")
        a("s_add_u32 s48, s48, s49")
        a.vm("PF", "buffer_load_dword v60, v12, s[24:27], s48 offen")
        a("s_add_u32 s48, s48, 64*3072")
        a.vm("PF", "buffer_load_dword v61, v12, s[24:27], s48 offen")
        a(f"v_lshlrev_b32 v12, 10, v{VL}")
        a("s_lshl_b32 s48, s3, 17")
        a("s_add_u32 s48, s48, s49")
        a("s_waitcnt lgkmcnt(0)")
        srd(a, 32, 8, 0, 512 * 1024)
        a.vm("PF", "buffer_load_dword v62, v12, s[32:35], s48 offen")
        a("s_add_u32 s48, s48, 65536")
        a.vm("PF", "buffer_load_dword v63, v12, s[32:35], s48 offen")

    a.stamp(2)

    def norm_row(r):
        f = XF + 8 * r
        sp = 8 + 2 * (r & 3)
        nm = 24 + 2 * (r & 1)
        L = [f"v_readlane_b32 s{sp}, v{20+(r&3)}, {16*(r>>2)}",
             f"v_readlane_b32 s{sp+1}, v{16+(r&3)}, {16*(r>>2)}",
             f"v_mov_b32 v{nm}, s{sp+1}"]
        for d in range(4):
            L.append(f"v_pk_fma_f32 v[{f+2*d}:{f+2*d+1}], v[{f+2*d}:{f+2*d+1}], s[{sp}:{sp+1}], v[{nm}:{nm+1}] op_sel_hi:[1,0,0]")
        for d in range(4):
            L.append(f"v_cvt_pk_bf16_f32 v{f+2*d}, v{f+2*d}, v{f+2*d+1}")
        for d in range(4):
            L.append(f"v_and_b32 v{f+2*d+1}, 0xffff0000, v{f+2*d}")
            L.append(f"v_lshlrev_b32 v{f+2*d}, 16, v{f+2*d}")
        return L
    a(f"v_lshlrev_b32 v11, 10, v{VG}")
    a(f"v_lshl_add_u32 v11, v{VRR}, 7, v11")
    a(f"v_lshl_add_u32 v11, v{VQ}, 3, v11")
    a(f"v_and_b32 v12, 1, v{VG}")
    a(f"v_xor_b32 v12, v12, v{VRR}")
    a("v_xor_b32 v12, s3, v12")
    a("v_lshl_add_u32 v7, v12, 5, v11")
    a(f"v_add_u32 v12, {L_H}, v7")
    a(f"s_waitcnt vmcnt({26 + 4*PF})")
    a("s_barrier")
    a.stamp(3)
    for h in range(2):
        tr = []
        for i in range(16 * h, 16 * h + 16):
            c, seg = i >> 1, 1 + (i & 1)
            u = 3 * c + seg
            v, off = (7, i * 4096) if i < 16 else (12, (i - 16) * 4096)
            tr.append(f"ds_read_b64_tr_b16 a[{4*u}:{4*u+1}], v{v} offset:{off}")
            tr.append(f"ds_read_b64_tr_b16 a[{4*u+2}:{4*u+3}], v{v} offset:{off+512}")
        oth = []
        for r in range(8 * h, 8 * h + 8):
            oth += norm_row(r)
        a.inter(tr, oth)
        if h == 0:
            a(f"s_waitcnt vmcnt({4 + 4*PF})")
            a("s_barrier")
            a.stamp(4)
    a.lq = []
    a.vq = []
    a.stamp(5)
    a("s_load_dwordx2 s[8:9], s[0:1], 24")
    a("s_cmp_lg_u32 s3, 0")
    a("s_cbranch_scc1 F_PW")
    a(f"v_lshlrev_b32 v12, 2, v{VL}")
    a("s_mov_b32 s48, 0")
    a.lab("F_PP")
    a("buffer_load_dword v13, v12, s[36:39], 0 offen sc1")
    a("s_add_u32 s48, s48, 1")
    a(f"s_cmp_gt_u32 s48, {SPIN_MAX}")
    a("s_cbranch_scc1 F_PW")
    a("s_waitcnt vmcnt(0)")
    a("v_cmp_ne_u32 vcc, 1, v13")
    a("s_cbranch_vccz F_PW")
    a("s_sleep 4")
    a("s_branch F_PP")
    a.lab("F_PW")
    a(f"v_lshlrev_b32 v12, 5, v{VL}")
    a("s_waitcnt vmcnt(0) lgkmcnt(0)")
    a("v_lshl_or_b32 v14, v57, 16, v56")
    a("v_lshl_or_b32 v15, v59, 16, v58")
    a("s_barrier")
    a.stamp(7)


def softmax4(a, SRC, OUT, P=144):
    WPH = 14
    QB = 32
    for t in range(4):
        d = SRC + t * 4
        a(f"v_cvt_pk_bf16_f32 v{QB+2*t}, v{d}, v{d+1}")
        a(f"v_cvt_pk_bf16_f32 v{QB+2*t+1}, v{d+2}, v{d+3}")
    a.nop(1)
    for t in range(4):
        a(f"v_mfma_f32_16x16x16_bf16 v[{P+4*t}:{P+4*t+3}], v[{WPH}:{WPH+1}], v[{QB+2*t}:{QB+2*t+1}], 0")
    yield 0
    a.nop(6)
    for t in range(4):
        p = P + 4 * t
        a(f"v_cvt_pk_bf16_f32 v{p}, v{p}, v{p+1}")
        a(f"v_cvt_pk_bf16_f32 v{p+2}, v{p+2}, v{p+3}")
    for t in range(4):
        p = P + 4 * t
        a(f"v_and_b32 v{p+1}, 0xffff0000, v{p}")
        a(f"v_lshlrev_b32 v{p}, 16, v{p}")
        a(f"v_and_b32 v{p+3}, 0xffff0000, v{p+2}")
        a(f"v_lshlrev_b32 v{p+2}, 16, v{p+2}")
    MX = [80 + 2 * t for t in range(4)]
    MN = [88 + 2 * t for t in range(4)]
    for t in range(4):
        p = P + 4 * t
        a(f"v_max3_f32 v{MX[t]}, v{p}, v{p+1}, v{p+2}")
        a(f"v_min3_f32 v{MN[t]}, v{p}, v{p+1}, v{p+2}")
    for t in range(4):
        p = P + 4 * t
        a(f"v_max_f32 v{MX[t]}, v{MX[t]}, v{p+3}")
        a(f"v_min_f32 v{MN[t]}, v{MN[t]}, v{p+3}")
    gx = [tuple(MX)]
    gn = [tuple(MN)]
    a.nop(1)
    for X, Y, U, W in gx + gn:
        a(f"v_permlane16_swap_b32 v{X}, v{Y}")
        a(f"v_permlane16_swap_b32 v{U}, v{W}")
    a.nop(1)
    for grp, op in ((gx, "v_max_f32"), (gn, "v_min_f32")):
        for X, Y, U, W in grp:
            a(f"{op} v{X}, v{X}, v{Y}")
            a(f"{op} v{U}, v{U}, v{W}")
    a.nop(1)
    for X, Y, U, W in gx + gn:
        a(f"v_permlane32_swap_b32 v{X}, v{U}")
    a.nop(1)
    for grp, op in ((gx, "v_max_f32"), (gn, "v_min_f32")):
        for X, Y, U, W in grp:
            a(f"{op} v{X}, v{X}, v{U}")
    a(f"s_mov_b32 s60, 0x{LOG2E:x}")
    a(f"s_mov_b32 s61, 0x{LOG2E:x}")
    for X, Y, U, W in gx + gn:
        a(f"v_mul_f32 v{X}, s60, v{X}")
    bcast4_groups(a, gx + gn)
    E = 96
    for t in range(4):
        p = P + 4 * t
        e = E + 8 * t
        for r in (0, 2):
            a(f"v_pk_fma_f32 v[{e+r}:{e+r+1}], v[{p+r}:{p+r+1}], s[60:61], v[{MX[t]}:{MX[t]+1}] op_sel_hi:[1,1,0] neg_lo:[0,0,1] neg_hi:[0,0,1]")
            a(f"v_pk_fma_f32 v[{e+4+r}:{e+5+r}], v[{p+r}:{p+r+1}], s[60:61], v[{MN[t]}:{MN[t]+1}] op_sel_hi:[1,1,0] neg_lo:[1,0,0] neg_hi:[1,0,0]")
    SP, SN = MX, MN
    T2 = 128
    for t in range(4):
        e = E + 8 * t
        for r in range(8):
            a(f"v_exp_f32 v{e+r}, v{e+r}")
        if t > 0:
            e2 = E + 8 * (t - 1)
            a(f"v_pk_add_f32 v[{T2+4*(t-1)}:{T2+4*(t-1)+1}], v[{e2}:{e2+1}], v[{e2+2}:{e2+3}]")
            a(f"v_pk_add_f32 v[{T2+4*(t-1)+2}:{T2+4*(t-1)+3}], v[{e2+4}:{e2+5}], v[{e2+6}:{e2+7}]")
    yield 1
    a.nop(1)
    e2 = E + 8 * 3
    a(f"v_pk_add_f32 v[{T2+12}:{T2+13}], v[{e2}:{e2+1}], v[{e2+2}:{e2+3}]")
    a(f"v_pk_add_f32 v[{T2+14}:{T2+15}], v[{e2+4}:{e2+5}], v[{e2+6}:{e2+7}]")
    for t in range(4):
        a(f"v_add_f32 v{SP[t]}, v{T2+4*t}, v{T2+4*t+1}")
        a(f"v_add_f32 v{SN[t]}, v{T2+4*t+2}, v{T2+4*t+3}")
    reduce4_groups(a, gx + gn, "v_add_f32")
    for X, Y, U, W in gx + gn:
        a(f"v_rcp_f32 v{X}, v{X}")
    a.nop(1)
    bcast4_groups(a, gx + gn)
    for t in range(4):
        e = E + 8 * t
        for r in (0, 2):
            a(f"v_pk_mul_f32 v[{e+r}:{e+r+1}], v[{e+r}:{e+r+1}], v[{SP[t]}:{SP[t]+1}] op_sel_hi:[1,0]")
            a(f"v_pk_mul_f32 v[{e+4+r}:{e+5+r}], v[{e+4+r}:{e+5+r}], v[{SN[t]}:{SN[t]+1}] op_sel_hi:[1,0]")
    for t in range(4):
        e = E + 8 * t
        for d in range(4):
            a(f"v_cvt_pk_bf16_f32 v{OUT+4*t+d}, v{e+2*d}, v{e+2*d+1}")
        yield 2 + t


def p1(a):
    T = 192
    for p in range(4):
        a(f"s_mov_b32 s48, {p*3072*4}")
        for k, off in enumerate((0, 16, 2048, 2064)):
            r = T + p * 16 + 4 * k
            a(f"buffer_load_dwordx4 v[{r}:{r+3}], v12, s[40:43], s48 offen offset:{off}")
    VHW, VHA, VHB = 10, 11, 13
    a(f"v_and_b32 v13, 7, v{VL}")
    a("s_lshl_b32 s48, s3, 14")
    a(f"s_add_u32 s48, s48, {L_H}")
    a(f"v_lshlrev_b32 v{VHW}, 8, v{VL}")
    a(f"v_lshl_add_u32 v{VHW}, v13, 4, v{VHW}")
    a(f"v_add_u32 v{VHW}, s48, v{VHW}")
    a(f"v_xor_b32 v{VHA}, v{VM_}, v{VG}")
    a(f"v_lshlrev_b32 v{VHA}, 4, v{VHA}")
    a(f"v_lshl_add_u32 v{VHA}, v{VG}, 8, v{VHA}")
    a(f"v_add_u32 v{VHA}, {L_H}, v{VHA}")
    a(f"v_xor_b32 v{VHB}, 64, v{VHA}")
    a("s_lshl_b32 s49, s3, 10")
    p3_setup(a)
    a("s_waitcnt vmcnt(0)")
    for i in range(0, 16, 2):
        a(f"v_pk_add_f32 v[{T+i}:{T+i+1}], v[{T+i}:{T+i+1}], v[{T+16+i}:{T+16+i+1}]")
        a(f"v_pk_add_f32 v[{T+32+i}:{T+32+i+1}], v[{T+32+i}:{T+32+i+1}], v[{T+48+i}:{T+48+i+1}]")
    for i in range(0, 16, 2):
        a(f"v_pk_add_f32 v[{T+i}:{T+i+1}], v[{T+i}:{T+i+1}], v[{T+32+i}:{T+32+i+1}]")
    SA, AA = 24, 16
    for i in range(0, 16, 2):
        a(f"v_cvt_pk_bf16_f32 v{T+i}, v{T+i}, v{T+i+1}")
    for i in range(0, 8, 2):
        a(f"v_lshlrev_b32 v{SA+i}, 16, v{T+i}")
        a(f"v_and_b32 v{SA+i+1}, 0xffff0000, v{T+i}")
        a(f"v_lshlrev_b32 v{AA+i}, 16, v{T+8+i}")
        a(f"v_and_b32 v{AA+i+1}, 0xffff0000, v{T+8+i}")
    for i in range(0, 8, 2):
        a(f"v_pk_add_f32 v[{AA+i}:{AA+i+1}], v[{AA+i}:{AA+i+1}], 1.0 op_sel_hi:[1,0]")
    for i in range(0, 8, 2):
        a(f"v_cvt_pk_bf16_f32 v{AA+i}, v{AA+i}, v{AA+i+1}")
    for i in range(0, 8, 2):
        a(f"v_and_b32 v{AA+i+1}, 0xffff0000, v{AA+i}")
        a(f"v_lshlrev_b32 v{AA+i}, 16, v{AA+i}")
    a.stamp(8)
    for r in range(16):
        f = XF + 8 * r
        t = 32 + (r & 1) * 8
        va = 48 + (r & 1)
        for e in range(0, 8, 2):
            a(f"v_pk_fma_f32 v[{t+e}:{t+e+1}], v[{f+e}:{f+e+1}], v[{AA+e}:{AA+e+1}], v[{SA+e}:{SA+e+1}]")
        a(f"v_xor_b32 v{va}, {(r&7)<<4}, v{VHW}")
        for d in range(4):
            a(f"v_cvt_pk_bf16_f32 v{t+d}, v{t+2*d}, v{t+2*d+1}")
        a(f"ds_write_b128 v{va}, v[{t}:{t+3}] offset:{(r>>3)*128}")
    a("s_waitcnt lgkmcnt(0)")
    a("s_barrier")
    a.stamp(9)
    a.lq = []

    def hreads(c, tag):
        if c > 15:
            return []
        L = []
        for rt in range(4):
            r = HFA + (c & 3) * 16 + rt * 4
            L.append(('l', (tag, c), f"ds_read_b128 a[{r}:{r+3}], v{VHB if c & 1 else VHA} offset:{(rt*16+c)*1024}"))
        return L

    def mfmas(c, segs):
        L = []
        for rt in range(4):
            b = HFA + (c & 3) * 16 + rt * 4
            for seg in segs:
                d = ACC + (seg * 4 + rt) * 4
                w = (c * 3 + seg) * 4
                cc = "0" if c == 0 else f"v[{d}:{d+3}]"
                if seg < 2:
                    L.append(f"v_mfma_f32_16x16x32_bf16 v[{d}:{d+3}], a[{w}:{w+3}], a[{b}:{b+3}], {cc}")
                else:
                    L.append(f"v_mfma_f32_16x16x32_bf16 v[{d}:{d+3}], a[{b}:{b+3}], a[{w}:{w+3}], {cc}")
        return L

    def gpass(tag, segs, extra):
        for it in hreads(0, tag) + hreads(1, tag) + hreads(2, tag):
            a.emit(it)
        for c in range(16):
            a.wl((tag, c))
            a.inter(mfmas(c, segs), hreads(c + 3, tag) + extra(c))

    def wq_dma(c):
        if c >= 8:
            return []
        L = []
        for cc in (2 * c, 2 * c + 1):
            L += [f"s_add_u32 m0, s49, {L_WQ + cc*4096}",
                  f"s_add_u32 s50, s44, {cc*98304}",
                  "buffer_load_dwordx4 v9, s[24:27], s50 offen lds"]
        return L
    gpass("h", (1, 2), wq_dma)
    a.stamp(10)
    VB = 48
    PHK = 160
    a("s_lshl_b32 s57, s3, 12")
    a(f"s_add_u32 s57, s57, {L_PK}")
    a(f"v_lshlrev_b32 v12, 6, v{VM_}")
    a(f"v_lshl_add_u32 v12, v{VG}, 3, v12")
    a("v_add_u32 v12, s57, v12")
    a.nop(4)

    def wq_tr(lo, hi):
        for c in range(lo, hi):
            u = 3 * c
            a(f"ds_read_b64_tr_b16 a[{4*u}:{4*u+1}], v7 offset:{L_WQ + c*4096}")
            a(f"ds_read_b64_tr_b16 a[{4*u+2}:{4*u+3}], v7 offset:{L_WQ + c*4096+512}")
    for st in softmax4(a, ACC + 16, PHK):
        if st == 0:
            for rt in range(4):
                d = ACC + (8 + rt) * 4
                a(f"v_cvt_pk_bf16_f32 v{VB+2*rt}, v{d}, v{d+1}")
                a(f"v_cvt_pk_bf16_f32 v{VB+2*rt+1}, v{d+2}, v{d+3}")
        if st >= 2:
            t = st - 2
            a(f"ds_write_b64 v12, v[{PHK+4*t}:{PHK+4*t+1}] offset:{t*1024}")
            a(f"ds_write_b64 v12, v[{PHK+4*t+2}:{PHK+4*t+3}] offset:{t*1024+32}")
    a(f"v_lshlrev_b32 v12, 8, v{VG}")
    a(f"v_lshl_add_u32 v12, v{VRR}, 6, v12")
    a(f"v_lshl_add_u32 v12, v{VQ}, 3, v12")
    a("v_add_u32 v12, s57, v12")
    ONES = 176
    for i in range(4):
        a(f"v_mov_b32 v{ONES+i}, 0x3f803f80")
    a("s_waitcnt lgkmcnt(0)")
    KA = 128
    for ks in range(2):
        for ft in range(2):
            for rt in range(2):
                r = KA + (ks * 2 + ft) * 4 + rt * 2
                a(f"ds_read_b64_tr_b16 v[{r}:{r+1}], v12 offset:{ks*2048+rt*1024+ft*32}")
    a(f"v_lshlrev_b32 v12, 2, v{VL}")
    a("s_lshl_b32 s58, s7, 2")
    a("s_add_u32 s58, s58, s3")
    a("s_mul_i32 s58, s58, 2176")
    a(f"s_add_u32 s58, s58, {WS_KV}")
    a(f"v_cmp_eq_u32 vcc, 1, v{VG}")
    a("s_waitcnt lgkmcnt(0)")
    DK = 96
    for ks in range(2):
        for ft in range(2):
            ka = KA + (ks * 2 + ft) * 4
            cc = "0" if ks == 0 else f"v[{DK+4*ft}:{DK+4*ft+3}]"
            a(f"v_mfma_f32_16x16x32_bf16 v[{DK+4*ft}:{DK+4*ft+3}], v[{ka}:{ka+3}], v[{VB+4*ks}:{VB+4*ks+3}], {cc}")
        for ft in range(2):
            ka = KA + (ks * 2 + ft) * 4
            cc = "0" if ks == 0 else f"v[{DK+8+4*ft}:{DK+8+4*ft+3}]"
            a(f"v_mfma_f32_16x16x32_bf16 v[{DK+8+4*ft}:{DK+8+4*ft+3}], v[{ONES}:{ONES+3}], v[{ka}:{ka+3}], {cc}")
    a("s_waitcnt vmcnt(0)")
    a.nop(7)
    for e in range(8):
        a(f"buffer_atomic_add_f32 v{DK+e}, v12, s[40:43], s58 offen offset:{e*256} sc1")
    a(f"v_cndmask_b32 v{DK+8}, v{DK+8}, v{DK+12}, vcc")
    a("s_mov_b64 exec, 0xffffffff")
    a(f"buffer_atomic_add_f32 v{DK+8}, v12, s[40:43], s58 offen offset:2048 sc1")
    a("s_mov_b64 exec, -1")
    a.stamp(11)
    a("s_barrier")
    wq_tr(0, 16)
    a(f"v_lshrrev_b32 v12, 3, v{VL}")
    a(f"v_and_b32 v9, 7, v{VL}")
    a("v_and_b32 v6, 3, v12")
    a("v_lshrrev_b32 v16, 2, v12")
    a("v_xor_b32 v6, v6, v16")
    a("v_lshlrev_b32 v6, 1, v6")
    a("v_xor_b32 v9, v9, v6")
    a("v_lshlrev_b32 v12, 10, v12")
    a("v_lshl_add_u32 v9, v9, 4, v12")
    a("s_lshl_b32 s48, s3, 13")
    a("s_lshl_b32 s49, s7, 7")
    a("s_add_u32 s44, s48, s49")
    a("s_lshl_b32 s45, s3, 10")
    srd(a, 24, 8, 0, 512 * 1024)
    a("s_waitcnt lgkmcnt(0)")
    a.lq = []
    a.stamp(6)
    gpass("g", (0,), lambda c: [])
    a.stamp(13)
    b1_arrive(a)
    a.stamp(2)
    for cc in range(16):
        a(f"s_add_u32 m0, s45, {L_WQ + cc*4096}")
        a(f"s_add_u32 s50, s44, {cc*32768}")
        a("buffer_load_dwordx4 v9, s[24:27], s50 offen lds")
    pf = []
    for c in range(7):
        pf += p3_dma(c)
    for st in softmax4(a, ACC, PH):
        n = {0: 6, 1: 6, 2: 3, 3: 2, 4: 2, 5: 2}[st]
        for it in pf[:n]:
            for x in it:
                a.emit(x)
        pf = pf[n:]
    assert not pf
    a.stamp(12)


VWO = [6, 7, 10, 11]


def p3_slot(c):
    return c + 6 if c < 7 else (c - 7 if c < 13 else c - 7)


def p3_setup(a):
    a("s_load_dwordx4 s[16:19], s[0:1], 40")
    a("s_and_b32 s48, s2, 7")
    a("s_lshr_b32 s50, s2, 3")
    a("s_lshl_b32 s33, s48, 1")
    a("s_cmp_ge_u32 s50, 15")
    a("s_cselect_b32 s32, 1, 0")
    a("s_add_u32 s33, s33, s32")
    a("s_mul_i32 s32, s32, 15")
    a("s_sub_u32 s32, s50, s32")
    a("s_sub_u32 s48, s2, 240")
    a("s_min_u32 s48, s48, 14")
    a("s_cmp_ge_u32 s2, 240")
    a("s_cselect_b32 s32, s48, s32")
    a("s_and_b32 s48, s3, 1")
    a("s_mul_i32 s34, s48, 16*2752")
    a("s_mul_i32 s50, s32, 192")
    a("s_add_u32 s34, s34, s50")
    a("s_mul_i32 s35, s3, 3072")
    for i in range(3):
        d = VD[i]
        a(f"v_add_u32 v12, {64*i}, v{VL}")
        a("v_mul_u32_u24 v16, 43691, v12")
        a("v_lshrrev_b32 v16, 19, v16")
        a("v_mul_u32_u24 v17, 12, v16")
        a("v_sub_u32 v12, v12, v17")
        a("v_bfe_u32 v17, v16, 2, 1")
        a("v_lshlrev_b32 v17, 1, v17")
        a("v_xor_b32 v12, v12, v17")
        a(f"v_mul_u32_u24 v{d}, 2752, v16")
        a(f"v_lshl_add_u32 v{d}, v12, 4, v{d}")
    a("s_waitcnt lgkmcnt(0)")
    a("s_cmp_ge_u32 s3, 2")
    a("s_cselect_b32 s28, s18, s16")
    a("s_cselect_b32 s29, s19, s17")
    a("s_and_b32 s29, s29, 0xffff")
    a("s_mov_b32 s30, 512*2752")
    a("s_mov_b32 s31, 0x00020000")


def p3_dma(c):
    L = []
    for i in range(3):
        L.append([f"s_add_u32 m0, s35, {p3_slot(c)*12288 + i*1024}",
                  f"s_add_u32 s50, s34, {c*32*2752}",
                  ('v', ("D", c), f"buffer_load_dwordx4 v{VD[i]}, s[28:31], s50 offen lds")])
    return L


def wo_addr(a):
    a(f"v_lshlrev_b32 v12, 9, v{VG}")
    a(f"v_lshl_add_u32 v12, v{VRR}, 7, v12")
    a(f"v_lshl_add_u32 v12, v{VQ}, 3, v12")
    a(f"v_and_b32 v13, 1, v{VG}")
    a(f"v_xor_b32 v13, v13, v{VRR}")
    a(f"v_lshl_add_u32 v{VWO[0]}, v13, 5, v12")
    for t in range(1, 4):
        a(f"v_xor_b32 v{VWO[t]}, {t<<5}, v{VWO[0]}")


def wo_tr_list():
    L = []
    for c in range(16):
        for t in range(4):
            r = (c * 4 + t) * 4
            L.append(f"ds_read_b64_tr_b16 a[{r}:{r+1}], v{VWO[t]} offset:{L_WQ + c*4096}")
            L.append(f"ds_read_b64_tr_b16 a[{r+2}:{r+3}], v{VWO[t]} offset:{L_WQ + c*4096 + 2048}")
    return L


def b1_arrive(a):
    a("s_waitcnt vmcnt(0)")
    a("s_barrier")
    a("s_cmp_lg_u32 s3, 0")
    a("s_cbranch_scc1 B1_A")
    a(f"v_lshlrev_b32 v12, 12, v{VL}")
    a("v_mov_b32 v16, 1")
    a("s_lshl_b32 s48, s2, 4")
    a(f"s_add_u32 s48, s48, {WS_FLG + F_B1}")
    a("s_mov_b64 exec, 255")
    a("buffer_store_dword v16, v12, s[40:43], s48 offen sc1")
    a("s_mov_b64 exec, -1")
    a.lab("B1_A")


def p2(a):
    WO = wo_tr_list()
    XR = 224
    a(f"v_lshlrev_b32 v12, 10, v{VM_}")
    a(f"v_lshl_add_u32 v12, v{VG}, 3, v12")
    a("s_lshl_b32 s54, s6, 6")
    a("s_lshl_b32 s55, s3, 4")
    a("s_add_u32 s54, s54, s55")
    a("s_lshl_b32 s56, s54, 10")
    a("s_lshl_b32 s57, s7, 7")
    a("s_add_u32 s56, s56, s57")
    for t in range(4):
        a(f"buffer_load_dwordx2 v[{XR+2*t}:{XR+2*t+1}], v12, s[20:23], s56 offen offset:{t*32}")
    wo_addr(a)
    a.stamp(0)
    a("s_cmp_lg_u32 s3, 0")
    a("s_cbranch_scc1 B1_W")
    a(f"v_lshlrev_b32 v12, 6, v{VL}")
    a("s_and_b32 s48, s2, 7")
    a("s_lshl_b32 s48, s48, 12")
    a(f"s_add_u32 s48, s48, {WS_FLG + F_B1}")
    a("s_mov_b32 s49, 0")
    a("s_sleep 6")
    a.lab("B1_P")
    for q in range(4):
        a(f"buffer_load_dword v{16+q}, v12, s[40:43], s48 offen offset:{q*16} sc1")
    a("s_add_u32 s49, s49, 1")
    a(f"s_cmp_gt_u32 s49, {SPIN_MAX}")
    a("s_cbranch_scc1 B1_W")
    a("s_waitcnt vmcnt(0)")
    a("v_and_b32 v16, v16, v17")
    a("v_and_b32 v18, v18, v19")
    a("v_and_b32 v16, v16, v18")
    a("v_cmp_ne_u32 vcc, 1, v16")
    a("s_cbranch_vccz B1_W")
    a("s_sleep 6")
    a("s_branch B1_P")
    a.lab("B1_W")
    a("s_waitcnt vmcnt(0) lgkmcnt(0)")
    a("s_barrier")
    a.stamp(1)
    a(f"v_lshlrev_b32 v40, 2, v{VL}")
    a(f"v_lshlrev_b32 v13, 4, v{VG}")
    KF = 16
    for j in range(8):
        a(f"buffer_load_dword v{KF+j}, v40, s[40:43], s58 offen offset:{j*256} sc1")
    a(f"buffer_load_dwordx4 v[{KF+8}:{KF+11}], v13, s[40:43], s58 offen offset:2048 sc1")
    a(f"buffer_load_dwordx4 v[{KF+12}:{KF+15}], v13, s[40:43], s58 offen offset:2112 sc1")
    a("s_mov_b32 s48, 2048*4")
    a("s_cmp_eq_u32 s3, 0")
    a("s_cselect_b32 s48, 1024*4, s48")
    a("s_cmp_eq_u32 s3, 1")
    a("s_cselect_b32 s48, 2560*4, s48")
    a("s_lshl_b32 s49, s7, 8")
    a("s_add_u32 s48, s48, s49")
    for p in range(4):
        a(f"s_add_u32 s49, s48, {p*3072*4}")
        a(f"buffer_load_dword v{232+p}, v40, s[40:43], s49 offen sc1")
    a(f"v_lshlrev_b32 v9, 3, v{VL}")
    a("s_lshl_b32 s55, s6, 16")
    a(f"s_add_u32 s55, s55, {WS_O}")
    a("s_lshl_b32 s48, s7, 2")
    a("s_add_u32 s48, s48, s3")
    a("s_lshl_b32 s48, s48, 9")
    a("s_add_u32 s48, s48, s55")
    a("s_mov_b32 s60, 0x358637bd")
    for x in WO[:NWO1]:
        a(x)
    a("s_waitcnt vmcnt(4)")
    for i in range(8):
        a(f"v_cvt_pk_bf16_f32 v{KF+i}, v{KF+2*i}, v{KF+2*i+1}")
    ND = 128
    a.nop(1)
    for rt in range(4):
        b = PH + 4 * rt
        a(f"v_mfma_f32_16x16x32_bf16 v[{ND+8*rt+4}:{ND+8*rt+7}], v[{KF+4}:{KF+7}], v[{b}:{b+3}], 0")
    for rt in range(4):
        b = PH + 4 * rt
        a(f"v_mfma_f32_16x16x32_bf16 v[{ND+8*rt}:{ND+8*rt+3}], v[{KF}:{KF+3}], v[{b}:{b+3}], 0")
    a.nop(2)
    for rt in range(4):
        n = ND + 8 * rt
        a(f"v_add_f32 v{n+4}, s60, v{n+4}")
    for rt in range(4):
        n = ND + 8 * rt
        a(f"v_rcp_f32 v{n+4}, v{n+4}")
    a.nop(4)
    for rt in range(4):
        n = ND + 8 * rt
        for r in range(4):
            a(f"v_mul_f32 v{n+r}, v{n+r}, v{n+4}")
        a(f"v_cvt_pk_bf16_f32 v{n}, v{n}, v{n+1}")
        a(f"v_cvt_pk_bf16_f32 v{n+1}, v{n+2}, v{n+3}")
        a(f"buffer_store_dwordx2 v[{n}:{n+1}], v9, s[40:43], s48 offen sc1")
        if rt < 3:
            a("s_add_u32 s48, s48, 16384")
    a("s_waitcnt vmcnt(4)")
    NW2 = (NWO1 + 128) // 2
    for x in WO[NWO1:NW2]:
        a(x)
    a("s_waitcnt vmcnt(0)")
    a("s_barrier")
    a.stamp(2)
    a("s_lshl_b32 s48, s6, 7")
    a(f"s_add_u32 s48, s48, {WS_FLG + F_G2}")
    a("s_cmp_lg_u32 s3, 0")
    a("s_cbranch_scc1 G2_A")
    a("v_mov_b32 v13, 1")
    a("v_mov_b32 v12, 0")
    a("s_lshl_b32 s49, s7, 4")
    a("s_add_u32 s49, s49, s48")
    a("s_mov_b64 exec, 1")
    a("buffer_store_dword v13, v12, s[40:43], s49 offen sc1")
    a("s_mov_b64 exec, -1")
    a.lab("G2_A")
    for x in WO[NW2:]:
        a(x)
    a("v_add_f32 v232, v232, v233")
    a("v_add_f32 v234, v234, v235")
    a("v_add_f32 v232, v232, v234")
    a("v_cvt_pk_bf16_f32 v232, v232, v232")
    a("v_lshlrev_b32 v232, 16, v232")
    a("s_cmp_ge_u32 s3, 2")
    a("s_cselect_b32 s49, 1.0, 0")
    a("v_add_f32 v232, s49, v232")
    a("v_cvt_pk_bf16_f32 v232, v232, v232")
    a("v_lshlrev_b32 v232, 16, v232")
    a("s_min_u32 s49, s3, 2")
    a("s_lshl_b32 s49, s49, 8")
    a(f"s_add_u32 s49, s49, {L_GA}")
    a("v_add_u32 v40, s49, v40")
    a("ds_write_b32 v40, v232")
    ACC2 = 24
    a("s_lshl_b32 s50, s3, 14")
    a("s_add_u32 s55, s55, s50")
    poll(a, "G2", 8, V16, 48, presleep=0)
    a("s_waitcnt vmcnt(0) lgkmcnt(0)")
    a("s_barrier")
    a.stamp(3)
    OB = 64
    a.vq = []
    a.lq = []
    for c in range(16):
        if c % 4 == 0:
            a(f"s_add_u32 s48, s55, {c*1024}")
        a.vm(("o", c), f"buffer_load_dwordx2 v[{OB+4*c}:{OB+4*c+1}], v9, s[40:43], s48 offen offset:{(c&3)*1024}")
        a.vm(("o", c), f"buffer_load_dwordx2 v[{OB+4*c+2}:{OB+4*c+3}], v9, s[40:43], s48 offen offset:{(c&3)*1024+512}")
    GA = 232
    a(f"v_lshlrev_b32 v12, 4, v{VG}")
    a(f"v_add_u32 v12, {L_GA}, v12")
    A2 = 208
    pf = []
    for c in range(7, 13):
        pf += p3_dma(c)
    for t in range(4):
        a(f"ds_read_b128 v[{GA+4*t}:{GA+4*t+3}], v12 offset:{t*64}")
        a(f"ds_read_b128 v[{A2+4*t}:{A2+4*t+3}], v12 offset:{512+t*64}")
    for c in range(16):
        a.wv(("o", c))
        for t in range(4):
            d = ACC2 + 4 * t
            w = (c * 4 + t) * 4
            cc = "0" if c == 0 else f"v[{d}:{d+3}]"
            a(f"v_mfma_f32_16x16x32_bf16 v[{d}:{d+3}], a[{w}:{w+3}], v[{OB+4*c}:{OB+4*c+3}], {cc}")
            if t < 2 and pf:
                for x in pf.pop(0):
                    a.emit(x)
    ACCx = ACC2
    X = 64
    for t in range(4):
        for d in range(2):
            a(f"v_lshlrev_b32 v{X+4*t+2*d}, 16, v{XR+2*t+d}")
            a(f"v_and_b32 v{X+4*t+2*d+1}, 0xffff0000, v{XR+2*t+d}")
    a("s_waitcnt lgkmcnt(0)")
    a.nop(4)
    for t in range(4):
        d = ACCx + 4 * t
        a(f"v_cvt_pk_bf16_f32 v{d}, v{d}, v{d+1}")
        a(f"v_cvt_pk_bf16_f32 v{d+2}, v{d+2}, v{d+3}")
    for t in range(4):
        d = ACCx + 4 * t
        a(f"v_and_b32 v{d+1}, 0xffff0000, v{d}")
        a(f"v_lshlrev_b32 v{d}, 16, v{d}")
        a(f"v_and_b32 v{d+3}, 0xffff0000, v{d+2}")
        a(f"v_lshlrev_b32 v{d+2}, 16, v{d+2}")
    for i in range(16):
        a(f"v_mul_f32 v{ACCx+i}, v{ACCx+i}, v{GA+i}")
    for t in range(4):
        d = ACCx + 4 * t
        a(f"v_cvt_pk_bf16_f32 v{d}, v{d}, v{d+1}")
        a(f"v_cvt_pk_bf16_f32 v{d+2}, v{d+2}, v{d+3}")
    for t in range(4):
        d = ACCx + 4 * t
        a(f"v_and_b32 v{d+1}, 0xffff0000, v{d}")
        a(f"v_lshlrev_b32 v{d}, 16, v{d}")
        a(f"v_and_b32 v{d+3}, 0xffff0000, v{d+2}")
        a(f"v_lshlrev_b32 v{d+2}, 16, v{d+2}")
    for i in range(16):
        a(f"v_add_f32 v{X+i}, v{X+i}, v{ACCx+i}")
    PK = 80
    for t in range(4):
        a(f"v_cvt_pk_bf16_f32 v{PK+2*t}, v{X+4*t}, v{X+4*t+1}")
        a(f"v_cvt_pk_bf16_f32 v{PK+2*t+1}, v{X+4*t+2}, v{X+4*t+3}")
    for t in range(4):
        for d in range(2):
            a(f"v_lshlrev_b32 v{X+4*t+2*d}, 16, v{PK+2*t+d}")
            a(f"v_and_b32 v{X+4*t+2*d+1}, 0xffff0000, v{PK+2*t+d}")
    Y = 96
    for i in range(0, 16, 2):
        a(f"v_pk_mul_f32 v[{Y+i}:{Y+i+1}], v[{X+i}:{X+i+1}], v[{A2+i}:{A2+i+1}]")
    for i in range(8):
        a(f"v_cvt_pk_bf16_f32 v{Y+i}, v{Y+2*i}, v{Y+2*i+1}")
    a("s_lshl_b32 s59, s54, 10")
    a("s_lshl_b32 s57, s7, 11")
    a("s_add_u32 s59, s59, s57")
    a(f"s_add_u32 s59, s59, {WS_X1}")
    a(f"buffer_store_dwordx4 v[{Y}:{Y+3}], v{V16}, s[40:43], s59 offen sc1")
    a(f"buffer_store_dwordx4 v[{Y+4}:{Y+7}], v{V16}, s[40:43], s59 offen offset:1024 sc1")
    a("s_mov_b32 s46, 0x3f803f80")
    for i in range(8):
        c0 = "0" if i < 2 else f"v{90+(i&1)*2}"
        c1 = "0" if i < 2 else f"v{91+(i&1)*2}"
        a(f"v_dot2_f32_bf16 v{90+(i&1)*2}, v{PK+i}, s46, {c0}")
        a(f"v_dot2_f32_bf16 v{91+(i&1)*2}, v{PK+i}, v{PK+i}, {c1}")
    a.nop(4)
    a("v_add_f32 v90, v90, v92")
    a("v_add_f32 v91, v91, v93")
    xgroup_reduce(a, [90, 91], [92, 93], "v_add_f32")
    a(f"v_lshlrev_b32 v95, 3, v{VM_}")
    a("s_lshl_b32 s57, s6, 3")
    a("s_add_u32 s57, s57, s7")
    a("s_lshl_b32 s57, s57, 9")
    a("s_lshl_b32 s48, s3, 7")
    a("s_add_u32 s57, s57, s48")
    a(f"s_add_u32 s57, s57, {WS_ST2}")
    a("s_mov_b64 exec, 0xffff")
    a("buffer_store_dwordx2 v[90:91], v95, s[40:43], s57 offen sc1")
    a("s_mov_b64 exec, -1")
    for i in range(8):
        a(f"v_accvgpr_write_b32 a{248+i}, v{PK+i}")
    a("s_waitcnt vmcnt(0)")
    a("s_barrier")
    a("s_cmp_lg_u32 s3, 0")
    a("s_cbranch_scc1 G3_A")
    a("v_mov_b32 v13, 1")
    a("v_mov_b32 v12, 0")
    a("s_lshl_b32 s48, s6, 7")
    a("s_lshl_b32 s49, s7, 4")
    a("s_add_u32 s49, s49, s48")
    a(f"s_add_u32 s49, s49, {WS_FLG + F_G3}")
    a("s_mov_b64 exec, 1")
    a("buffer_store_dword v13, v12, s[40:43], s49 offen sc1")
    a("s_mov_b64 exec, -1")
    a.lab("G3_A")
    a.stamp(4)


def main():
    import p34n as p34
    a = M()
    a.raw(f"; @launch kernel=mk_kernel grid=(256,1,1) block=(256,1,1) lds={LDS_TOTAL}")
    a.raw('.amdgcn_target "amdgcn-amd-amdhsa--gfx950"')
    a.raw(".text")
    kernel_head(a, "mk_kernel")
    a("s_cmp_ge_u32 s2, 256")
    a("s_cbranch_scc1 MK_END")
    front(a)
    p1(a)
    if STAMP:
        a("s_waitcnt lgkmcnt(0)")
        a.stamp_out(1)
        a.late = 1
    p2(a)
    if STAMP:
        a("s_waitcnt lgkmcnt(0)")
        a.stamp_out(2)
    p34.p3(a)
    p34.p4(a)
    if STAMP:
        a("s_waitcnt lgkmcnt(0)")
        a.stamp_out(3)
    a.lab("MK_END")
    a("s_endpgm")
    a.raw('.section .rodata,"a"')
    a.raw(".p2align 6")
    a.raw(kernel_desc("mk_kernel", 256, agpr=256))
    out = sys.argv[1] if len(sys.argv) > 1 else f"cdna_kernels/{NAME}.s"
    open(out, "w").write(a.text())


if __name__ == "__main__":
    main()
```

```python
from gen_common import *
import mk5
from mk5 import *


def d_addr(d):
    if d >= 39:
        d -= 39
    if d < 12:
        return 110592 + d * 4096
    if d < 24:
        return (d - 12) * 4096
    return 49152 + (d - 24) * 4096


VDD = 63


def p4_setup(a):
    a("s_load_dwordx2 s[16:17], s[0:1], 56")
    a(f"v_lshrrev_b32 v12, 3, v{VL}")
    a(f"v_and_b32 v13, 7, v{VL}")
    a("v_and_b32 v16, 3, v12")
    a("v_lshrrev_b32 v17, 2, v12")
    a("v_xor_b32 v16, v16, v17")
    a("v_lshlrev_b32 v16, 1, v16")
    a("v_xor_b32 v13, v13, v16")
    a("v_lshlrev_b32 v12, 10, v12")
    a(f"v_lshl_add_u32 v{VDD}, v13, 4, v12")
    a("s_lshl_b32 s44, s3, 13")
    a("s_lshl_b32 s45, s7, 7")
    a("s_add_u32 s44, s44, s45")
    a("s_lshl_b32 s45, s3, 10")
    a("s_waitcnt lgkmcnt(0)")
    srd(a, 24, 16, 0, 1376 * 1024)


def p4_dma(d):
    return [f"s_add_u32 m0, s45, {d_addr(d)}",
            f"s_add_u32 s50, s44, {d*32768}",
            ('v', ("E", d), f"buffer_load_dwordx4 v{VDD}, s[24:27], s50 offen lds")]


def tr_base(a, dst):
    a(f"v_lshl_add_u32 v{dst}, v{VG}, 2, v{VRR}")
    a(f"v_mul_u32_u24 v{dst}, 192, v{dst}")
    a(f"v_lshl_add_u32 v{dst}, v{VQ}, 3, v{dst}")


def p3x(a):
    T = 16
    mod_table(a, 1536, 0, T)
    tr_base(a, 12)
    a(f"v_and_b32 v13, 1, v{VG}")
    a("s_and_b32 s48, s3, 1")
    a("s_mul_i32 s48, s48, 3")
    a("s_lshr_b32 s49, s3, 1")
    a("s_mul_i32 s49, s49, 6144")
    VA = 32
    for i in range(3):
        a(f"s_add_u32 s51, s48, {i}")
        a("v_xor_b32 v14, s51, v13")
        a(f"v_lshl_add_u32 v{VA+3*i}, v14, 5, v12")
        a(f"v_add_u32 v{VA+3*i}, s49, v{VA+3*i}")
        a(f"v_add_u32 v{VA+3*i+1}, 0x10000, v{VA+3*i}")
        a(f"v_add_u32 v{VA+3*i+2}, 0x20000, v{VA+3*i}")
    a("s_waitcnt vmcnt(0)")
    a(f"v_pk_add_f32 v[{T}:{T+1}], v[{T}:{T+1}], v[{T+2}:{T+3}]")
    a(f"v_pk_add_f32 v[{T+4}:{T+5}], v[{T+4}:{T+5}], v[{T+6}:{T+7}]")
    a(f"v_pk_add_f32 v[{T+8}:{T+9}], v[{T+8}:{T+9}], v[{T+10}:{T+11}]")
    a(f"v_pk_add_f32 v[{T+12}:{T+13}], v[{T+12}:{T+13}], v[{T+14}:{T+15}]")
    a(f"v_pk_add_f32 v[{T}:{T+1}], v[{T}:{T+1}], v[{T+4}:{T+5}]")
    a(f"v_pk_add_f32 v[{T+8}:{T+9}], v[{T+8}:{T+9}], v[{T+12}:{T+13}]")
    a(f"v_cvt_pk_bf16_f32 v{T+2}, v{T}, v{T+1}")
    a(f"v_cvt_pk_bf16_f32 v{T+3}, v{T+8}, v{T+9}")
    a(f"v_lshlrev_b32 v{T+4}, 16, v{T+3}")
    a(f"v_and_b32 v{T+5}, 0xffff0000, v{T+3}")
    a(f"v_add_f32 v{T+4}, 1.0, v{T+4}")
    a(f"v_add_f32 v{T+5}, 1.0, v{T+5}")
    a(f"v_cvt_pk_bf16_f32 v{T+3}, v{T+4}, v{T+5}")
    a("v_lshlrev_b32 v12, 2, v0")
    a(f"v_add_u32 v12, {L_AS}, v12")
    a(f"ds_write_b32 v12, v{T+3}")
    a(f"ds_write_b32 v12, v{T+2} offset:1024")
    a(f"v_and_b32 v12, 1, v{VM_}")
    a("v_lshlrev_b32 v12, 10, v12")
    a(f"v_lshl_add_u32 v12, v{VG}, 3, v12")
    a(f"v_add_u32 v12, {L_AS}, v12")
    a("s_waitcnt lgkmcnt(0)")
    a("s_barrier")
    B = 64
    for c in range(16):
        a(f"ds_read_b64 v[{B+4*c}:{B+4*c+1}], v12 offset:{c*64}")
        a(f"ds_read_b64 v[{B+4*c+2}:{B+4*c+3}], v12 offset:{c*64+32}")
    AC = 48

    def grp(cs):
        for c in cs:
            for i in range(3):
                off = p3_slot(c) * 12288
                r = (c * 3 + i) * 4
                a(f"ds_read_b64_tr_b16 a[{r}:{r+1}], v{VA+3*i+(off>>16)} offset:{off & 0xffff}")
                off += 3072
                a(f"ds_read_b64_tr_b16 a[{r+2}:{r+3}], v{VA+3*i+(off>>16)} offset:{off & 0xffff}")
        a("s_waitcnt lgkmcnt(0)")

    def mm(cs):
        for c in cs:
            for i in range(3):
                r = (c * 3 + i) * 4
                d = AC + 4 * i
                cc = "0" if c == 0 else f"v[{d}:{d+3}]"
                a(f"v_mfma_f32_16x16x32_bf16 v[{d}:{d+3}], a[{r}:{r+3}], v[{B+4*c}:{B+4*c+3}], {cc}")
    grp(range(0, 3))
    a("s_barrier")
    for c in range(13, 16):
        for it in p3_dma(c):
            for x in it:
                a.emit(x)
    grp(range(3, 13))
    mm(range(0, 13))
    a("s_waitcnt vmcnt(0)")
    a("s_barrier")
    grp(range(13, 16))
    mm(range(13, 16))
    a(f"v_lshlrev_b32 v12, 6, v{VM_}")
    a(f"v_lshl_add_u32 v12, v{VG}, 4, v12")
    a("s_mul_i32 s48, s32, 1536")
    a("s_mul_i32 s49, s3, 384")
    a("s_add_u32 s48, s48, s49")
    a(f"s_add_u32 s48, s48, {WS_AS}")
    a("s_mov_b32 s50, 0x00030003")
    a("s_mov_b32 s51, 0x00030003")
    a.nop(4)
    a("s_mov_b64 exec, s[50:51]")
    for i in range(3):
        a(f"buffer_store_dwordx4 v[{AC+4*i}:{AC+4*i+3}], v12, s[40:43], s48 offen offset:{i*128} sc1")
    a("s_mov_b64 exec, -1")
    a("s_waitcnt vmcnt(0)")
    a("s_barrier")
    a("s_cmp_lg_u32 s3, 0")
    a("s_cbranch_scc1 P3X_E")
    a("v_mov_b32 v13, 1")
    a("v_mov_b32 v12, 0")
    a("s_lshl_b32 s48, s32, 7")
    a(f"s_add_u32 s48, s48, {WS_FLG + F_G5}")
    a("s_mov_b64 exec, 1")
    a("buffer_store_dword v13, v12, s[40:43], s48 offen sc1")
    a("s_mov_b64 exec, -1")
    a.lab("P3X_E")


def p3(a):
    a.stamp(0)
    p4_setup(a)
    a("s_cmp_lt_u32 s2, 240")
    a("s_cbranch_scc1 P3_GO")
    a("s_cmp_eq_u32 s2, 255")
    a("s_cbranch_scc1 P3X_S")
    p3x(a)
    a.lab("P3X_S")
    a("s_waitcnt vmcnt(0)")
    a("s_barrier")
    for d in range(39):
        for x in p4_dma(d):
            a.emit(x)
    a("s_branch P3_END")
    a.lab("P3_GO")
    a("s_lshl_b32 s54, s33, 7")
    a("s_lshl_b32 s55, s3, 5")
    a("s_add_u32 s54, s54, s55")
    a("s_lshl_b32 s55, s54, 10")
    a(f"s_add_u32 s55, s55, {WS_X1}")
    a("s_add_u32 s56, s55, 16384")
    ACC = 64
    a.vq = []
    a.lq = []

    def yreg(c, rt):
        if c < 12:
            b = 144 + (c * 2 + rt) * 4
            return f"a[{b}:{b+3}]"
        b = 160 + ((c - 12) * 2 + rt) * 4
        return f"v[{b}:{b+3}]"
    VE = [6, 7, 9]
    VO = [10, 11, 14]
    tr_base(a, 12)
    a(f"v_and_b32 v13, 1, v{VG}")
    a("v_lshlrev_b32 v13, 5, v13")
    a(f"v_add_u32 v{VE[0]}, v12, v13")
    a(f"v_sub_u32 v{VO[0]}, v12, v13")
    a(f"v_add_u32 v{VO[0]}, 32, v{VO[0]}")
    for k in (1, 2):
        a(f"v_add_u32 v{VE[k]}, {k<<16}, v{VE[0]}")
        a(f"v_add_u32 v{VO[k]}, {k<<16}, v{VO[0]}")
    a("s_mov_b32 s47, 0xffff0000")
    a(f"v_lshlrev_b32 v15, 3, v{VM_}")
    a(f"v_lshlrev_b32 v48, 4, v{VG}")
    a("s_lshl_b32 s52, s33, 1")
    a("s_lshr_b32 s53, s3, 1")
    a("s_add_u32 s52, s52, s53")
    a("s_lshl_b32 s52, s52, 12")
    a("s_and_b32 s53, s3, 1")
    a("s_lshl_b32 s53, s53, 8")
    a("s_add_u32 s52, s52, s53")
    a(f"s_add_u32 s52, s52, {WS_ST2}")
    a("s_mul_i32 s53, s32, 1536")
    a(f"s_add_u32 s53, s53, {WS_AS}")
    a("s_lshl_b32 s51, s32, 7")
    a(f"s_add_u32 s51, s51, {WS_FLG + F_G5}")
    a("s_lshl_b32 s48, s33, 8")
    a(f"s_add_u32 s48, s48, {WS_FLG + F_G3}")
    a.stamp(1)
    poll(a, "G3", 16, V16, 48, presleep=0)
    a("s_waitcnt vmcnt(0)")
    a("s_barrier")
    a.stamp(2)

    def yload(c):
        L = []
        if c > 15:
            return L
        for rt in range(2):
            if c % 4 == 0:
                L.append(f"s_add_u32 s{57+rt}, s{55+rt}, {(c>>2)*4096}")
            L.append(('v', ("X", c), f"buffer_load_dwordx4 {yreg(c, rt)}, v{V16}, s[40:43], s{57+rt} offen offset:{(c&3)*1024}"))
        return L
    NY1 = int(os.environ.get("NY1", "4"))
    for c in range(NY1):
        for x in yload(c):
            a.emit(x)

    def lds_list(c):
        L = []
        if c > 15:
            return L
        f = (c % 3) * 48
        for t in range(12):
            gu, tt = t // 6, t % 6
            off = p3_slot(c) * 12288 + gu * 6144 + (tt & ~1) * 32
            V = VO if tt & 1 else VE
            r = f + t * 4
            L.append(f"ds_read_b64_tr_b16 a[{r}:{r+1}], v{V[off >> 16]} offset:{off & 0xffff}")
            off += 3072
            L.append(f"ds_read_b64_tr_b16 a[{r+2}:{r+3}], v{V[off >> 16]} offset:{off & 0xffff}")
        return L

    def mfma_list(c):
        L = []
        f = (c % 3) * 48
        for rt in range(2):
            for t in range(12):
                d = ACC + (t * 2 + rt) * 4
                fa = f + t * 4
                cc = "0" if c == 0 else f"v[{d}:{d+3}]"
                L.append(f"v_mfma_f32_16x16x32_bf16 v[{d}:{d+3}], a[{fa}:{fa+3}], {yreg(c, rt)}, {cc}")
        return L
    ST = 192
    RS = [50, 52]
    NM = [54, 56]

    def stat_loads():
        L = []
        for rt in range(2):
            for cb in range(8):
                L.append(('v', "S", f"buffer_load_dwordx2 v[{ST+16*rt+2*cb}:{ST+16*rt+2*cb+1}], v15, s[40:43], s52 offen offset:{cb*512+rt*128} sc1"))
        return L

    def stat_code():
        L = [('wv', "S")]
        for st in (8, 4, 2):
            for rt in range(2):
                s = ST + 16 * rt
                for i in range(st):
                    L.append(f"v_add_f32 v{s+i}, v{s+i}, v{s+i+st}")
        for rt in range(2):
            s = ST + 16 * rt
            L.append(f"v_mul_f32 v{s}, 0x3b000000, v{s}")
            L.append(f"v_mul_f32 v{s+1}, 0x3b000000, v{s+1}")
        for rt in range(2):
            s = ST + 16 * rt
            L.append(f"v_fma_f32 v{s+1}, -v{s}, v{s}, v{s+1}")
        for rt in range(2):
            s = ST + 16 * rt
            L.append(f"v_max_f32 v{s+1}, 0, v{s+1}")
        for rt in range(2):
            s = ST + 16 * rt
            L.append(f"v_add_f32 v{s+1}, 0x3727c5ac, v{s+1}")
        for rt in range(2):
            s = ST + 16 * rt
            L.append(f"v_rsq_f32 v{RS[rt]}, v{s+1}")
        L.append("s_nop 1")
        for rt in range(2):
            s = ST + 16 * rt
            L.append(f"v_mul_f32 v{NM[rt]}, v{s}, v{RS[rt]}")
        for rt in range(2):
            L.append(f"v_sub_f32 v{NM[rt]}, 0, v{NM[rt]}")
        return L

    def asreg(t, kind):
        i = t * 2 + kind
        return 192 + 4 * i if i < 16 else 16 + 4 * (i - 16)

    def as_loads():
        L = []
        for t in range(12):
            for kind in range(2):
                r = asreg(t, kind)
                L.append(('v', "AS", f"buffer_load_dwordx4 v[{r}:{r+3}], v48, s[40:43], s53 offen offset:{t*128+kind*64} sc1"))
        return L

    def flat(items):
        L = []
        for it in items:
            L += it
        return L
    for s in lds_list(0) + lds_list(1):
        a(s)
    a.stamp(3)
    for c in range(16):
        extra = []
        if c in (3, 7, 11):
            if c == 11:
                a.wv(("D", 15))
            a("s_waitcnt lgkmcnt(15)")
            a("s_barrier")
        yl = yload(NY1 + 2 * c) + yload(NY1 + 2 * c + 1)
        if c == 6:
            extra = stat_loads()
        if c == 3:
            extra = flat(p3_dma(13) + p3_dma(14) + p3_dma(15))
        if c == 10:
            extra = stat_code()
        if c in (7, 8, 11, 12):
            d0 = {7: 0, 8: 6, 11: 12, 12: 18}[c]
            extra = flat([p4_dma(d) for d in range(d0, d0 + 6)])
        if c == 9:
            extra = ["v_mov_b32 v12, 0", ('v', "F", "buffer_load_dword v13, v12, s[40:43], s51 offen sc1")]
        if c == 13:
            a.wv("F")
            a("v_cmp_ne_u32 vcc, 1, v13")
            a("s_cbranch_vccz G5_OK")
            a("s_mov_b32 s49, 0")
            a.lab("G5_P")
            a("buffer_load_dword v13, v12, s[40:43], s51 offen sc1")
            a("s_add_u32 s49, s49, 1")
            a(f"s_cmp_gt_u32 s49, {SPIN_MAX}")
            a("s_cbranch_scc1 G5_OK")
            a("s_waitcnt vmcnt(0)")
            a("v_cmp_ne_u32 vcc, 1, v13")
            a("s_cbranch_vccz G5_OK")
            a("s_sleep 3")
            a("s_branch G5_P")
            a.lab("G5_OK")
            extra = as_loads()
        extra = yl + extra
        a.wv(("X", c))
        if c < 15:
            a("s_waitcnt lgkmcnt(15)")
        else:
            a("s_waitcnt lgkmcnt(0)")
        others = lds_list(c + 2)
        if extra:
            if others:
                merged = []
                n, k = len(others), len(extra)
                ei = 0
                for i, o in enumerate(others):
                    merged.append(o)
                    tgt = k * (i + 1) // n
                    merged += extra[ei:tgt]
                    ei = tgt
                others = merged
            else:
                others = extra
        a.inter(mfma_list(c), others)
    a.stamp(4)
    a("s_barrier")
    a("s_mov_b32 s60, 0x3d372713")
    a("s_mov_b32 s61, 0x3d372713")
    a("s_mov_b32 s62, 0xc0135761")
    a("s_mov_b32 s63, 0xc0135761")
    a.wv("AS")
    a.nop(4)
    TT = 160
    real = a
    a = M()
    for t in range(12):
        A_, S_ = asreg(t, 0), asreg(t, 1)
        for rt in range(2):
            tmp = TT + ((t * 2 + rt) % 4) * 4
            d = ACC + (t * 2 + rt) * 4
            for h in (0, 2):
                a(f"v_pk_fma_f32 v[{tmp+h}:{tmp+h+1}], v[{A_+h}:{A_+h+1}], v[{NM[rt]}:{NM[rt]+1}], v[{S_+h}:{S_+h+1}] op_sel_hi:[1,0,1]")
            for h in (0, 2):
                a(f"v_pk_fma_f32 v[{d+h}:{d+h+1}], v[{d+h}:{d+h+1}], v[{RS[rt]}:{RS[rt]+1}], v[{tmp+h}:{tmp+h+1}] op_sel_hi:[1,0,1]")
    G = ACC
    U = ACC + 48
    for i in range(0, 96, 2):
        a(f"v_cvt_pk_bf16_f32 v{ACC+i}, v{ACC+i}, v{ACC+i+1}")
    for i in range(0, 96, 2):
        a(f"v_and_b32 v{ACC+i+1}, s47, v{ACC+i}")
        a(f"v_lshlrev_b32 v{ACC+i}, 16, v{ACC+i}")
    weave(real, [x.strip() for x in a.l], [p4_dma(d) for d in range(24, 39)])
    a = real
    T = 192
    for i in range(0, 48, 2):
        a(f"v_pk_mul_f32 v[{T+i}:{T+i+1}], v[{G+i}:{G+i+1}], v[{G+i}:{G+i+1}]")
    for i in range(0, 48, 2):
        a(f"v_pk_fma_f32 v[{T+i}:{T+i+1}], v[{T+i}:{T+i+1}], s[60:61], 1.0 op_sel_hi:[1,1,0]")
    for i in range(0, 48, 2):
        a(f"v_pk_mul_f32 v[{T+i}:{T+i+1}], v[{T+i}:{T+i+1}], v[{G+i}:{G+i+1}]")
    for i in range(0, 48, 2):
        a(f"v_pk_mul_f32 v[{T+i}:{T+i+1}], v[{T+i}:{T+i+1}], s[62:63]")
    for i in range(48):
        a(f"v_exp_f32 v{T+i}, v{T+i}")
    for i in range(0, 48, 2):
        a(f"v_pk_add_f32 v[{T+i}:{T+i+1}], v[{T+i}:{T+i+1}], 1.0 op_sel_hi:[1,0]")
    for i in range(48):
        a(f"v_rcp_f32 v{T+i}, v{T+i}")
    for i in range(0, 48, 2):
        a(f"v_pk_mul_f32 v[{T+i}:{T+i+1}], v[{T+i}:{T+i+1}], v[{G+i}:{G+i+1}]")
    for i in range(0, 48, 2):
        a(f"v_cvt_pk_bf16_f32 v{T+i}, v{T+i}, v{T+i+1}")
    for i in range(0, 48, 2):
        a(f"v_and_b32 v{T+i+1}, s47, v{T+i}")
        a(f"v_lshlrev_b32 v{T+i}, 16, v{T+i}")
    for i in range(0, 48, 2):
        a(f"v_pk_mul_f32 v[{T+i}:{T+i+1}], v[{T+i}:{T+i+1}], v[{U+i}:{U+i+1}]")
    PK = 160
    for rt in range(2):
        for tt in range(6):
            s = T + (tt * 2 + rt) * 4
            p = PK + rt * 12 + tt * 2
            a(f"v_cvt_pk_bf16_f32 v{p}, v{s}, v{s+1}")
            a(f"v_cvt_pk_bf16_f32 v{p+1}, v{s+2}, v{s+3}")
    a("s_lshr_b32 s57, s54, 4")
    a("s_mul_i32 s57, s57, 43")
    a("s_mul_i32 s58, s32, 3")
    a("s_add_u32 s57, s57, s58")
    a("s_lshl_b32 s57, s57, 10")
    a(f"s_add_u32 s57, s57, {WS_HH}")
    a("s_add_u32 s58, s57, 43*1024")
    for i in range(3):
        if i == 1:
            a("s_cmp_eq_u32 s32, 14")
            a("s_cbranch_scc1 P3_ST")
        for rt in range(2):
            p = PK + rt * 12 + i * 4
            a(f"buffer_store_dwordx4 v[{p}:{p+3}], v{V16}, s[40:43], s{57+rt} offen offset:{i*1024} sc1")
    a.lab("P3_ST")
    a.stamp(5)
    a("s_waitcnt vmcnt(0)")
    a("s_barrier")
    a("s_cmp_lg_u32 s3, 0")
    a("s_cbranch_scc1 P3_END")
    a("v_mov_b32 v13, 1")
    a("v_mov_b32 v12, 0")
    a("s_lshl_b32 s48, s33, 8")
    a("s_lshl_b32 s49, s32, 4")
    a("s_add_u32 s49, s49, s48")
    a(f"s_add_u32 s49, s49, {WS_FLG + F_G4}")
    a("s_mov_b64 exec, 1")
    a("buffer_store_dword v13, v12, s[40:43], s49 offen sc1")
    a("s_mov_b64 exec, -1")
    a.lab("P3_END")
    a.stamp(6)


def p4(a):
    a("s_load_dwordx2 s[8:9], s[0:1], 80")
    a("s_lshl_b32 s54, s6, 6")
    a("s_lshl_b32 s55, s3, 4")
    a("s_add_u32 s54, s54, s55")
    a("s_lshr_b32 s55, s54, 4")
    a("s_mul_i32 s55, s55, 43*1024")
    a(f"s_add_u32 s55, s55, {WS_HH}")
    HB = 64
    a.vq = []
    a.lq = []
    wo_addr(a)
    VT = [[VWO[t], 32 + 2 * t, 33 + 2 * t] for t in range(4)]
    for t in range(4):
        a(f"v_add_u32 v{VT[t][1]}, 0x10000, v{VWO[t]}")
        a(f"v_add_u32 v{VT[t][2]}, 0x20000, v{VWO[t]}")
    ACC = 16
    a("s_waitcnt lgkmcnt(0)")
    srd(a, 12, 8, 0, 2048 * 1024)
    a("s_lshr_b32 s48, s6, 1")
    a("s_lshl_b32 s48, s48, 8")
    a(f"s_add_u32 s48, s48, {WS_FLG + F_G4}")
    a.stamp(7)
    poll(a, "G4", 15, V16, 48, presleep=0)
    a("s_waitcnt vmcnt(0)")
    a("s_barrier")
    a.stamp(8)

    def hload(c):
        L = []
        if c > 42:
            return L
        b = HB + 4 * c
        if c % 4 == 0:
            L.append(f"s_add_u32 s58, s55, {(c>>2)*4096}")
        L.append(('v', ("H", c), f"buffer_load_dwordx4 v[{b}:{b+3}], v{V16}, s[40:43], s58 offen offset:{(c&3)*1024}"))
        return L
    NH1 = int(os.environ.get("NH1", "14"))
    for c in range(NH1):
        for x in hload(c):
            a.emit(x)

    def a_reads(c):
        if c > 42:
            return []
        L = []
        f = (c % 3) * 16
        for t in range(4):
            off = d_addr(c)
            r = f + 4 * t
            L.append(('l', ("w", c), f"ds_read_b64_tr_b16 a[{r}:{r+1}], v{VT[t][off >> 16]} offset:{off & 0xffff}"))
            L.append(('l', ("w", c), f"ds_read_b64_tr_b16 a[{r+2}:{r+3}], v{VT[t][off >> 16]} offset:{(off & 0xffff) + 2048}"))
        return L

    def mfmas(c):
        L = []
        f = (c % 3) * 16
        b = HB + 4 * c
        for t in range(4):
            d = ACC + 4 * t
            cc = "0" if c == 0 else f"v[{d}:{d+3}]"
            L.append(f"v_mfma_f32_16x16x32_bf16 v[{d}:{d+3}], a[{f+4*t}:{f+4*t+3}], v[{b}:{b+3}], {cc}")
        return L
    for it in a_reads(0) + a_reads(1):
        a.emit(it)
    a.stamp(9)
    for c in range(43):
        extra = []
        if c == 4:
            a("s_barrier")
            for d in range(39, 43):
                extra += p4_dma(d)
        if c == 36:
            a.wv(("E", 42))
            a("s_barrier")
        a.wv(("H", c))
        a.wl(("w", c))
        a.inter(mfmas(c), hload(c + NH1) + a_reads(c + 2) + extra)
    a.stamp(10)
    XR, GB = 40, 48
    a(f"v_lshlrev_b32 v37, 4, v{VG}")
    a(f"v_add_u32 v37, {L_GB}, v37")
    a("s_lshl_b32 s56, s54, 10")
    a("s_lshl_b32 s57, s7, 7")
    a("s_add_u32 s56, s56, s57")
    for t in range(4):
        a(f"ds_read_b128 v[{GB+4*t}:{GB+4*t+3}], v37 offset:{t*64}")
    for i in range(8):
        a(f"v_accvgpr_read_b32 v{XR+i}, a{248+i}")
    for t in range(4):
        d = ACC + 4 * t
        a(f"v_cvt_pk_bf16_f32 v{d}, v{d}, v{d+1}")
        a(f"v_cvt_pk_bf16_f32 v{d+2}, v{d+2}, v{d+3}")
    for t in range(4):
        d = ACC + 4 * t
        a(f"v_and_b32 v{d+1}, 0xffff0000, v{d}")
        a(f"v_lshlrev_b32 v{d}, 16, v{d}")
        a(f"v_and_b32 v{d+3}, 0xffff0000, v{d+2}")
        a(f"v_lshlrev_b32 v{d+2}, 16, v{d+2}")
    a("s_waitcnt lgkmcnt(0)")
    for i in range(16):
        a(f"v_mul_f32 v{ACC+i}, v{ACC+i}, v{GB+i}")
    for t in range(4):
        d = ACC + 4 * t
        a(f"v_cvt_pk_bf16_f32 v{d}, v{d}, v{d+1}")
        a(f"v_cvt_pk_bf16_f32 v{d+2}, v{d+2}, v{d+3}")
    for t in range(4):
        d = ACC + 4 * t
        a(f"v_and_b32 v{d+1}, 0xffff0000, v{d}")
        a(f"v_lshlrev_b32 v{d}, 16, v{d}")
        a(f"v_and_b32 v{d+3}, 0xffff0000, v{d+2}")
        a(f"v_lshlrev_b32 v{d+2}, 16, v{d+2}")
    X = 64
    for t in range(4):
        for d in range(2):
            a(f"v_lshlrev_b32 v{X+4*t+2*d}, 16, v{XR+2*t+d}")
            a(f"v_and_b32 v{X+4*t+2*d+1}, 0xffff0000, v{XR+2*t+d}")
    for i in range(16):
        a(f"v_add_f32 v{X+i}, v{X+i}, v{ACC+i}")
    PK = 80
    for t in range(4):
        a(f"v_cvt_pk_bf16_f32 v{PK+2*t}, v{X+4*t}, v{X+4*t+1}")
        a(f"v_cvt_pk_bf16_f32 v{PK+2*t+1}, v{X+4*t+2}, v{X+4*t+3}")
    a(f"v_and_b32 v92, 1, v{VG}")
    a(f"v_lshrrev_b32 v93, 1, v{VG}")
    a(f"v_lshlrev_b32 v94, 10, v{VM_}")
    a("v_lshl_add_u32 v94, v92, 5, v94")
    a("v_lshl_add_u32 v94, v93, 4, v94")
    a(f"v_permlane16_swap_b32 v{PK}, v{PK+2}")
    a(f"v_permlane16_swap_b32 v{PK+1}, v{PK+3}")
    a(f"v_permlane16_swap_b32 v{PK+4}, v{PK+6}")
    a(f"v_permlane16_swap_b32 v{PK+5}, v{PK+7}")
    a.nop(1)
    a(f"buffer_store_dwordx4 v[{PK}:{PK+3}], v94, s[12:15], s56 offen")
    a(f"buffer_store_dwordx4 v[{PK+4}:{PK+7}], v94, s[12:15], s56 offen offset:64")
    a.stamp(11)
```

```python
import sys, os, re
import gen_common
from gen_common import *
from k1v2 import reduce4_groups, bcast4_groups
import mk2
from mk2 import M, VL, VG, VRR, VQ, VM_, V16, wave_id, rl_issue, rl_finish, WS_O, WS_FLG, F_B1, F_G2, F_G3, F_G4, \
    WS_ST2, SPIN_MAX, poll, mod_table, mod_table_fin

L_WQ = 0
L_H = 65536
L_TAB = 159744
L_GA, L_GB, L_A2, L_AS = L_TAB, L_TAB + 256, L_TAB + 512, L_TAB + 2048
WS_AS = 0x50000
F_G5 = 45056
VD = [60, 61, 62]
L_GV = 131072
L_PK = 131072
LDS_TOTAL = 163840

NB1 = int(os.environ.get("NB1", "6"))
PF = int(os.environ.get("PF", "0"))
NO1 = int(os.environ.get("NO1", "16"))
NWO1 = int(os.environ.get("NWO1", "48"))

XF = 64
XB = 192
ACC = 192
HFA = 192
PH = 64


FS = int(os.environ.get("FS", "0"))
_orig_stamp = M.stamp


def fs(a, i):
    if FS:
        _orig_stamp(a, i)


if FS:
    def _st(self, i):
        if i == 0 or getattr(self, "late", 0):
            _orig_stamp(self, i)
        elif i in (2, 3, 4, 5, 6, 7):
            _orig_stamp(self, i + 6)
    M.stamp = _st


def dma_items():
    L = []
    for h in range(2):
        for i in range(16 * h, 16 * h + 16):
            c, seg = i >> 1, 1 + (i & 1)
            L.append([f"s_add_u32 m0, s49, {i*4096}",
                      f"s_add_u32 s50, s48, {c*98304 + seg*1024}",
                      "buffer_load_dwordx4 v9, s[24:27], s50 offen lds"])
        for j in range(6):
            it = [f"s_add_u32 s52, s3, {16*h + 3*j}"]
            if j == 5:
                it.append(f"s_min_u32 s52, s52, {16*h + 15}")
            it += ["s_lshr_b32 s53, s52, 1",
                   "s_mul_i32 s53, s53, 98304",
                   "s_and_b32 s50, s52, 1",
                   "s_lshl_b32 s50, s50, 10",
                   "s_add_u32 s50, s50, s53",
                   "s_lshl_b32 s52, s52, 12",
                   "s_add_u32 m0, s52, 3072",
                   "s_add_u32 s50, s50, s51",
                   "buffer_load_dwordx4 v6, s[24:27], s50 offen lds"]
            L.append(it)
    return L


def weave(a, code, items):
    n, k = len(code), len(items)
    ii = 0
    for i, c in enumerate(code):
        a.emit(c)
        tgt = (k * (i + 1)) // n
        while ii < tgt:
            for x in items[ii]:
                a.emit(x)
            ii += 1
    while ii < k:
        for x in items[ii]:
            a.emit(x)
        ii += 1


def stats_code():
    L = []

    def sreg(kind, r):
        return 16 + (r >> 3) * 16 + ((r >> 2) & 1) * 8 + kind * 4 + (r & 3)
    for r0 in range(0, 16, 2):
        for d in range(4):
            for r in (r0, r0 + 1):
                x = XB + 4 * r + d
                c0 = "0" if d == 0 else f"v{sreg(0, r)}"
                c1 = "0" if d == 0 else f"v{sreg(1, r)}"
                L.append(f"v_dot2_f32_bf16 v{sreg(0, r)}, v{x}, s46, {c0}")
                L.append(f"v_dot2_f32_bf16 v{sreg(1, r)}, v{x}, v{x}, {c1}")
    fill = []
    for r in range(16):
        for d in range(4):
            fill.append(f"v_lshlrev_b32 v{XF+8*r+2*d}, 16, v{XB+4*r+d}")
            fill.append(f"v_and_b32 v{XF+8*r+2*d+1}, 0xffff0000, v{XB+4*r+d}")

    def F(n):
        for _ in range(n):
            if fill:
                L.append(fill.pop(0))
    F(4)
    for i in range(16):
        L.append(f"v_permlane32_swap_b32 v{16+i}, v{32+i}")
    F(2)
    for i in range(16):
        L.append(f"v_add_f32 v{16+i}, v{16+i}, v{32+i}")
    F(2)
    for i in range(8):
        L.append(f"v_permlane16_swap_b32 v{16+i}, v{24+i}")
    F(2)
    for i in range(8):
        L.append(f"v_add_f32 v{16+i}, v{16+i}, v{24+i}")
    F(2)
    for ror in (8, 4, 2, 1):
        for i in range(8):
            L.append(f"v_add_f32_dpp v{16+i}, v{16+i}, v{16+i} row_ror:{ror} row_mask:0xf bank_mask:0xf")
        F(2)
    for j in range(4):
        L.append(f"v_mul_f32 v{16+j}, 0x3b000000, v{16+j}")
        L.append(f"v_mul_f32 v{20+j}, 0x3b000000, v{20+j}")
    for j in range(4):
        L.append(f"v_fma_f32 v{20+j}, -v{16+j}, v{16+j}, v{20+j}")
    for j in range(4):
        L.append(f"v_max_f32 v{20+j}, 0, v{20+j}")
    for j in range(4):
        L.append(f"v_add_f32 v{20+j}, 0x3727c5ac, v{20+j}")
    for j in range(4):
        L.append(f"v_rsq_f32 v{20+j}, v{20+j}")
    F(2)
    for j in range(4):
        L.append(f"v_mul_f32 v{16+j}, v{16+j}, v{20+j}")
    for j in range(4):
        L.append(f"v_sub_f32 v{16+j}, 0, v{16+j}")
    F(1000)
    return L


def front(a):
    a.stamp(0)
    a("s_load_dwordx2 s[4:5], s[0:1], 96")
    a("s_load_dwordx2 s[8:9], s[0:1], 0")
    a("s_load_dwordx2 s[10:11], s[0:1], 8")
    a("s_load_dwordx2 s[12:13], s[0:1], 64")
    a("s_load_dwordx2 s[14:15], s[0:1], 72")
    a("s_load_dwordx2 s[16:17], s[0:1], 88")
    a("s_load_dwordx2 s[18:19], s[0:1], 16")
    wave_id(a, 3)
    a("s_and_b32 s48, s2, 7")
    a("s_lshr_b32 s49, s2, 3")
    a("s_lshl_b32 s6, s48, 2")
    a("s_lshr_b32 s50, s49, 3")
    a("s_add_u32 s6, s6, s50")
    a("s_and_b32 s7, s49, 7")
    lane_decode(a, VL, VG, VRR, VQ, VM_)
    a(f"v_lshlrev_b32 v{V16}, 4, v{VL}")
    a(f"v_lshrrev_b32 v9, 3, v{VL}")
    a(f"v_and_b32 v10, 7, v{VL}")
    a("v_and_b32 v11, 3, v9")
    a("v_mul_u32_u24 v9, 3072, v9")
    a("v_xor_b32 v12, 1, v11")
    a("v_lshlrev_b32 v12, 1, v12")
    a("v_xor_b32 v12, v12, v10")
    a("v_lshl_add_u32 v6, v12, 4, v9")
    a("s_and_b32 s50, s3, 1")
    a("v_xor_b32 v12, s50, v11")
    a("v_lshlrev_b32 v12, 1, v12")
    a("v_xor_b32 v12, v12, v10")
    a("v_lshl_add_u32 v9, v12, 4, v9")
    a("s_and_b32 s46, s2, 3")
    a("s_lshr_b32 s47, s2, 2")
    a("v_and_b32 v10, 7, v0")
    a("v_lshrrev_b32 v11, 3, v0")
    a("v_mul_u32_u24 v12, 6144, v11")
    a("v_lshl_add_u32 v12, v10, 4, v12")
    a("v_lshlrev_b32 v13, 1, v11")
    a("s_mul_i32 s52, s46, 128*6144")
    a("s_lshl_b32 s53, s47, 7")
    a("s_add_u32 s52, s52, s53")
    a("s_lshl_b32 s53, s46, 8")
    a("s_lshl_b32 s54, s6, 6")
    a("s_lshl_b32 s55, s3, 4")
    a("s_add_u32 s54, s54, s55")
    a("s_lshl_b32 s54, s54, 10")
    a("s_mul_i32 s48, s3, 8*3072")
    a("s_lshl_b32 s49, s7, 7")
    a("s_add_u32 s48, s48, s49")
    a("s_lshl_b32 s49, s3, 10")
    a("s_lshl_b32 s51, s7, 7")
    a(f"s_add_u32 s51, s51, {24*3072 + 1024}")
    a("s_waitcnt lgkmcnt(0)")
    srd(a, 32, 14, 0, 512 * 6144)
    srd(a, 28, 12, 0, 1024)
    a("s_cmp_ge_u32 s2, 192")
    a("s_cbranch_scc1 F_L1")
    for i in range(4):
        a(f"buffer_load_ushort v{16+i}, v13, s[28:31], s53 offen offset:{i*64}")
    for i in range(4):
        a(f"s_add_u32 s55, s52, {i*32*6144}")
        a(f"buffer_load_dwordx4 v[{24+4*i}:{27+4*i}], v12, s[32:35], s55 offen")
    a.lab("F_L1")
    srd(a, 20, 8, 0, 2048 * 1024)
    for r in range(16):
        if r % 4 == 0 and r:
            a("s_add_u32 s54, s54, 4096")
        a(f"buffer_load_dwordx4 v[{XB+4*r}:{XB+4*r+3}], v{V16}, s[20:23], s54 offen offset:{(r&3)*1024}")
    fs(a, 1)
    srd(a, 24, 10, 0, 512 * 3072)
    srd(a, 40, 4, 0, 32 << 20)
    srd(a, 36, 16, 0, 256)
    srd(a, 28, 18, 0, 32 * 512)
    a("s_cmp_eq_u32 s3, 3")
    a("s_cbranch_scc1 F_W3A")
    DI = dma_items()
    for it in DI[:NB1]:
        for x in it:
            a(x)
    fs(a, 2)
    a("s_cmp_ge_u32 s2, 192")
    a("s_cbranch_scc1 F_REST")
    a(f"s_waitcnt vmcnt({16+NB1})")
    a("s_branch F_GV2")
    a.lab("F_W3A")
    a("s_cmp_ge_u32 s2, 192")
    a("s_cbranch_scc1 F_W3D")
    a("s_cmp_ge_u32 s2, 64")
    a("s_cbranch_scc1 F_W3B")
    for i in range(4):
        a(f"v_mov_b32 v{48+i}, 0")
    a("s_mul_i32 s54, s2, 1088")
    a(f"s_add_u32 s54, s54, {WS_KV}")
    a(f"buffer_store_dwordx4 v[48:51], v{V16}, s[40:43], s54 offen sc1")
    a("s_lshl_b32 s55, s2, 10")
    a(f"s_add_u32 s55, s55, {WS_FLG}")
    a(f"buffer_store_dwordx4 v[48:51], v{V16}, s[40:43], s55 offen sc1")
    a("s_mov_b64 exec, 15")
    a(f"buffer_store_dwordx4 v[48:51], v{V16}, s[40:43], s54 offen offset:1024 sc1")
    a("s_mov_b64 exec, -1")
    a.lab("F_W3B")
    a("s_waitcnt vmcnt(16)")
    a.lab("F_GV2")
    fs(a, 3)
    for j in range(8):
        a(f"v_mov_b32 v{40+j}, 0")
    for i in range(4):
        a(f"v_lshlrev_b32 v{16+i}, 16, v{16+i}")
    for i in range(4):
        a(f"v_mul_f32 v{20+i}, 0xbfb8aa3b, v{16+i}")
    for i in range(4):
        a(f"v_exp_f32 v{20+i}, v{20+i}")
    a.nop(1)
    for i in range(4):
        a(f"v_add_f32 v{20+i}, 1.0, v{20+i}")
    for i in range(4):
        a(f"v_rcp_f32 v{20+i}, v{20+i}")
    a.nop(1)
    for i in range(4):
        a(f"v_mul_f32 v{16+i}, v{16+i}, v{20+i}")
    for i in range(4):
        a(f"v_cvt_pk_bf16_f32 v{16+i}, v{16+i}, v{16+i}")
    for i in range(4):
        a(f"v_lshlrev_b32 v{16+i}, 16, v{16+i}")
    for i in range(4):
        for d in range(4):
            w = 24 + 4 * i + d
            a(f"v_lshlrev_b32 v20, 16, v{w}")
            a(f"v_and_b32 v21, 0xffff0000, v{w}")
            a(f"v_fmac_f32 v{40+2*d}, v{16+i}, v20")
            a(f"v_fmac_f32 v{41+2*d}, v{16+i}, v21")
    a("v_lshlrev_b32 v12, 8, v11")
    a("v_lshl_add_u32 v12, v10, 5, v12")
    a(f"v_add_u32 v12, {L_GV}, v12")
    a("ds_write_b128 v12, v[40:43]")
    a("ds_write_b128 v12, v[44:47] offset:16")
    a("s_waitcnt lgkmcnt(0)")
    a("s_barrier")
    fs(a, 4)
    a("s_cmp_lg_u32 s3, 3")
    a("s_cbranch_scc1 F_REST")
    a(f"v_lshlrev_b32 v12, 2, v{VL}")
    a(f"v_add_u32 v13, {L_GV}, v12")
    for r in range(32):
        a(f"ds_read_b32 v{16+r}, v13 offset:{r*256}")
    a("s_waitcnt lgkmcnt(0)")
    for st in (16, 8, 4, 2, 1):
        for r in range(st):
            a(f"v_add_f32 v{16+r}, v{16+r}, v{16+r+st}")
    a("s_mul_i32 s54, s46, 3072*4")
    a("s_lshl_b32 s55, s47, 8")
    a("s_add_u32 s54, s54, s55")
    a("s_waitcnt vmcnt(0)")
    a(f"buffer_store_dword v16, v12, s[40:43], s54 offen sc1")
    a("s_cmp_ge_u32 s2, 64")
    a("s_cbranch_scc1 F_W3C")
    a("s_waitcnt vmcnt(0)")
    a("v_mov_b32 v16, 1")
    a("v_mov_b32 v17, 0")
    a("s_lshl_b32 s54, s2, 2")
    a("s_mov_b64 exec, 1")
    a("buffer_store_dword v16, v17, s[36:39], s54 offen sc1")
    a("s_mov_b64 exec, -1")
    a("s_branch F_W3C")
    a.lab("F_REST")
    a("s_mov_b32 s46, 0x3f803f80")
    a(f"s_waitcnt vmcnt({NB1})")
    fs(a, 5)
    weave(a, stats_code(), DI[NB1:])
    a("s_branch F_J")
    a.lab("F_W3D")
    a("s_waitcnt vmcnt(0)")
    a.lab("F_W3C")
    a("s_mov_b32 s46, 0x3f803f80")
    fs(a, 5)
    weave(a, stats_code(), [])
    a.lab("F_J")
    fs(a, 6)
    a.stamp(1)
    a.vq = []
    a(f"v_lshlrev_b32 v12, 7, v{VG}")
    a(f"v_lshl_add_u32 v12, v{VM_}, 1, v12")
    a("s_lshl_b32 s44, s7, 2")
    a("s_add_u32 s44, s44, s3")
    a("s_lshl_b32 s44, s44, 9")
    for j in range(4):
        a.vm("P", f"buffer_load_ushort v{56+j}, v12, s[28:31], s44 offen offset:{j*32}")
    a("s_mov_b32 s44, s48")
    if PF:
        a("s_load_dwordx2 s[8:9], s[0:1], 24")
        a(f"v_mul_u32_u24 v12, 3072, v{VL}")
        a("s_mul_i32 s48, s3, 128*3072")
        a("s_lshl_b32 s49, s7, 7")
        a("s_add_u32 s48, s48, s49")
        a.vm("PF", "buffer_load_dword v60, v12, s[24:27], s48 offen")
        a("s_add_u32 s48, s48, 64*3072")
        a.vm("PF", "buffer_load_dword v61, v12, s[24:27], s48 offen")
        a(f"v_lshlrev_b32 v12, 10, v{VL}")
        a("s_lshl_b32 s48, s3, 17")
        a("s_add_u32 s48, s48, s49")
        a("s_waitcnt lgkmcnt(0)")
        srd(a, 32, 8, 0, 512 * 1024)
        a.vm("PF", "buffer_load_dword v62, v12, s[32:35], s48 offen")
        a("s_add_u32 s48, s48, 65536")
        a.vm("PF", "buffer_load_dword v63, v12, s[32:35], s48 offen")

    a.stamp(2)

    def norm_row(r):
        f = XF + 8 * r
        sp = 8 + 2 * (r & 3)
        nm = 24 + 2 * (r & 1)
        L = [f"v_readlane_b32 s{sp}, v{20+(r&3)}, {16*(r>>2)}",
             f"v_readlane_b32 s{sp+1}, v{16+(r&3)}, {16*(r>>2)}",
             f"v_mov_b32 v{nm}, s{sp+1}"]
        for d in range(4):
            L.append(f"v_pk_fma_f32 v[{f+2*d}:{f+2*d+1}], v[{f+2*d}:{f+2*d+1}], s[{sp}:{sp+1}], v[{nm}:{nm+1}] op_sel_hi:[1,0,0]")
        for d in range(4):
            L.append(f"v_cvt_pk_bf16_f32 v{f+2*d}, v{f+2*d}, v{f+2*d+1}")
        for d in range(4):
            L.append(f"v_and_b32 v{f+2*d+1}, 0xffff0000, v{f+2*d}")
            L.append(f"v_lshlrev_b32 v{f+2*d}, 16, v{f+2*d}")
        return L
    a(f"v_lshlrev_b32 v11, 10, v{VG}")
    a(f"v_lshl_add_u32 v11, v{VRR}, 7, v11")
    a(f"v_lshl_add_u32 v11, v{VQ}, 3, v11")
    a(f"v_and_b32 v12, 1, v{VG}")
    a(f"v_xor_b32 v12, v12, v{VRR}")
    a("v_xor_b32 v12, s3, v12")
    a("v_lshl_add_u32 v7, v12, 5, v11")
    a(f"v_add_u32 v12, {L_H}, v7")
    a(f"s_waitcnt vmcnt({26 + 4*PF})")
    a("s_barrier")
    a.stamp(3)
    for h in range(2):
        tr = []
        for i in range(16 * h, 16 * h + 16):
            c, seg = i >> 1, 1 + (i & 1)
            u = 3 * c + seg
            v, off = (7, i * 4096) if i < 16 else (12, (i - 16) * 4096)
            tr.append(f"ds_read_b64_tr_b16 a[{4*u}:{4*u+1}], v{v} offset:{off}")
            tr.append(f"ds_read_b64_tr_b16 a[{4*u+2}:{4*u+3}], v{v} offset:{off+512}")
        oth = []
        for r in range(8 * h, 8 * h + 8):
            oth += norm_row(r)
        a.inter(tr, oth)
        if h == 0:
            a(f"s_waitcnt vmcnt({4 + 4*PF})")
            a("s_barrier")
            a.stamp(4)
    a.lq = []
    a.vq = []
    a.stamp(5)
    a("s_load_dwordx2 s[8:9], s[0:1], 24")
    a("s_cmp_lg_u32 s3, 0")
    a("s_cbranch_scc1 F_PW")
    a(f"v_lshlrev_b32 v12, 2, v{VL}")
    a("s_mov_b32 s48, 0")
    a.lab("F_PP")
    a("buffer_load_dword v13, v12, s[36:39], 0 offen sc1")
    a("s_add_u32 s48, s48, 1")
    a(f"s_cmp_gt_u32 s48, {SPIN_MAX}")
    a("s_cbranch_scc1 F_PW")
    a("s_waitcnt vmcnt(0)")
    a("v_cmp_ne_u32 vcc, 1, v13")
    a("s_cbranch_vccz F_PW")
    a("s_sleep 4")
    a("s_branch F_PP")
    a.lab("F_PW")
    a(f"v_lshlrev_b32 v12, 5, v{VL}")
    a("s_waitcnt vmcnt(0) lgkmcnt(0)")
    a("v_lshl_or_b32 v14, v57, 16, v56")
    a("v_lshl_or_b32 v15, v59, 16, v58")
    a("s_barrier")
    a.stamp(7)


def softmax4(a, SRC, OUT, P=144):
    WPH = 14
    QB = 32
    for t in range(4):
        d = SRC + t * 4
        a(f"v_cvt_pk_bf16_f32 v{QB+2*t}, v{d}, v{d+1}")
        a(f"v_cvt_pk_bf16_f32 v{QB+2*t+1}, v{d+2}, v{d+3}")
    a.nop(1)
    for t in range(4):
        a(f"v_mfma_f32_16x16x16_bf16 v[{P+4*t}:{P+4*t+3}], v[{WPH}:{WPH+1}], v[{QB+2*t}:{QB+2*t+1}], 0")
    yield 0
    a.nop(6)
    for t in range(4):
        p = P + 4 * t
        a(f"v_cvt_pk_bf16_f32 v{p}, v{p}, v{p+1}")
        a(f"v_cvt_pk_bf16_f32 v{p+2}, v{p+2}, v{p+3}")
    for t in range(4):
        p = P + 4 * t
        a(f"v_and_b32 v{p+1}, 0xffff0000, v{p}")
        a(f"v_lshlrev_b32 v{p}, 16, v{p}")
        a(f"v_and_b32 v{p+3}, 0xffff0000, v{p+2}")
        a(f"v_lshlrev_b32 v{p+2}, 16, v{p+2}")
    MX = [80 + 2 * t for t in range(4)]
    MN = [88 + 2 * t for t in range(4)]
    for t in range(4):
        p = P + 4 * t
        a(f"v_max3_f32 v{MX[t]}, v{p}, v{p+1}, v{p+2}")
        a(f"v_min3_f32 v{MN[t]}, v{p}, v{p+1}, v{p+2}")
    for t in range(4):
        p = P + 4 * t
        a(f"v_max_f32 v{MX[t]}, v{MX[t]}, v{p+3}")
        a(f"v_min_f32 v{MN[t]}, v{MN[t]}, v{p+3}")
    gx = [tuple(MX)]
    gn = [tuple(MN)]
    a.nop(1)
    for X, Y, U, W in gx + gn:
        a(f"v_permlane16_swap_b32 v{X}, v{Y}")
        a(f"v_permlane16_swap_b32 v{U}, v{W}")
    a.nop(1)
    for grp, op in ((gx, "v_max_f32"), (gn, "v_min_f32")):
        for X, Y, U, W in grp:
            a(f"{op} v{X}, v{X}, v{Y}")
            a(f"{op} v{U}, v{U}, v{W}")
    a.nop(1)
    for X, Y, U, W in gx + gn:
        a(f"v_permlane32_swap_b32 v{X}, v{U}")
    a.nop(1)
    for grp, op in ((gx, "v_max_f32"), (gn, "v_min_f32")):
        for X, Y, U, W in grp:
            a(f"{op} v{X}, v{X}, v{U}")
    a(f"s_mov_b32 s60, 0x{LOG2E:x}")
    a(f"s_mov_b32 s61, 0x{LOG2E:x}")
    for X, Y, U, W in gx + gn:
        a(f"v_mul_f32 v{X}, s60, v{X}")
    bcast4_groups(a, gx + gn)
    E = 96
    for t in range(4):
        p = P + 4 * t
        e = E + 8 * t
        for r in (0, 2):
            a(f"v_pk_fma_f32 v[{e+r}:{e+r+1}], v[{p+r}:{p+r+1}], s[60:61], v[{MX[t]}:{MX[t]+1}] op_sel_hi:[1,1,0] neg_lo:[0,0,1] neg_hi:[0,0,1]")
            a(f"v_pk_fma_f32 v[{e+4+r}:{e+5+r}], v[{p+r}:{p+r+1}], s[60:61], v[{MN[t]}:{MN[t]+1}] op_sel_hi:[1,1,0] neg_lo:[1,0,0] neg_hi:[1,0,0]")
    SP, SN = MX, MN
    T2 = 128
    for t in range(4):
        e = E + 8 * t
        for r in range(8):
            a(f"v_exp_f32 v{e+r}, v{e+r}")
        if t > 0:
            e2 = E + 8 * (t - 1)
            a(f"v_pk_add_f32 v[{T2+4*(t-1)}:{T2+4*(t-1)+1}], v[{e2}:{e2+1}], v[{e2+2}:{e2+3}]")
            a(f"v_pk_add_f32 v[{T2+4*(t-1)+2}:{T2+4*(t-1)+3}], v[{e2+4}:{e2+5}], v[{e2+6}:{e2+7}]")
    yield 1
    a.nop(1)
    e2 = E + 8 * 3
    a(f"v_pk_add_f32 v[{T2+12}:{T2+13}], v[{e2}:{e2+1}], v[{e2+2}:{e2+3}]")
    a(f"v_pk_add_f32 v[{T2+14}:{T2+15}], v[{e2+4}:{e2+5}], v[{e2+6}:{e2+7}]")
    for t in range(4):
        a(f"v_add_f32 v{SP[t]}, v{T2+4*t}, v{T2+4*t+1}")
        a(f"v_add_f32 v{SN[t]}, v{T2+4*t+2}, v{T2+4*t+3}")
    reduce4_groups(a, gx + gn, "v_add_f32")
    for X, Y, U, W in gx + gn:
        a(f"v_rcp_f32 v{X}, v{X}")
    a.nop(1)
    bcast4_groups(a, gx + gn)
    for t in range(4):
        e = E + 8 * t
        for r in (0, 2):
            a(f"v_pk_mul_f32 v[{e+r}:{e+r+1}], v[{e+r}:{e+r+1}], v[{SP[t]}:{SP[t]+1}] op_sel_hi:[1,0]")
            a(f"v_pk_mul_f32 v[{e+4+r}:{e+5+r}], v[{e+4+r}:{e+5+r}], v[{SN[t]}:{SN[t]+1}] op_sel_hi:[1,0]")
    for t in range(4):
        e = E + 8 * t
        for d in range(4):
            a(f"v_cvt_pk_bf16_f32 v{OUT+4*t+d}, v{e+2*d}, v{e+2*d+1}")
        yield 2 + t


def p1(a):
    T = 192
    for p in range(4):
        a(f"s_mov_b32 s48, {p*3072*4}")
        for k, off in enumerate((0, 16, 2048, 2064)):
            r = T + p * 16 + 4 * k
            a(f"buffer_load_dwordx4 v[{r}:{r+3}], v12, s[40:43], s48 offen offset:{off}")
    VHW, VHA, VHB = 10, 11, 13
    a(f"v_and_b32 v13, 7, v{VL}")
    a("s_lshl_b32 s48, s3, 14")
    a(f"s_add_u32 s48, s48, {L_H}")
    a(f"v_lshlrev_b32 v{VHW}, 8, v{VL}")
    a(f"v_lshl_add_u32 v{VHW}, v13, 4, v{VHW}")
    a(f"v_add_u32 v{VHW}, s48, v{VHW}")
    a(f"v_xor_b32 v{VHA}, v{VM_}, v{VG}")
    a(f"v_lshlrev_b32 v{VHA}, 4, v{VHA}")
    a(f"v_lshl_add_u32 v{VHA}, v{VG}, 8, v{VHA}")
    a(f"v_add_u32 v{VHA}, {L_H}, v{VHA}")
    a(f"v_xor_b32 v{VHB}, 64, v{VHA}")
    a("s_lshl_b32 s49, s3, 10")
    p3_setup(a)
    a("s_waitcnt vmcnt(0)")
    for i in range(0, 16, 2):
        a(f"v_pk_add_f32 v[{T+i}:{T+i+1}], v[{T+i}:{T+i+1}], v[{T+16+i}:{T+16+i+1}]")
        a(f"v_pk_add_f32 v[{T+32+i}:{T+32+i+1}], v[{T+32+i}:{T+32+i+1}], v[{T+48+i}:{T+48+i+1}]")
    for i in range(0, 16, 2):
        a(f"v_pk_add_f32 v[{T+i}:{T+i+1}], v[{T+i}:{T+i+1}], v[{T+32+i}:{T+32+i+1}]")
    SA, AA = 24, 16
    for i in range(0, 16, 2):
        a(f"v_cvt_pk_bf16_f32 v{T+i}, v{T+i}, v{T+i+1}")
    for i in range(0, 8, 2):
        a(f"v_lshlrev_b32 v{SA+i}, 16, v{T+i}")
        a(f"v_and_b32 v{SA+i+1}, 0xffff0000, v{T+i}")
        a(f"v_lshlrev_b32 v{AA+i}, 16, v{T+8+i}")
        a(f"v_and_b32 v{AA+i+1}, 0xffff0000, v{T+8+i}")
    for i in range(0, 8, 2):
        a(f"v_pk_add_f32 v[{AA+i}:{AA+i+1}], v[{AA+i}:{AA+i+1}], 1.0 op_sel_hi:[1,0]")
    for i in range(0, 8, 2):
        a(f"v_cvt_pk_bf16_f32 v{AA+i}, v{AA+i}, v{AA+i+1}")
    for i in range(0, 8, 2):
        a(f"v_and_b32 v{AA+i+1}, 0xffff0000, v{AA+i}")
        a(f"v_lshlrev_b32 v{AA+i}, 16, v{AA+i}")
    a.stamp(8)
    for r in range(16):
        f = XF + 8 * r
        t = 32 + (r & 1) * 8
        va = 48 + (r & 1)
        for e in range(0, 8, 2):
            a(f"v_pk_fma_f32 v[{t+e}:{t+e+1}], v[{f+e}:{f+e+1}], v[{AA+e}:{AA+e+1}], v[{SA+e}:{SA+e+1}]")
        a(f"v_xor_b32 v{va}, {(r&7)<<4}, v{VHW}")
        for d in range(4):
            a(f"v_cvt_pk_bf16_f32 v{t+d}, v{t+2*d}, v{t+2*d+1}")
        a(f"ds_write_b128 v{va}, v[{t}:{t+3}] offset:{(r>>3)*128}")
    a("s_waitcnt lgkmcnt(0)")
    a("s_barrier")
    a.stamp(9)
    a.lq = []

    def hreads(c, tag):
        if c > 15:
            return []
        L = []
        for rt in range(4):
            r = HFA + (c & 3) * 16 + rt * 4
            L.append(('l', (tag, c), f"ds_read_b128 a[{r}:{r+3}], v{VHB if c & 1 else VHA} offset:{(rt*16+c)*1024}"))
        return L

    def mfmas(c, segs):
        L = []
        for rt in range(4):
            b = HFA + (c & 3) * 16 + rt * 4
            for seg in segs:
                d = ACC + (seg * 4 + rt) * 4
                w = (c * 3 + seg) * 4
                cc = "0" if c == 0 else f"v[{d}:{d+3}]"
                if seg < 2:
                    L.append(f"v_mfma_f32_16x16x32_bf16 v[{d}:{d+3}], a[{w}:{w+3}], a[{b}:{b+3}], {cc}")
                else:
                    L.append(f"v_mfma_f32_16x16x32_bf16 v[{d}:{d+3}], a[{b}:{b+3}], a[{w}:{w+3}], {cc}")
        return L

    def gpass(tag, segs, extra):
        for it in hreads(0, tag) + hreads(1, tag) + hreads(2, tag):
            a.emit(it)
        for c in range(16):
            a.wl((tag, c))
            a.inter(mfmas(c, segs), hreads(c + 3, tag) + extra(c))

    def wq_dma(c):
        if c >= 8:
            return touch[c - 8] if TOUCH and c - 8 < len(touch) else []
        L = []
        for cc in (2 * c, 2 * c + 1):
            L += [f"s_add_u32 m0, s49, {L_WQ + cc*4096}",
                  f"s_add_u32 s50, s44, {cc*98304}",
                  "buffer_load_dwordx4 v9, s[24:27], s50 offen lds"]
        return L
    touch = touch_items(a) if TOUCH else []
    gpass("h", (1, 2), wq_dma)
    a.stamp(10)
    VB = 48
    PHK = 160
    a("s_lshl_b32 s57, s3, 12")
    a(f"s_add_u32 s57, s57, {L_PK}")
    a(f"v_lshlrev_b32 v12, 6, v{VM_}")
    a(f"v_lshl_add_u32 v12, v{VG}, 3, v12")
    a("v_add_u32 v12, s57, v12")
    a.nop(4)

    def wq_tr(lo, hi):
        for c in range(lo, hi):
            u = 3 * c
            a(f"ds_read_b64_tr_b16 a[{4*u}:{4*u+1}], v7 offset:{L_WQ + c*4096}")
            a(f"ds_read_b64_tr_b16 a[{4*u+2}:{4*u+3}], v7 offset:{L_WQ + c*4096+512}")
    for st in softmax4(a, ACC + 16, PHK):
        if st == 0:
            for rt in range(4):
                d = ACC + (8 + rt) * 4
                a(f"v_cvt_pk_bf16_f32 v{VB+2*rt}, v{d}, v{d+1}")
                a(f"v_cvt_pk_bf16_f32 v{VB+2*rt+1}, v{d+2}, v{d+3}")
        if st >= 2:
            t = st - 2
            a(f"ds_write_b64 v12, v[{PHK+4*t}:{PHK+4*t+1}] offset:{t*1024}")
            a(f"ds_write_b64 v12, v[{PHK+4*t+2}:{PHK+4*t+3}] offset:{t*1024+32}")
    a(f"v_lshlrev_b32 v12, 8, v{VG}")
    a(f"v_lshl_add_u32 v12, v{VRR}, 6, v12")
    a(f"v_lshl_add_u32 v12, v{VQ}, 3, v12")
    a("v_add_u32 v12, s57, v12")
    ONES = 176
    for i in range(4):
        a(f"v_mov_b32 v{ONES+i}, 0x3f803f80")
    a("s_waitcnt lgkmcnt(0)")
    KA = 128
    for ks in range(2):
        for ft in range(2):
            for rt in range(2):
                r = KA + (ks * 2 + ft) * 4 + rt * 2
                a(f"ds_read_b64_tr_b16 v[{r}:{r+1}], v12 offset:{ks*2048+rt*1024+ft*32}")
    a(f"v_lshlrev_b32 v12, 2, v{VL}")
    a("s_lshl_b32 s58, s7, 2")
    a("s_add_u32 s58, s58, s3")
    a("s_mul_i32 s58, s58, 2176")
    a(f"s_add_u32 s58, s58, {WS_KV}")
    a(f"v_cmp_eq_u32 vcc, 1, v{VG}")
    a("s_waitcnt lgkmcnt(0)")
    DK = 96
    for ks in range(2):
        for ft in range(2):
            ka = KA + (ks * 2 + ft) * 4
            cc = "0" if ks == 0 else f"v[{DK+4*ft}:{DK+4*ft+3}]"
            a(f"v_mfma_f32_16x16x32_bf16 v[{DK+4*ft}:{DK+4*ft+3}], v[{ka}:{ka+3}], v[{VB+4*ks}:{VB+4*ks+3}], {cc}")
        for ft in range(2):
            ka = KA + (ks * 2 + ft) * 4
            cc = "0" if ks == 0 else f"v[{DK+8+4*ft}:{DK+8+4*ft+3}]"
            a(f"v_mfma_f32_16x16x32_bf16 v[{DK+8+4*ft}:{DK+8+4*ft+3}], v[{ONES}:{ONES+3}], v[{ka}:{ka+3}], {cc}")
    a("s_waitcnt vmcnt(0)")
    a.nop(7)
    for e in range(8):
        a(f"buffer_atomic_add_f32 v{DK+e}, v12, s[40:43], s58 offen offset:{e*256} sc1")
    a(f"v_cndmask_b32 v{DK+8}, v{DK+8}, v{DK+12}, vcc")
    a("s_mov_b64 exec, 0xffffffff")
    a(f"buffer_atomic_add_f32 v{DK+8}, v12, s[40:43], s58 offen offset:2048 sc1")
    a("s_mov_b64 exec, -1")
    a.stamp(11)
    a("s_barrier")
    wq_tr(0, 16)
    a(f"v_lshrrev_b32 v12, 3, v{VL}")
    a(f"v_and_b32 v9, 7, v{VL}")
    a("v_and_b32 v6, 3, v12")
    a("v_lshrrev_b32 v16, 2, v12")
    a("v_xor_b32 v6, v6, v16")
    a("v_lshlrev_b32 v6, 1, v6")
    a("v_xor_b32 v9, v9, v6")
    a("v_lshlrev_b32 v12, 10, v12")
    a("v_lshl_add_u32 v9, v9, 4, v12")
    a("s_lshl_b32 s48, s3, 13")
    a("s_lshl_b32 s49, s7, 7")
    a("s_add_u32 s44, s48, s49")
    a("s_lshl_b32 s45, s3, 10")
    srd(a, 24, 8, 0, 512 * 1024)
    a("s_waitcnt lgkmcnt(0)")
    a.lq = []
    a.stamp(6)
    gpass("g", (0,), lambda c: [])
    a.stamp(13)
    b1_arrive(a)
    a.stamp(2)
    pf = []
    for cc in range(16):
        pf.append([f"s_add_u32 m0, s45, {L_WQ + cc*4096}",
                   f"s_add_u32 s50, s44, {cc*32768}",
                   "buffer_load_dwordx4 v9, s[24:27], s50 offen lds"])
    for c in range(7):
        pf += p3_dma(c)
    buf = M()
    for st in softmax4(buf, ACC, PH):
        pass
    weave(a, [x.strip() for x in buf.l], pf)
    a.stamp(12)


VWO = [6, 7, 10, 11]


TOUCH = int(os.environ.get("TOUCH", "0"))


def touch_items(a):
    a("s_load_dwordx2 s[10:11], s[0:1], 56")
    a(f"v_lshlrev_b32 v12, 7, v{VL}")
    a("s_lshr_b32 s51, s2, 3")
    a("s_lshl_b32 s51, s51, 2")
    a("s_add_u32 s51, s51, s3")
    a("s_mul_i32 s52, s51, 11008")
    a("s_add_u32 s53, s52, 11008-8192")
    a("s_lshl_b32 s51, s51, 12")
    a("s_mov_b32 s66, 512*2752")
    a("s_mov_b32 s67, 0x00020000")
    a("s_waitcnt lgkmcnt(0)")
    L = []
    n = 0
    for p in (16, 18, 10):
        L.append([f"s_mov_b32 s64, s{p}", f"s_and_b32 s65, s{p+1}, 0xffff",
                  f"buffer_load_dword v{64+n}, v12, s[64:67], s52 offen"])
        L.append([f"buffer_load_dword v{65+n}, v12, s[64:67], s53 offen"])
        n += 2
    L.append(["s_mov_b32 s64, s8", "s_and_b32 s65, s9, 0xffff", "s_mov_b32 s66, 512*1024",
              f"buffer_load_dword v{64+n}, v12, s[64:67], s51 offen"])
    return L


def p3_slot(c):
    return c + 6 if c < 7 else (c - 7 if c < 13 else c - 7)


def p3_setup(a):
    a("s_load_dwordx4 s[16:19], s[0:1], 40")
    a("s_and_b32 s48, s2, 7")
    a("s_lshr_b32 s50, s2, 3")
    a("s_lshl_b32 s33, s48, 1")
    a("s_cmp_ge_u32 s50, 15")
    a("s_cselect_b32 s32, 1, 0")
    a("s_add_u32 s33, s33, s32")
    a("s_mul_i32 s32, s32, 15")
    a("s_sub_u32 s32, s50, s32")
    a("s_sub_u32 s48, s2, 240")
    a("s_min_u32 s48, s48, 14")
    a("s_cmp_ge_u32 s2, 240")
    a("s_cselect_b32 s32, s48, s32")
    a("s_and_b32 s48, s3, 1")
    a("s_mul_i32 s34, s48, 16*2752")
    a("s_mul_i32 s50, s32, 192")
    a("s_add_u32 s34, s34, s50")
    a("s_mul_i32 s35, s3, 3072")
    for i in range(3):
        d = VD[i]
        a(f"v_add_u32 v12, {64*i}, v{VL}")
        a("v_mul_u32_u24 v16, 43691, v12")
        a("v_lshrrev_b32 v16, 19, v16")
        a("v_mul_u32_u24 v17, 12, v16")
        a("v_sub_u32 v12, v12, v17")
        a("v_bfe_u32 v17, v16, 2, 1")
        a("v_lshlrev_b32 v17, 1, v17")
        a("v_xor_b32 v12, v12, v17")
        a(f"v_mul_u32_u24 v{d}, 2752, v16")
        a(f"v_lshl_add_u32 v{d}, v12, 4, v{d}")
    a("s_waitcnt lgkmcnt(0)")
    a("s_cmp_ge_u32 s3, 2")
    a("s_cselect_b32 s28, s18, s16")
    a("s_cselect_b32 s29, s19, s17")
    a("s_and_b32 s29, s29, 0xffff")
    a("s_mov_b32 s30, 512*2752")
    a("s_mov_b32 s31, 0x00020000")


def p3_dma(c):
    L = []
    for i in range(3):
        L.append([f"s_add_u32 m0, s35, {p3_slot(c)*12288 + i*1024}",
                  f"s_add_u32 s50, s34, {c*32*2752}",
                  ('v', ("D", c), f"buffer_load_dwordx4 v{VD[i]}, s[28:31], s50 offen lds")])
    return L


def wo_addr(a):
    a(f"v_lshlrev_b32 v12, 9, v{VG}")
    a(f"v_lshl_add_u32 v12, v{VRR}, 7, v12")
    a(f"v_lshl_add_u32 v12, v{VQ}, 3, v12")
    a(f"v_and_b32 v13, 1, v{VG}")
    a(f"v_xor_b32 v13, v13, v{VRR}")
    a(f"v_lshl_add_u32 v{VWO[0]}, v13, 5, v12")
    for t in range(1, 4):
        a(f"v_xor_b32 v{VWO[t]}, {t<<5}, v{VWO[0]}")


def wo_tr_list():
    L = []
    for c in range(16):
        for t in range(4):
            r = (c * 4 + t) * 4
            L.append(f"ds_read_b64_tr_b16 a[{r}:{r+1}], v{VWO[t]} offset:{L_WQ + c*4096}")
            L.append(f"ds_read_b64_tr_b16 a[{r+2}:{r+3}], v{VWO[t]} offset:{L_WQ + c*4096 + 2048}")
    return L


def b1_arrive(a):
    a("s_waitcnt vmcnt(0)")
    a("s_barrier")
    a("s_cmp_lg_u32 s3, 0")
    a("s_cbranch_scc1 B1_A")
    a(f"v_lshlrev_b32 v12, 12, v{VL}")
    a("v_mov_b32 v16, 1")
    a("s_lshl_b32 s48, s2, 4")
    a(f"s_add_u32 s48, s48, {WS_FLG + F_B1}")
    a("s_mov_b64 exec, 255")
    a("buffer_store_dword v16, v12, s[40:43], s48 offen sc1")
    a("s_mov_b64 exec, -1")
    a.lab("B1_A")


def p2(a):
    WO = wo_tr_list()
    XR = 224
    a(f"v_lshlrev_b32 v12, 10, v{VM_}")
    a(f"v_lshl_add_u32 v12, v{VG}, 3, v12")
    a("s_lshl_b32 s54, s6, 6")
    a("s_lshl_b32 s55, s3, 4")
    a("s_add_u32 s54, s54, s55")
    a("s_lshl_b32 s56, s54, 10")
    a("s_lshl_b32 s57, s7, 7")
    a("s_add_u32 s56, s56, s57")
    for t in range(4):
        a(f"buffer_load_dwordx2 v[{XR+2*t}:{XR+2*t+1}], v12, s[20:23], s56 offen offset:{t*32}")
    wo_addr(a)
    a.stamp(0)
    a("s_cmp_lg_u32 s3, 0")
    a("s_cbranch_scc1 B1_W")
    a(f"v_lshlrev_b32 v12, 6, v{VL}")
    a("s_and_b32 s48, s2, 7")
    a("s_lshl_b32 s48, s48, 12")
    a(f"s_add_u32 s48, s48, {WS_FLG + F_B1}")
    a("s_mov_b32 s49, 0")
    a("s_sleep 6")
    a.lab("B1_P")
    for q in range(4):
        a(f"buffer_load_dword v{16+q}, v12, s[40:43], s48 offen offset:{q*16} sc1")
    a("s_add_u32 s49, s49, 1")
    a(f"s_cmp_gt_u32 s49, {SPIN_MAX}")
    a("s_cbranch_scc1 B1_W")
    a("s_waitcnt vmcnt(0)")
    a("v_and_b32 v16, v16, v17")
    a("v_and_b32 v18, v18, v19")
    a("v_and_b32 v16, v16, v18")
    a("v_cmp_ne_u32 vcc, 1, v16")
    a("s_cbranch_vccz B1_W")
    a("s_sleep 6")
    a("s_branch B1_P")
    a.lab("B1_W")
    a("s_waitcnt vmcnt(0) lgkmcnt(0)")
    a("s_barrier")
    a.stamp(1)
    a(f"v_lshlrev_b32 v40, 2, v{VL}")
    a(f"v_lshlrev_b32 v13, 4, v{VG}")
    KF = 16
    for j in range(8):
        a(f"buffer_load_dword v{KF+j}, v40, s[40:43], s58 offen offset:{j*256} sc1")
    a(f"buffer_load_dwordx4 v[{KF+8}:{KF+11}], v13, s[40:43], s58 offen offset:2048 sc1")
    a(f"buffer_load_dwordx4 v[{KF+12}:{KF+15}], v13, s[40:43], s58 offen offset:2112 sc1")
    a("s_mov_b32 s48, 2048*4")
    a("s_cmp_eq_u32 s3, 0")
    a("s_cselect_b32 s48, 1024*4, s48")
    a("s_cmp_eq_u32 s3, 1")
    a("s_cselect_b32 s48, 2560*4, s48")
    a("s_lshl_b32 s49, s7, 8")
    a("s_add_u32 s48, s48, s49")
    for p in range(4):
        a(f"s_add_u32 s49, s48, {p*3072*4}")
        a(f"buffer_load_dword v{232+p}, v40, s[40:43], s49 offen sc1")
    a(f"v_lshlrev_b32 v9, 3, v{VL}")
    a("s_lshl_b32 s55, s6, 16")
    a(f"s_add_u32 s55, s55, {WS_O}")
    a("s_lshl_b32 s48, s7, 2")
    a("s_add_u32 s48, s48, s3")
    a("s_lshl_b32 s48, s48, 9")
    a("s_add_u32 s48, s48, s55")
    a("s_mov_b32 s60, 0x358637bd")
    for x in WO[:NWO1]:
        a(x)
    a("s_waitcnt vmcnt(4)")
    for i in range(8):
        a(f"v_cvt_pk_bf16_f32 v{KF+i}, v{KF+2*i}, v{KF+2*i+1}")
    ND = 128
    a.nop(1)
    for rt in range(4):
        b = PH + 4 * rt
        a(f"v_mfma_f32_16x16x32_bf16 v[{ND+8*rt+4}:{ND+8*rt+7}], v[{KF+4}:{KF+7}], v[{b}:{b+3}], 0")
    for rt in range(4):
        b = PH + 4 * rt
        a(f"v_mfma_f32_16x16x32_bf16 v[{ND+8*rt}:{ND+8*rt+3}], v[{KF}:{KF+3}], v[{b}:{b+3}], 0")
    a.nop(2)
    for rt in range(4):
        n = ND + 8 * rt
        a(f"v_add_f32 v{n+4}, s60, v{n+4}")
    for rt in range(4):
        n = ND + 8 * rt
        a(f"v_rcp_f32 v{n+4}, v{n+4}")
    a.nop(4)
    for rt in range(4):
        n = ND + 8 * rt
        for r in range(4):
            a(f"v_mul_f32 v{n+r}, v{n+r}, v{n+4}")
        a(f"v_cvt_pk_bf16_f32 v{n}, v{n}, v{n+1}")
        a(f"v_cvt_pk_bf16_f32 v{n+1}, v{n+2}, v{n+3}")
        a(f"buffer_store_dwordx2 v[{n}:{n+1}], v9, s[40:43], s48 offen sc1")
        if rt < 3:
            a("s_add_u32 s48, s48, 16384")
    a("s_waitcnt vmcnt(4)")
    NW2 = (NWO1 + 128) // 2
    for x in WO[NWO1:NW2]:
        a(x)
    a("s_waitcnt vmcnt(0)")
    a("s_barrier")
    a.stamp(2)
    a("s_lshl_b32 s48, s6, 7")
    a(f"s_add_u32 s48, s48, {WS_FLG + F_G2}")
    a("s_cmp_lg_u32 s3, 0")
    a("s_cbranch_scc1 G2_A")
    a("v_mov_b32 v13, 1")
    a("v_mov_b32 v12, 0")
    a("s_lshl_b32 s49, s7, 4")
    a("s_add_u32 s49, s49, s48")
    a("s_mov_b64 exec, 1")
    a("buffer_store_dword v13, v12, s[40:43], s49 offen sc1")
    a("s_mov_b64 exec, -1")
    a.lab("G2_A")
    for x in WO[NW2:]:
        a(x)
    a("v_add_f32 v232, v232, v233")
    a("v_add_f32 v234, v234, v235")
    a("v_add_f32 v232, v232, v234")
    a("v_cvt_pk_bf16_f32 v232, v232, v232")
    a("v_lshlrev_b32 v232, 16, v232")
    a("s_cmp_ge_u32 s3, 2")
    a("s_cselect_b32 s49, 1.0, 0")
    a("v_add_f32 v232, s49, v232")
    a("v_cvt_pk_bf16_f32 v232, v232, v232")
    a("v_lshlrev_b32 v232, 16, v232")
    a("s_min_u32 s49, s3, 2")
    a("s_lshl_b32 s49, s49, 8")
    a(f"s_add_u32 s49, s49, {L_GA}")
    a("v_add_u32 v40, s49, v40")
    a("ds_write_b32 v40, v232")
    ACC2 = 24
    a("s_lshl_b32 s50, s3, 14")
    a("s_add_u32 s55, s55, s50")
    poll(a, "G2", 8, V16, 48, presleep=0)
    a("s_waitcnt vmcnt(0) lgkmcnt(0)")
    a("s_barrier")
    a.stamp(3)
    OB = 64
    a.vq = []
    a.lq = []
    def oload(c):
        L = []
        if c > 15:
            return L
        if c % 4 == 0:
            L.append(f"s_add_u32 s48, s55, {c*1024}")
        L.append(('v', ("o", c), f"buffer_load_dwordx2 v[{OB+4*c}:{OB+4*c+1}], v9, s[40:43], s48 offen offset:{(c&3)*1024}"))
        L.append(('v', ("o", c), f"buffer_load_dwordx2 v[{OB+4*c+2}:{OB+4*c+3}], v9, s[40:43], s48 offen offset:{(c&3)*1024+512}"))
        return L
    for c in range(NO1):
        for x in oload(c):
            a.emit(x)
    GA = 232
    A2 = 208
    a(f"v_lshlrev_b32 v12, 4, v{VG}")
    a(f"v_add_u32 v12, {L_GA}, v12")
    for t in range(4):
        a(f"ds_read_b128 v[{GA+4*t}:{GA+4*t+3}], v12 offset:{t*64}")
        a(f"ds_read_b128 v[{A2+4*t}:{A2+4*t+3}], v12 offset:{512+t*64}")
    for c in range(16):
        a.wv(("o", c))
        mf = []
        for t in range(4):
            d = ACC2 + 4 * t
            w = (c * 4 + t) * 4
            cc = "0" if c == 0 else f"v[{d}:{d+3}]"
            mf.append(f"v_mfma_f32_16x16x32_bf16 v[{d}:{d+3}], a[{w}:{w+3}], v[{OB+4*c}:{OB+4*c+3}], {cc}")
        a.inter(mf, oload(c + NO1))
    a.stamp(5)
    ACCx = ACC2
    X = 64
    for t in range(4):
        for d in range(2):
            a(f"v_lshlrev_b32 v{X+4*t+2*d}, 16, v{XR+2*t+d}")
            a(f"v_and_b32 v{X+4*t+2*d+1}, 0xffff0000, v{XR+2*t+d}")
    a("s_waitcnt lgkmcnt(0)")
    a.nop(4)
    for t in range(4):
        d = ACCx + 4 * t
        a(f"v_cvt_pk_bf16_f32 v{d}, v{d}, v{d+1}")
        a(f"v_cvt_pk_bf16_f32 v{d+2}, v{d+2}, v{d+3}")
    for t in range(4):
        d = ACCx + 4 * t
        a(f"v_and_b32 v{d+1}, 0xffff0000, v{d}")
        a(f"v_lshlrev_b32 v{d}, 16, v{d}")
        a(f"v_and_b32 v{d+3}, 0xffff0000, v{d+2}")
        a(f"v_lshlrev_b32 v{d+2}, 16, v{d+2}")
    for i in range(16):
        a(f"v_mul_f32 v{ACCx+i}, v{ACCx+i}, v{GA+i}")
    for t in range(4):
        d = ACCx + 4 * t
        a(f"v_cvt_pk_bf16_f32 v{d}, v{d}, v{d+1}")
        a(f"v_cvt_pk_bf16_f32 v{d+2}, v{d+2}, v{d+3}")
    for t in range(4):
        d = ACCx + 4 * t
        a(f"v_and_b32 v{d+1}, 0xffff0000, v{d}")
        a(f"v_lshlrev_b32 v{d}, 16, v{d}")
        a(f"v_and_b32 v{d+3}, 0xffff0000, v{d+2}")
        a(f"v_lshlrev_b32 v{d+2}, 16, v{d+2}")
    for i in range(16):
        a(f"v_add_f32 v{X+i}, v{X+i}, v{ACCx+i}")
    PK = 80
    for t in range(4):
        a(f"v_cvt_pk_bf16_f32 v{PK+2*t}, v{X+4*t}, v{X+4*t+1}")
        a(f"v_cvt_pk_bf16_f32 v{PK+2*t+1}, v{X+4*t+2}, v{X+4*t+3}")
    for t in range(4):
        for d in range(2):
            a(f"v_lshlrev_b32 v{X+4*t+2*d}, 16, v{PK+2*t+d}")
            a(f"v_and_b32 v{X+4*t+2*d+1}, 0xffff0000, v{PK+2*t+d}")
    Y = 96
    for i in range(0, 16, 2):
        a(f"v_pk_mul_f32 v[{Y+i}:{Y+i+1}], v[{X+i}:{X+i+1}], v[{A2+i}:{A2+i+1}]")
    for i in range(8):
        a(f"v_cvt_pk_bf16_f32 v{Y+i}, v{Y+2*i}, v{Y+2*i+1}")
    a("s_lshl_b32 s59, s54, 10")
    a("s_lshl_b32 s57, s7, 11")
    a("s_add_u32 s59, s59, s57")
    a(f"s_add_u32 s59, s59, {WS_X1}")
    a(f"buffer_store_dwordx4 v[{Y}:{Y+3}], v{V16}, s[40:43], s59 offen sc1")
    a(f"buffer_store_dwordx4 v[{Y+4}:{Y+7}], v{V16}, s[40:43], s59 offen offset:1024 sc1")
    a("s_mov_b32 s46, 0x3f803f80")
    for i in range(8):
        c0 = "0" if i < 2 else f"v{90+(i&1)*2}"
        c1 = "0" if i < 2 else f"v{91+(i&1)*2}"
        a(f"v_dot2_f32_bf16 v{90+(i&1)*2}, v{PK+i}, s46, {c0}")
        a(f"v_dot2_f32_bf16 v{91+(i&1)*2}, v{PK+i}, v{PK+i}, {c1}")
    a.nop(4)
    a("v_add_f32 v90, v90, v92")
    a("v_add_f32 v91, v91, v93")
    xgroup_reduce(a, [90, 91], [92, 93], "v_add_f32")
    a(f"v_lshlrev_b32 v95, 3, v{VM_}")
    a("s_lshl_b32 s57, s6, 3")
    a("s_add_u32 s57, s57, s7")
    a("s_lshl_b32 s57, s57, 9")
    a("s_lshl_b32 s48, s3, 7")
    a("s_add_u32 s57, s57, s48")
    a(f"s_add_u32 s57, s57, {WS_ST2}")
    a("s_mov_b64 exec, 0xffff")
    a("buffer_store_dwordx2 v[90:91], v95, s[40:43], s57 offen sc1")
    a("s_mov_b64 exec, -1")
    for i in range(8):
        a(f"v_accvgpr_write_b32 a{248+i}, v{PK+i}")
    a("s_waitcnt vmcnt(0)")
    a("s_barrier")
    a("s_cmp_lg_u32 s3, 0")
    a("s_cbranch_scc1 G3_A")
    a("v_mov_b32 v13, 1")
    a("v_mov_b32 v12, 0")
    a("s_lshl_b32 s48, s6, 7")
    a("s_lshl_b32 s49, s7, 4")
    a("s_add_u32 s49, s49, s48")
    a(f"s_add_u32 s49, s49, {WS_FLG + F_G3}")
    a("s_mov_b64 exec, 1")
    a("buffer_store_dword v13, v12, s[40:43], s49 offen sc1")
    a("s_mov_b64 exec, -1")
    a.lab("G3_A")
    a.stamp(4)
    for c in range(7, 13):
        for it in p3_dma(c):
            for x in it:
                a.emit(x)


def main():
    import p34n as p34
    a = M()
    a.raw(f"; @launch kernel=mk_kernel grid=(256,1,1) block=(256,1,1) lds={LDS_TOTAL}")
    a.raw('.amdgcn_target "amdgcn-amd-amdhsa--gfx950"')
    a.raw(".text")
    kernel_head(a, "mk_kernel")
    a("s_cmp_ge_u32 s2, 256")
    a("s_cbranch_scc1 MK_END")
    front(a)
    p1(a)
    if STAMP:
        a("s_waitcnt lgkmcnt(0)")
        a.stamp_out(1)
        a.late = 1
    p2(a)
    if STAMP:
        a("s_waitcnt lgkmcnt(0)")
        a.stamp_out(2)
    p34.p3(a)
    p34.p4(a)
    if STAMP:
        a("s_waitcnt lgkmcnt(0)")
        a.stamp_out(3)
    a.lab("MK_END")
    a("s_endpgm")
    a.raw('.section .rodata,"a"')
    a.raw(".p2align 6")
    a.raw(kernel_desc("mk_kernel", 256, agpr=256))
    out = sys.argv[1] if len(sys.argv) > 1 else f"cdna_kernels/{NAME}.s"
    open(out, "w").write(a.text())


if __name__ == "__main__":
    main()
```
